```python
import torch

def _softmax(x, axis=-1):
    return torch.softmax(x, dim=axis)
def _gelu(x):
    return torch.nn.functional.gelu(x, approximate="tanh")
def _silu(x):
    return torch.nn.functional.silu(x)
def _sigmoid(x):
    return torch.sigmoid(x)
def _layernorm(x, axis=-1, eps=1e-5):
    m = x.mean(dim=axis, keepdim=True)
    v = x.var(dim=axis, keepdim=True, unbiased=False)
    return (x - m) / torch.sqrt(v + eps)
def _scatter_add(tgt, idx, src, axis=0):
    return tgt.clone().index_add_(axis, idx, src)
def _segment_sum(src, seg, n):
    out = torch.zeros((n,) + src.shape[1:], dtype=src.dtype)
    return out.index_add_(0, seg, src)
def _pad(x, pw):
    flat = tuple(v for pair in reversed(pw) for v in pair)
    return torch.nn.functional.pad(x, flat)

kernel_name = 'gated_mix__softmax_full_mha__dense_activation_squared_relu__prompt'

def setup_inputs():

    _w = (lambda a: (lambda t: t.to(torch.bfloat16) if t.is_floating_point() else t)(torch.as_tensor(a)))
    def _A_setup():
        B, S, D = 1, 2048, 512
        return {
            "x": _w((lambda *s: torch.randn(*s, dtype=torch.bfloat16) * 0.05)(B, S, D)),
            "wqkv": _w((lambda *s: torch.randn(*s, dtype=torch.bfloat16) * 0.8)(D, 3 * D)),
            "wo": _w((lambda *s: torch.randn(*s, dtype=torch.bfloat16) * 0.1)(D, D)),
        }
    _A_in = _A_setup()

    def _B_setup():
        B, S, D, F = 1, 2048, 512, 1376
        return {
            "x": _w((lambda *s: torch.randn(*s, dtype=torch.bfloat16) * 0.05)(B, S, D)),
            "w1": _w((lambda *s: torch.randn(*s, dtype=torch.bfloat16) * 0.1)(D, F)),
            "b1": _w((lambda *s: torch.randn(*s, dtype=torch.bfloat16) * 0.1)(F)),
            "w2": _w((lambda *s: torch.randn(*s, dtype=torch.bfloat16) * 0.1)(F, D)),
            "b2": _w((lambda *s: torch.randn(*s, dtype=torch.bfloat16) * 0.05)(D)),
        }
    _B_in = _B_setup()

    return {
        "A_x": _A_in["x"],
        "A_wqkv": _A_in["wqkv"],
        "A_wo": _A_in["wo"],
        "B_x": _B_in["x"],
        "B_w1": _B_in["w1"],
        "B_b1": _B_in["b1"],
        "B_w2": _B_in["w2"],
        "B_b2": _B_in["b2"],
        "gate_w": _w((lambda *s: torch.randn(*s, dtype=torch.bfloat16) * 0.05)(512) * 16.0),
    }

def reference(A_x, A_wqkv, A_wo, B_x, B_w1, B_b1, B_w2, B_b2, gate_w):
    def _A_ref(x, wqkv, wo):
        B, S, D = x.shape
        H = 32; Dh = D // H
        qkv = (lambda x, *d: x.permute(*d))((x @ wqkv).reshape(B, S, 3, H, Dh), 2, 0, 3, 1, 4)
        q, k, v = qkv[0], qkv[1], qkv[2]
        scale = Dh ** -0.5
        scores = torch.einsum("bhqd,bhkd->bhqk", q, k) * scale
        p = _softmax(scores, axis=-1)
        o = torch.einsum("bhqk,bhkd->bhqd", p, v)
        return (lambda x, *d: x.permute(*d))(o, 0, 2, 1, 3).reshape(B, S, D) @ wo

    def _B_ref(x, w1, b1, w2, b2):
        h = torch.einsum("bsd,df->bsf", x, w1) + b1
        zero = torch.zeros_like(h)
        r = torch.where(h > zero, h, zero)
        h = r * r
        out = torch.einsum("bsf,fd->bsd", h, w2) + b2
        return out

    x = A_x
    g = _sigmoid((x * gate_w).sum(-1, keepdims=True))
    a = _A_ref(x, A_wqkv, A_wo)
    b = _B_ref(x, B_w1, B_b1, B_w2, B_b2)
    return g * a + (1 - g) * b
```

```python
class Asm:
    def __init__(self): self.L=[]
    def __call__(self, s):
        for l in s.split("\n"):
            l=l.strip()
            if l: self.L.append(l if l.endswith(":") or l.startswith(".") or l.startswith(";") else "    "+l)
    def text(self): return "\n".join(self.L)+"\n"
def kernel_head(name):
    return f".text\n.globl {name}\n.p2align 8\n.type {name},@function\n{name}:"
def kernel_desc(name, vgpr, sgpr=96, accum=None):
    accum = accum or ((vgpr+3)//4*4)
    return f""".section .rodata,"a"
.p2align 6
.amdhsa_kernel {name}
.amdhsa_next_free_vgpr {vgpr}
.amdhsa_next_free_sgpr {sgpr}
.amdhsa_accum_offset {accum}
.amdhsa_group_segment_fixed_size 0
.amdhsa_kernarg_size 96
.amdhsa_user_sgpr_count 2
.amdhsa_user_sgpr_kernarg_segment_ptr 1
.amdhsa_system_sgpr_workgroup_id_x 1
.end_amdhsa_kernel"""
```

```python
import sys, os
sys.path.insert(0, os.path.dirname(os.path.abspath(__file__)))
from asmlib import Asm
KN = "gated_mix__softmax_full_mha__dense_activation_squared_relu__prompt_kernel"

WQ, WKV, WH, WO_, WG = 0, 0x200000, 0x600000, 0xC00000, 0xE00000
FQ, FH, FO, EPOCH, WPROF = 0xE10000, 0xE20000, 0xE30000, 0xE50000, 0xF00000
SLOT = 28672
RING = 131072
SPIN = 400000
sW, sX, sJ, sR, sC, sROT, sHEAD, sQB, sSUB, sCB, sN = 3, 4, 5, 6, 7, 8, 9, 10, 11, 12, 13
SX, SWQ, SW1, SWS, SWO, SW2, SOUT, SB1, SB2, SG = 40, 44, 48, 52, 56, 60, 64, 68, 72, 76
sMASK, sCNT, sI = 96, 98, 99


def srd(b): return f"s[{b}:{b+3}]"
def vr(b, n): return f"v[{b}:{b+n-1}]" if n > 1 else f"v{b}"
MF = "v_mfma_f32_32x32x16_bf16"
SM = "v_smfmac_f32_32x32x32_bf16"


class VM:
    def __init__(s, a): s.a = a; s.q = []
    def add(s, tag, n=1): s.q += [tag] * n
    def wait(s, tag):
        idx = [i for i, t in enumerate(s.q) if t == tag]
        if not idx: return
        n = len(s.q) - 1 - idx[-1]
        assert n < 64
        s.a(f"s_waitcnt vmcnt({n})")
        s.q = s.q[idx[-1] + 1:]
    def all(s): s.a("s_waitcnt vmcnt(0)"); s.q = []


def gen(path, PROF=0, FQPOS=0, PRIO=0, FORCE_SLOW=0, SPIN=SPIN):
    a = Asm()
    nst = [0]
    def stamp(i):
        if PROF: a(f"s_memrealtime s[{16+2*i}:{17+2*i}]")
    def prof_out():
        if not PROF: return
        a("s_waitcnt lgkmcnt(0)")
        a(f"s_lshl_b32 s14, s2, 3\ns_add_u32 s14, s14, s{sW}\ns_lshl_b32 s14, s14, 6\ns_add_u32 s14, s14, {WPROF}")
        a("s_mov_b64 exec, 1")
        for i in range(12):
            a(f"v_mov_b32 v1, s{16+2*i}\nbuffer_store_dword v1, off, {srd(SWS)}, s14 offset:{4*i}")
        a("s_mov_b64 exec, -1")
    lab = [0]
    def poll(vaddr, vtmp, name):
        a(f"s_mov_b32 s15, {SPIN}")
        a(f"{name}:")
        a(f"buffer_load_dword v{vtmp}, v{vaddr}, {srd(SWS)}, 0 offen sc1")
        a("s_sub_u32 s15, s15, 1\ns_cmp_eq_u32 s15, 0")
        a(f"s_cbranch_scc1 {name}_x")
        a(f"s_waitcnt vmcnt(0)\nv_cmp_ne_u32 vcc, s{sN}, v{vtmp}\ns_nop 4\ns_cmp_lg_u64 vcc, 0\ns_cbranch_scc1 {name}")
        a(f"{name}_x:\ns_waitcnt vmcnt(0)")
    def flag_store(soff, vtmp):
        a(f"v_mov_b32 v{vtmp}, s{sN}\ns_mov_b64 exec, 1\nbuffer_store_dword v{vtmp}, off, {srd(SWS)}, s{soff} sc1\ns_mov_b64 exec, -1")

    a("; @launch grid=(256,1,1) block=(512,1,1) lds=163840")
    a('.amdgcn_target "amdgcn-amd-amdhsa--gfx950"')
    a(f".text\n.globl {KN}\n.p2align 8\n.type {KN},@function\n{KN}:")
    a("s_cmp_ge_u32 s2, 256\ns_cbranch_scc1 Lend")
    a("s_load_dwordx16 s[16:31], s[0:1], 0\ns_load_dwordx8 s[32:39], s[0:1], 64")
    a(f"v_lshrrev_b32 v1, 6, v0\nv_and_b32 v0, 63, v0\ns_and_b32 s{sX}, s2, 7\nv_readfirstlane_b32 s{sW}, v1\ns_lshr_b32 s{sJ}, s2, 3")
    a(f"s_and_b32 s14, s{sX}, 1\ns_lshl_b32 s14, s14, 3\ns_and_b32 s15, s{sJ}, 7\ns_add_u32 s{sR}, s14, s15")
    a(f"s_lshr_b32 s14, s{sX}, 1\ns_lshl_b32 s14, s14, 2\ns_lshr_b32 s80, s{sJ}, 3\ns_add_u32 s{sC}, s14, s80")
    a(f"s_lshl_b32 s80, s80, 1\ns_add_u32 s{sROT}, s15, s80")
    a(f"s_and_b32 s14, s{sJ}, 3\ns_lshl_b32 s15, s{sX}, 2\ns_add_u32 s{sHEAD}, s15, s14\ns_lshr_b32 s{sQB}, s{sJ}, 2")
    a(f"s_and_b32 s{sSUB}, s{sX}, 3\ns_and_b32 s15, s{sX}, 4\ns_add_u32 s{sCB}, s15, s14")
    a(f"s_and_b32 s{sI}, s{sW}, 3")
    a(f"s_mov_b32 s{sMASK}, 0xffff\ns_mov_b32 s{sMASK+1}, 0xffff")
    sizes = {SX: (16, 2097152), SWQ: (18, 1572864), SWO: (20, 524288), SW1: (24, 1409024), SB1: (26, 2752),
             SW2: (28, 1409024), SB2: (30, 1024), SG: (32, 1024), SOUT: (34, 2097152), SWS: (38, 268435456)}
    for b, (p, sz) in sizes.items():
        a(f"s_mov_b32 s{b+2}, {sz}\ns_mov_b32 s{b+3}, 0x20000")
    a(f"s_cmp_eq_u32 s{sC}, 15\ns_cselect_b32 s{SW1+2}, 0, s{SW1+2}")
    a(f"s_cmp_ge_u32 s{sW}, 4\ns_cbranch_scc1 Lload")

    def mk_srd(lst):
        for b in lst:
            p = sizes[b][0]
            a(f"s_mov_b32 s{b}, s{p}\ns_mov_b32 s{b+1}, s{p+1}")
    def nonce(v):
        a(f"v_readfirstlane_b32 s14, v{v}\ns_mul_i32 s{sN}, s14, 0x9E3779B1\ns_add_u32 s{sN}, s{sN}, 0x7F4A7C15\ns_or_b32 s{sN}, s{sN}, 0x80000000")
        a(f"s_xor_b32 s15, s{sN}, 1\ns_cmp_eq_u32 s{sN}, s14\ns_cselect_b32 s{sN}, s15, s{sN}")

    XF, ACC, WF, BI = 16, 144, 192, 240
    vL31, vH, vXA, vWL, vWA, vT, vQS, vKS, vVS = 1, 2, 3, 7, 8, 9, 12, 13, 14
    a(f"v_and_b32 v{vL31}, 31, v0\nv_lshrrev_b32 v{vH}, 5, v0")
    a(f"v_bfe_u32 v9, v0, 1, 3\nv_xor_b32 v9, v9, v{vH}\nv_lshlrev_b32 v9, 4, v9\nv_lshl_add_u32 v9, v{vL31}, 7, v9")
    a(f"s_lshl_b32 s14, s{sI}, 12\nv_add_u32 v{vXA}, s14, v9")
    for k in range(1, 4): a(f"v_xor_b32 v{vXA+k}, {32*k}, v{vXA}")
    a(f"v_bfe_u32 v9, v0, 2, 2\nv_lshl_add_u32 v9, v{vH}, 3, v9\nv_lshlrev_b32 v9, 6, v9\nv_bfe_u32 v10, v0, 4, 1\nv_lshl_add_u32 v9, v10, 5, v9")
    a(f"v_and_b32 v10, 3, v0\nv_lshl_add_u32 v{vWL}, v10, 3, v9")
    a(f"v_lshlrev_b32 v{vQS}, 4, v0")
    a(f"v_and_b32 v9, 0x33, v0\nv_and_b32 v10, 4, v0\nv_lshl_add_u32 v9, v10, 1, v9\nv_bfe_u32 v10, v0, 3, 1\nv_lshl_add_u32 v9, v10, 2, v9\nv_lshlrev_b32 v{vKS}, 4, v9")
    a(f"v_and_b32 v9, 15, v0\nv_lshl_add_u32 v9, v{vH}, 4, v9\nv_lshlrev_b32 v9, 4, v9\nv_bfe_u32 v10, v0, 4, 1\nv_lshl_add_u32 v9, v10, 17, v9\nv_add_u32 v{vVS}, 1024, v9")
    for k in range(16): a(f"v_mov_b32 v{BI+k}, 0")
    a(f"v_mov_b32 v9, 0x3f80\nv_cmp_gt_u32 vcc, 32, v0\ns_mul_i32 s14, s{sC}, 192\nv_lshl_add_u32 v10, v{vL31}, 1, s14\nv_cndmask_b32 v{BI+12}, 0, v9, vcc")
    a("s_waitcnt lgkmcnt(0)")
    mk_srd([SWS, SB1, SG])
    a(f"s_mov_b32 s15, {EPOCH}\nbuffer_load_dword v11, off, {srd(SWS)}, s15 sc1")
    for i in range(3): a(f"buffer_load_ushort v{BI+4*i}, v10, {srd(SB1)}, 0 offen offset:{64*i}")
    a(f"s_lshl_b32 s14, s{sR}, 2\ns_add_u32 s80, s14, s{sI}")
    a(f"s_lshl_b32 s14, s{sC}, 7\ns_add_u32 s14, s14, s80\ns_lshl_b32 s81, s14, 10\ns_add_u32 s82, s81, 65536")
    a(f"s_lshl_b32 s83, s14, 11\ns_add_u32 s83, s83, {WKV}\ns_add_u32 s84, s83, 131072")
    a(f"s_mul_i32 s85, s80, 86\ns_mul_i32 s14, s{sC}, 6\ns_add_u32 s85, s85, s14\ns_lshl_b32 s85, s85, 10\ns_add_u32 s85, s85, {WH}\ns_add_u32 s86, s85, 4096")
    a(f"s_lshl_b32 s14, s{sC}, 4\ns_add_u32 s14, s14, s{sR}\ns_lshl_b32 s14, s14, 7\ns_lshl_b32 s15, s{sI}, 2\ns_add_u32 s87, s14, s15\ns_add_u32 s87, s87, {FQ}")
    a(f"s_lshl_b32 s14, s{sR}, 4\ns_add_u32 s14, s14, s{sC}\ns_lshl_b32 s14, s14, 7\ns_add_u32 s88, s14, s15\ns_add_u32 s88, s88, {FH}")
    a("s_mov_b32 s90, 0x3eb8aa3b\ns_mov_b32 s91, 0x3eb8aa3b")
    a("s_waitcnt vmcnt(0)")
    nonce(11)
    stamp(0)

    def wreads(hf, tiles=3):
        for ksl in range(2):
            ks = 2 * hf + ksl
            for t in range(tiles):
                d = WF + 24 * hf + 12 * ksl + 4 * t
                for u in range(2):
                    a(f"ds_read_b64_tr_b16 {vr(d+2*u,2)}, v{vWA} offset:{t*4096+ks*1024+u*256}")
    def readsA(s, hf, xoff):
        for ksl in range(2):
            ks = 2 * hf + ksl
            a(f"ds_read_b128 {vr(XF+16*s+4*ks,4)}, v{vXA+ks} offset:{xoff}")
        wreads(hf)
    def mfA(s, hf):
        for ksl in range(2):
            ks = 2 * hf + ksl
            x = vr(XF + 16 * s + 4 * ks, 4)
            for t in range(3):
                w = vr(WF + 24 * hf + 12 * ksl + 4 * t, 4)
                d = vr(ACC + 16 * t, 16)
                c = "0" if (s == 0 and ks == 0) else d
                a(f"{MF} {d}, {w}, {x}, {c}" if t < 2 else f"{MF} {d}, {x}, {w}, {c}")
    def mfB(t, hf):
        for ksl in range(2):
            ks = 2 * hf + ksl
            x = vr(XF + 16 * t + 4 * ks, 4)
            for i in range(3):
                w = vr(WF + 24 * hf + 12 * ksl + 4 * i, 4)
                d = vr(ACC + 16 * i, 16)
                a(f"{MF} {d}, {w}, {x}, {d}")
    slots = [0, 1, 2, 3, 4, 0, 1, 2]
    segs = [0, 0, 57344, 57344, 114688, 0, 0, 57344]
    cur = 0
    for s in range(8):
        if segs[s] != cur:
            for k in range(4): a(f"v_add_u32 v{vXA+k}, {(segs[s]-cur) & 0xffffffff:#x}, v{vXA+k}")
            cur = segs[s]
        a(f"v_add_u32 v{vWA}, {slots[s]*SLOT+16384}, v{vWL}")
        a("s_barrier")
        if s == 0: stamp(1)
        xo = slots[s] * SLOT - segs[s]
        readsA(s, 0, xo)
        if s > 0: mfA(s - 1, 1)
        readsA(s, 1, xo)
        a("s_waitcnt lgkmcnt(14)")
        mfA(s, 0)
        a("s_waitcnt lgkmcnt(0)")
    bbase = [143360, 86016, 98304, 114688, 126976, 0, 12288, 28672]
    a(f"v_add_u32 v{vWA}, {bbase[0]}, v{vWL}")
    wreads(0)
    mfA(7, 1)
    wreads(1)
    stamp(2)
    for k in range(8): a(f"v_pk_mul_f32 {vr(ACC+2*k,2)}, {vr(ACC+2*k,2)}, s[90:91]")
    for k in range(8): a(f"v_cvt_pk_bf16_f32 v{ACC+k}, v{ACC+2*k}, v{ACC+2*k+1}")
    a(f"buffer_store_dwordx4 {vr(ACC,4)}, v{vQS}, {srd(SWS)}, s81 offen sc1\nbuffer_store_dwordx4 {vr(ACC+4,4)}, v{vQS}, {srd(SWS)}, s82 offen sc1")
    for k in range(8): a(f"v_cvt_pk_bf16_f32 v{ACC+16+k}, v{ACC+16+2*k}, v{ACC+16+2*k+1}")
    a(f"buffer_store_dwordx4 {vr(ACC+16,4)}, v{vKS}, {srd(SWS)}, s83 offen sc1\nbuffer_store_dwordx4 {vr(ACC+20,4)}, v{vKS}, {srd(SWS)}, s84 offen sc1")
    for k in range(8): a(f"v_cvt_pk_bf16_f32 v{ACC+32+k}, v{ACC+32+2*k}, v{ACC+32+2*k+1}")
    a(f"buffer_store_dwordx4 {vr(ACC+32,4)}, v{vVS}, {srd(SWS)}, s83 offen sc1\nbuffer_store_dwordx4 {vr(ACC+36,4)}, v{vVS}, {srd(SWS)}, s83 offen offset:512 sc1")
    a(f"s_cmp_eq_u32 s{sC}, 15\ns_cbranch_scc1 Lgate")
    for i in range(3): a(f"{MF} {vr(ACC+16*i,16)}, {vr(BI+4*i,4)}, {vr(BI+12,4)}, 0")
    a("s_waitcnt lgkmcnt(12)")
    mfB(0, 0)
    a("s_waitcnt lgkmcnt(0)")
    if FQPOS == 0:
        a("s_waitcnt vmcnt(0)"); flag_store(87, 9)
    for t in range(1, 8):
        a(f"v_add_u32 v{vWA}, {bbase[t]}, v{vWL}")
        if t in (1, 5): a("s_barrier")
        wreads(0)
        mfB(t - 1, 1)
        if FQPOS == t:
            a("s_waitcnt vmcnt(0)"); flag_store(87, 9)
        wreads(1)
        a("s_waitcnt lgkmcnt(12)")
        mfB(t, 0)
        if t in (4, 7): a("s_waitcnt lgkmcnt(0)")
        else: a("s_waitcnt lgkmcnt(0)")
    mfB(7, 1)
    stamp(3)
    a("s_nop 7")
    for i in range(3):
        b = ACC + 16 * i
        if i == 1: a(f"s_cmp_eq_u32 s{sC}, 14\ns_cbranch_scc1 Latt")
        for k in range(16): a(f"v_max_f32 v{b+k}, 0, v{b+k}")
        for k in range(8): a(f"v_pk_mul_f32 {vr(b+2*k,2)}, {vr(b+2*k,2)}, {vr(b+2*k,2)}")
        for k in range(8): a(f"v_cvt_pk_bf16_f32 v{b+k}, v{b+2*k}, v{b+2*k+1}")
        for m in range(2):
            o = (2 * i + m) * 1024
            a(f"buffer_store_dwordx4 {vr(b+4*m,4)}, v{vQS}, {srd(SWS)}, s{85 if o < 4096 else 86} offen offset:{o % 4096} sc1")
    a("s_branch Latt")
    a("Lgate:\ns_waitcnt lgkmcnt(0)")
    GB = [WF + 4 * k for k in range(16)] + [ACC + 16 + 4 * k for k in range(8)]
    a(f"v_lshlrev_b32 v9, 4, v{vH}")
    def gload(f, reg):
        s, ks = f >> 2, f & 3
        if ks == 0: a(f"s_add_u32 s14, s{sROT}, {s}\ns_and_b32 s14, s14, 7\ns_lshl_b32 s14, s14, 7")
        a(f"buffer_load_dwordx4 {vr(reg,4)}, v9, {srd(SG)}, s14 offen offset:{ks*32}")
    for f in range(24): gload(f, GB[f])
    a("s_waitcnt vmcnt(0)")
    flag_store(87, 10)
    a("s_barrier")
    for f in range(24):
        a(f"{MF} {vr(ACC,16)}, {vr(GB[f],4)}, {vr(XF+4*f,4)}, {'0' if f == 0 else vr(ACC,16)}")
        if f == 7:
            for g in range(24, 32): gload(g, GB[g - 24])
    a("s_waitcnt vmcnt(0)")
    for f in range(24, 32):
        a(f"{MF} {vr(ACC,16)}, {vr(GB[f-24],4)}, {vr(XF+4*f,4)}, {vr(ACC,16)}")
    a("s_barrier\ns_nop 7\ns_nop 7")
    a(f"v_mul_f32 v9, 0xbfb8aa3b, v{ACC}\nv_exp_f32 v9, v9\ns_lshl_b32 s14, s80, 7\ns_add_u32 s14, s14, {WG}\nv_add_f32 v9, 1.0, v9\nv_rcp_f32 v9, v9\nv_lshlrev_b32 v10, 2, v{vL31}\ns_nop 0")
    a(f"buffer_store_dword v9, v10, {srd(SWS)}, s14 offen sc1")

    X, Y, OA, OB, QA, QB, KB, VB, IDX, vK, vV, vGF, vGA, vFL, GA, GBv = 16, 32, 48, 64, 80, 84, 88, 96, 112, 113, 114, 115, 116, 117, 118, 119
    a("Latt:")
    for k in range(32): a(f"v_mov_b32 v{OA+k}, 0")
    a(f"v_and_b32 v9, 27, v0\nv_cmp_eq_u32 vcc, 16, v9\nv_mov_b32 v10, 0x3f803f80\nv_mov_b32 v{IDX}, 0xdddddddd\nv_add_u32 v{vK}, {58*2048}, v{vQS}")
    a(f"v_cndmask_b32 v{VB}, 0, v10, vcc")
    for k in range(1, 16): a(f"v_mov_b32 v{VB+k}, v{VB}")
    a(f"v_and_b32 v9, 15, v0\nv_lshl_add_u32 v9, v{vH}, 4, v9\nv_lshlrev_b32 v9, 4, v9\nv_add_u32 v{vV}, {58*2048+1024}, v9")
    a(f"s_lshl_b32 s14, s{sI}, 13\ns_add_u32 s14, s14, {RING+6144}\nv_add_u32 v9, s14, v{vQS}")
    a(f"s_lshl_b32 s14, s{sQB}, 1\ns_lshr_b32 s15, s{sI}, 1\ns_add_u32 s14, s14, s15\ns_lshl_b32 s14, s14, 11\ns_and_b32 s15, s{sI}, 1\ns_lshl_b32 s15, s15, 3\ns_add_u32 s14, s14, s15\ns_add_u32 s14, s14, {FH+15*128}")
    a(f"v_and_b32 v10, 1, v0\nv_lshl_add_u32 v{vGF}, v10, 2, s14")
    a(f"s_lshl_b32 s14, s{sQB}, 2\ns_add_u32 s80, s14, s{sI}\ns_lshl_b32 s14, s80, 8\ns_add_u32 s14, s14, {WG}\nv_lshl_add_u32 v{vGA}, v{vL31}, 2, s14")
    a(f"s_lshl_b32 s14, s80, 5\ns_add_u32 s14, s14, s{sHEAD}\ns_lshl_b32 s89, s14, 6\ns_add_u32 s89, s89, {FO}")
    a(f"s_lshl_b32 s14, s80, 6\ns_add_u32 s14, s14, s{sHEAD}\ns_lshl_b32 s81, s14, 10\ns_add_u32 s81, s81, {WO_}\ns_add_u32 s82, s81, 32768")
    a(f"s_mov_b32 s{sCNT}, 0")
    a("s_barrier")
    stamp(4)
    if PRIO: a(f"s_setprio {PRIO}")
    a(f"ds_read_b128 {vr(QA,4)}, v9\nds_read_b128 {vr(KB,4)}, v{vK} offset:{5*2048}\nds_read_b128 {vr(QB,4)}, v9 offset:1024\nds_read_b128 {vr(KB+4,4)}, v{vK} offset:{4*2048}")
    a(f"s_mov_b64 exec, s[{sMASK}:{sMASK+1}]\nds_read_b128 {vr(VB,4)}, v{vV} offset:{5*2048}\nds_read_b128 {vr(VB+4,4)}, v{vV} offset:{5*2048+512}\ns_mov_b64 exec, -1")
    a(f"s_waitcnt lgkmcnt(4)\n{MF} {vr(X,16)}, {vr(KB,4)}, {vr(QA,4)}, 0\ns_waitcnt lgkmcnt(2)\ns_nop 7\ns_nop 3")
    def ex(b, lo, hi):
        for k in range(lo, hi + 1): a(f"v_exp_f32 v{b+k}, v{b+k}")
    ex(X, 0, 1)
    def tile(u, koff, voff, last):
        kc, kn = KB + 4 * (u & 1), KB + 4 * ((u + 1) & 1)
        vc, vn = VB + 8 * (u & 1), VB + 8 * ((u + 1) & 1)
        ex(X, 2, 4)
        a(f"{MF} {vr(Y,16)}, {vr(kc,4)}, {vr(QB,4)}, 0")
        a("s_waitcnt lgkmcnt(0)")
        if koff is not None: a(f"ds_read_b128 {vr(kc,4)}, v{vK} offset:{koff}")
        if voff is not None:
            a(f"s_mov_b64 exec, s[{sMASK}:{sMASK+1}]\nds_read_b128 {vr(vn,4)}, v{vV} offset:{voff}\nds_read_b128 {vr(vn+4,4)}, v{vV} offset:{voff+512}\ns_mov_b64 exec, -1")
        ex(X, 5, 9)
        a(f"{SM} {vr(OA,16)}, {vr(vc,4)}, {vr(X,8)}, v{IDX}")
        ex(X, 10, 15); ex(Y, 0, 1)
        a(f"{SM} {vr(OA,16)}, {vr(vc+4,4)}, {vr(X+8,8)}, v{IDX}")
        ex(Y, 2, 4)
        if not last: a(f"{MF} {vr(X,16)}, {vr(kn,4)}, {vr(QA,4)}, 0")
        ex(Y, 5, 9)
        a(f"{SM} {vr(OB,16)}, {vr(vc,4)}, {vr(Y,8)}, v{IDX}")
        ex(Y, 10, 15)
        if not last: ex(X, 0, 1)
        else: a("s_nop 1")
        a(f"{SM} {vr(OB,16)}, {vr(vc+4,4)}, {vr(Y+8,8)}, v{IDX}")
    a("Lloop:")
    for u in range(4): tile(u, (3 - u) * 2048, (4 - u) * 2048, False)
    a(f"s_add_u32 s{sCNT}, s{sCNT}, 1\nv_add_u32 v{vK}, 0xffffe000, v{vK}\nv_add_u32 v{vV}, 0xffffe000, v{vV}")
    a(f"s_bitcmp1_b32 {(1<<2)|(1<<12)|(1<<13)|(1<<15)}, s{sCNT}\ns_cbranch_scc0 Lloop")
    a(f"s_cmp_eq_u32 s{sCNT}, 15\ns_cbranch_scc1 Llast\ns_cmp_eq_u32 s{sCNT}, 12\ns_cbranch_scc1 Lev2\ns_cmp_eq_u32 s{sCNT}, 13\ns_cbranch_scc1 Lev3")
    a("s_waitcnt vmcnt(0)")
    flag_store(88, 9)
    a("s_barrier\ns_branch Lloop")
    a(f"Lev2:\nbuffer_load_dword v{vFL}, v{vGF}, {srd(SWS)}, 0 offen sc1\ns_branch Lloop")
    a(f"Lev3:\ns_waitcnt vmcnt(0)\nv_cmp_ne_u32 vcc, s{sN}, v{vFL}\ns_nop 4\ns_cmp_eq_u64 vcc, 0\ns_cbranch_scc1 Lev3b")
    poll(vGF, vFL, "Lpg")
    a(f"Lev3b:\nbuffer_load_dword v{GA}, v{vGA}, {srd(SWS)}, 0 offen sc1\nbuffer_load_dword v{GBv}, v{vGA}, {srd(SWS)}, 0 offen offset:128 sc1\ns_branch Lloop")
    a(f"Llast:\nv_add_u32 v{vK}, 4096, v{vK}\nv_add_u32 v{vV}, 4096, v{vV}")
    for u in range(4): tile(u, (1 - u) * 2048 if u < 2 else None, (2 - u) * 2048 if u < 3 else None, u == 3)
    stamp(5)
    a("s_mov_b32 s14, 0x7f800000\ns_mov_b32 s15, 0x30800000\ns_mov_b32 s92, 0x5f800000")
    for n, O in enumerate((OA, OB)):
        if n == 1: a("s_nop 3")
        a(f"v_max3_f32 v9, |v{O}|, |v{O+1}|, |v{O+2}|\nv_max3_f32 v9, v9, |v{O+3}|, |v{O+4}|\nv_max3_f32 v9, v9, |v{O+5}|, |v{O+6}|\nv_max_f32 v9, v9, |v{O+7}|")
        a(f"v_cmp_gt_f32 s[{80+6*n}:{81+6*n}], s14, v9" if False else f"v_cmp_gt_f32 vcc, s14, v9\nv_cmp_lt_f32 s[84:85], s15, v{O+8}\nv_cmp_gt_f32 s[86:87], s92, v{O+8}\ns_nop 4")
        a("s_and_b64 vcc, vcc, s[84:85]\ns_and_b64 vcc, vcc, s[86:87]\ns_cmp_lg_u64 vcc, -1\ns_cbranch_scc1 Lslow")
    if FORCE_SLOW: a("s_branch Lslow")
    a("Lfin:")
    a(f"v_rcp_f32 v9, v{OA+8}\nv_rcp_f32 v10, v{OB+8}\ns_waitcnt vmcnt(0)\nv_mul_f32 v9, v9, v{GA}\nv_mul_f32 v10, v10, v{GBv}")
    for n, O in enumerate((OA, OB)):
        for k in range(8): a(f"v_mul_f32 v{O+k}, v{9+n}, v{O+k}")
        for k in range(4): a(f"v_cvt_pk_bf16_f32 v{O+k}, v{O+2*k}, v{O+2*k+1}")
        a(f"buffer_store_dwordx4 {vr(O,4)}, v{vQS}, {srd(SWS)}, s{81+n} offen sc1")
    a("s_waitcnt vmcnt(0)")
    flag_store(89, 9)
    stamp(6)
    prof_out()
    a("s_endpgm")
    NA, NB = 120, 136
    a("Lslow:")
    a(f"v_mov_b32 v{vK}, v{vQS}\nv_mov_b32 v9, 0xff800000\nv_mov_b32 v10, 0xff800000\ns_mov_b32 s{sCNT}, 0")
    a(f"Ls1:\nds_read_b128 {vr(KB,4)}, v{vK}\nv_add_u32 v{vK}, 2048, v{vK}\ns_add_u32 s{sCNT}, s{sCNT}, 1\ns_waitcnt lgkmcnt(0)")
    a(f"{MF} {vr(X,16)}, {vr(KB,4)}, {vr(QA,4)}, 0\n{MF} {vr(Y,16)}, {vr(KB,4)}, {vr(QB,4)}, 0\ns_nop 7\ns_nop 3")
    for n, S in enumerate((X, Y)):
        for k in range(8): a(f"v_max3_f32 v{9+n}, v{9+n}, v{S+2*k}, v{S+2*k+1}")
    a(f"s_cmp_lt_u32 s{sCNT}, 64\ns_cbranch_scc1 Ls1")
    for n, N in enumerate((NA, NB)):
        a(f"v_mov_b32 v11, v{9+n}\ns_nop 1\nv_permlane32_swap_b32 v{9+n}, v11\ns_nop 1\nv_max_f32 v11, v11, v{9+n}\nv_xor_b32 v11, 0x80000000, v11")
        for k in range(16): a(f"v_mov_b32 v{N+k}, v11")
    for k in range(32): a(f"v_mov_b32 v{OA+k}, 0")
    a(f"v_mov_b32 v{vK}, v{vQS}\ns_mov_b32 s{sCNT}, 0")
    a(f"Ls2:\nds_read_b128 {vr(KB,4)}, v{vK}\ns_mov_b64 exec, s[{sMASK}:{sMASK+1}]\nds_read_b128 {vr(VB,4)}, v{vV}\nds_read_b128 {vr(VB+4,4)}, v{vV} offset:512\ns_mov_b64 exec, -1")
    a(f"v_add_u32 v{vK}, 2048, v{vK}\nv_add_u32 v{vV}, 2048, v{vV}\ns_add_u32 s{sCNT}, s{sCNT}, 1\ns_waitcnt lgkmcnt(0)")
    a(f"{MF} {vr(X,16)}, {vr(KB,4)}, {vr(QA,4)}, {vr(NA,16)}\n{MF} {vr(Y,16)}, {vr(KB,4)}, {vr(QB,4)}, {vr(NB,16)}\ns_nop 7\ns_nop 3")
    ex(X, 0, 15); ex(Y, 0, 15)
    a("s_nop 1")
    a(f"{SM} {vr(OA,16)}, {vr(VB,4)}, {vr(X,8)}, v{IDX}\n{SM} {vr(OB,16)}, {vr(VB,4)}, {vr(Y,8)}, v{IDX}")
    a(f"{SM} {vr(OA,16)}, {vr(VB+4,4)}, {vr(X+8,8)}, v{IDX}\n{SM} {vr(OB,16)}, {vr(VB+4,4)}, {vr(Y+8,8)}, v{IDX}")
    a(f"s_cmp_lt_u32 s{sCNT}, 64\ns_cbranch_scc1 Ls2\ns_nop 7\ns_nop 7\ns_branch Lfin")

    a("Lload:")
    vm = VM(a)
    a(f"v_lshrrev_b32 v12, 3, v0\nv_and_b32 v13, 7, v0\nv_lshrrev_b32 v14, 4, v0\nv_xor_b32 v13, v13, v14\nv_lshlrev_b32 v12, 10, v12")
    a(f"s_lshl_b32 s14, s{sR}, 2\ns_add_u32 s14, s14, s{sI}\ns_lshl_b32 s14, s14, 15\nv_add_u32 v12, s14, v12")
    a(f"v_lshl_add_u32 v1, v13, 4, v12\nv_xor_b32 v2, 64, v1\nv_add_u32 v2, 8192, v2\nv_add_u32 v3, 16384, v1\nv_add_u32 v4, 16384, v2")
    a(f"v_lshrrev_b32 v12, 2, v0\ns_lshl_b32 s14, s{sI}, 4\nv_add_u32 v12, s14, v12\nv_and_b32 v13, 3, v0\nv_lshlrev_b32 v13, 4, v13")
    a(f"v_mul_u32_u24 v5, 3072, v12\ns_lshl_b32 s14, s{sC}, 6\nv_add3_u32 v5, v5, v13, s14\nv_add_u32 v6, 1024, v5\nv_add_u32 v7, 2048, v5")
    a(f"v_mul_u32_u24 v8, 2752, v12\ns_mul_i32 s14, s{sC}, 192\nv_add3_u32 v8, v8, v13, s14\nv_add_u32 v9, 64, v8\nv_add_u32 v10, 128, v8")
    a(f"v_lshlrev_b32 v11, 4, v0\ns_lshl_b32 s80, s{sI}, 12\ns_lshl_b32 s81, s{sI}, 10")
    a("s_waitcnt lgkmcnt(0)")
    mk_srd([SX, SWQ, SWS, SW1])
    a(f"s_mov_b32 s15, {EPOCH}\nbuffer_load_dword v15, off, {srd(SWS)}, s15 sc1")
    vm.add("ep")
    def dma(mreg, mimm, v, sr, so, tag, off=0, sc=""):
        if mreg is not None: a(f"s_add_u32 m0, s{mreg}, {mimm}\ns_nop 0")
        a(f"buffer_load_dwordx4 v{v}, {srd(sr)}, s{so} offen {f'offset:{off}' if off else ''} {sc} lds")
        vm.add(tag)
    def stA(s):
        a(f"s_add_u32 s14, s{sROT}, {s}\ns_and_b32 s14, s14, 7\ns_lshl_b32 s82, s14, 7\ns_mul_i32 s83, s14, 196608")
        b = slots[s] * SLOT
        for u in range(4): dma(80, b + u * 1024, 1 + u, SX, 82, f"A{s}")
        for t in range(3): dma(81, b + 16384 + t * 4096, 5 + t, SWQ, 83, f"A{s}")
    def stB(t):
        a(f"s_add_u32 s14, s{sROT}, {t}\ns_and_b32 s14, s14, 7\ns_mul_i32 s83, s14, 176128")
        for i in range(3): dma(81, bbase[t] + i * 4096, 8 + i, SW1, 83, f"B{t}")
    for s in range(5): stA(s)
    stB(0)
    mk_srd([SWO, SW2, SOUT, SB2])
    stamp(0)
    vm.wait("A0")
    nonce(15)
    a("s_barrier")
    nxt = {1: [("A", 5)], 2: [("A", 6)], 3: [("A", 7)], 4: [("B", 1), ("B", 2)], 5: [("B", 3), ("B", 4)], 6: [("B", 5), ("B", 6)], 7: [("B", 7)]}
    for s in range(1, 8):
        vm.wait(f"A{s}")
        a("s_barrier")
        for k, n in nxt[s]: (stA if k == "A" else stB)(n)
    stamp(1)
    a(f"s_lshr_b32 s14, s{sHEAD}, 1\ns_lshl_b32 s14, s14, 11\ns_add_u32 s14, s14, {FQ}\nv_lshrrev_b32 v12, 2, v0\nv_and_b32 v13, 3, v0\nv_lshlrev_b32 v1, 7, v12\nv_lshl_add_u32 v1, v13, 2, v1\nv_add_u32 v1, s14, v1")
    a(f"v_lshlrev_b32 v2, 10, v12\nv_lshl_add_u32 v2, v13, 4, v2\ns_lshl_b32 s14, s{sCB}, 7\nv_add_u32 v2, s14, v2\nv_add_u32 v3, 64, v2")
    a(f"s_lshl_b32 s84, s{sHEAD}, 17\ns_add_u32 s84, s84, {WKV}")
    a(f"s_lshl_b32 s14, s{sHEAD}, 6\ns_lshl_b32 s15, s{sQB}, 3\ns_add_u32 s14, s14, s15\ns_lshl_b32 s15, s{sI}, 1\ns_add_u32 s14, s14, s15\ns_lshl_b32 s88, s14, 10")
    a(f"s_lshl_b32 s89, s{sI}, 13\ns_add_u32 s89, s89, {RING}")
    vm.wait("B4")
    a("s_barrier")
    vm.all()
    a("s_barrier")
    stamp(2)
    poll(1, 12, "Lpq")
    stamp(3)
    def kvdma(mul, base, n, tag):
        a(f"s_mul_i32 s85, s{sI}, {mul}\ns_add_u32 s85, s85, {base}")
        for k in range(n):
            if k % 4 == 0:
                a(f"s_add_u32 m0, s85, {k*1024}\ns_add_u32 s86, s85, s84\ns_add_u32 s86, s86, {k*1024}")
            dma(None, 0, 11, SWS, 86, tag, off=(k % 4) * 1024, sc="sc1")
    dma(89, 6144, 11, SWS, 88, "Q", sc="sc1")
    dma(None, 0, 11, SWS, 88, "Q", off=1024, sc="sc1")
    kvdma(5120, 110592, 5, "KV1")
    kvdma(13312, 57344, 13, "KV2")
    vm.wait("KV1")
    a("s_barrier")
    stamp(4)
    kvdma(14336, 0, 14, "KV3")
    FA, HB, W2F, WOF, OF = 16, 80, 112, 128, 192
    a(f"s_lshl_b32 s90, s{sI}, 14\ns_lshl_b32 s91, s{sI}, 17")
    def w2dma(n):
        sl = (n & 3) * 2048
        if n < 22:
            a(f"s_add_u32 s14, s90, {n*65536}")
            dma(89, sl, 2, SW2, 14, f"W{n}"); dma(89, sl + 1024, 3, SW2, 14, f"W{n}")
        else:
            a(f"s_add_u32 s14, s91, {(n-22)*16384}")
            dma(89, sl, 2, SWO, 14, f"W{n}"); dma(89, sl + 1024, 3, SWO, 14, f"W{n}")
    for n in range(3): w2dma(n)
    a(f"v_lshrrev_b32 v14, 5, v0\nv_bfe_u32 v12, v0, 2, 2\nv_lshl_add_u32 v12, v14, 2, v12\nv_lshlrev_b32 v12, 6, v12\nv_bfe_u32 v13, v0, 4, 1\nv_lshl_add_u32 v12, v13, 5, v12")
    a(f"v_and_b32 v13, 3, v0\nv_lshl_add_u32 v12, v13, 3, v12\nv_add_u32 v4, s89, v12")
    a(f"s_lshl_b32 s14, s{sQB}, 1\ns_lshr_b32 s15, s{sSUB}, 1\ns_add_u32 s14, s14, s15\ns_lshl_b32 s14, s14, 11\ns_and_b32 s15, s{sSUB}, 1\ns_lshl_b32 s15, s15, 3\ns_add_u32 s14, s14, s15\ns_add_u32 s14, s14, {FH}")
    a(f"v_bfe_u32 v12, v0, 1, 4\nv_and_b32 v13, 1, v0\nv_lshlrev_b32 v12, 7, v12\nv_lshl_add_u32 v12, v13, 2, v12\nv_add_u32 v5, s14, v12")
    a(f"s_lshl_b32 s14, s{sQB}, 2\ns_add_u32 s92, s14, s{sSUB}")
    a(f"v_and_b32 v13, 31, v0\ns_lshl_b32 s14, s92, 8\ns_add_u32 s14, s14, {WG}\nv_lshl_add_u32 v6, v13, 2, s14")
    a(f"s_lshl_b32 s14, s{sCB}, 7\nv_lshl_add_u32 v7, v13, 1, s14")
    a(f"s_lshl_b32 s14, s92, 5\ns_lshl_b32 s15, s{sI}, 3\ns_add_u32 s14, s14, s15\ns_lshl_b32 s14, s14, 6\ns_add_u32 s14, s14, {FO}\nv_and_b32 v12, 7, v0\nv_lshl_add_u32 v8, v12, 6, s14")
    a(f"s_mul_i32 s93, s92, {2*86*1024}\ns_lshl_b32 s14, s{sI}, 10\ns_add_u32 s93, s93, s14\ns_add_u32 s93, s93, {WH}\nv_add_u32 v9, {86*1024}, v11")
    a(f"s_lshr_b32 s14, s{sI}, 1\ns_lshl_b32 s14, s14, 5\ns_lshl_b32 s15, s92, 6\ns_add_u32 s14, s14, s15\nv_add_u32 v12, s14, v13\nv_lshlrev_b32 v12, 10, v12\nv_lshl_add_u32 v12, v14, 4, v12")
    a(f"s_lshl_b32 s14, s{sCB}, 7\ns_and_b32 s15, s{sI}, 1\ns_lshl_b32 s15, s15, 6\ns_add_u32 s14, s14, s15\nv_add_u32 v10, s14, v12")
    for k in range(12): a(f"v_mov_b32 v{OF+k}, 0")
    a(f"v_mov_b32 v12, 0x3f80\nv_cmp_gt_u32 vcc, 32, v0\ns_nop 1\nv_cndmask_b32 v{OF+8}, 0, v12, vcc")
    vm.wait("KV3")
    a("s_barrier")
    stamp(5)
    poll(5, 12, "Lph"); vm.q = []
    stamp(6)
    a(f"buffer_load_dword v13, v6, {srd(SWS)}, 0 offen sc1\nbuffer_load_dword v14, v6, {srd(SWS)}, 0 offen offset:128 sc1")
    a(f"buffer_load_ushort v{OF}, v7, {srd(SB2)}, 0 offen\nbuffer_load_ushort v{OF+4}, v7, {srd(SB2)}, 0 offen offset:64")
    vm.add("G", 4)
    def hload(n):
        b = HB + 8 * (n & 3)
        a(f"s_add_u32 s14, s93, {n*4096}\nbuffer_load_dwordx4 {vr(b,4)}, v11, {srd(SWS)}, s14 offen sc1\nbuffer_load_dwordx4 {vr(b+4,4)}, v9, {srd(SWS)}, s14 offen sc1")
        vm.add(f"H{n}", 2)
    for n in range(3): hload(n)
    def trreads(n, dst):
        sl = (n & 3) * 2048
        for ct in range(2):
            for u in range(2):
                a(f"ds_read_b64_tr_b16 {vr(dst+4*ct+2*u,2)}, v4 offset:{sl+ct*1024+u*512}")
    def mf4(wb, hb, first):
        for ct in range(2):
            for rt in range(2):
                d = vr(FA + 16 * (2 * rt + ct), 16)
                a(f"{MF} {d}, {vr(wb+4*ct,4)}, {vr(hb+4*rt,4)}, {'0' if first else d}")
    for n in range(30):
        if n + 3 < 22: hload(n + 3)
        if n + 3 < 30: w2dma(n + 3)
        vm.wait(f"H{n}"); vm.wait(f"W{n}")
        if n < 22:
            wb = W2F + 8 * (n & 1)
            if n == 21: a(f"s_cmp_ge_u32 s{sI}, 2\ns_cbranch_scc1 Lb2")
            trreads(n, wb)
            a("s_waitcnt lgkmcnt(0)")
            mf4(wb, HB + 8 * (n & 3), n == 0)
            if n == 21:
                a(f"s_branch Lb2x\nLb2:\ns_cmp_eq_u32 s{sI}, 3\ns_cbranch_scc1 Lb2x")
                for ct in range(2):
                    for rt in range(2):
                        d = vr(FA + 16 * (2 * rt + ct), 16)
                        a(f"{MF} {d}, {vr(OF+4*ct,4)}, {vr(OF+8,4)}, {d}")
                a("Lb2x:")
        else:
            trreads(n, WOF + 8 * (n - 22))
            a("s_waitcnt lgkmcnt(0)")
    a("v_sub_f32 v13, 1.0, v13\nv_sub_f32 v14, 1.0, v14")
    for k in range(64): a(f"v_mul_f32 v{FA+k}, v{13 + (k >> 5)}, v{FA+k}")
    a(f"s_lshl_b32 s14, s92, 6\ns_lshl_b32 s15, s{sI}, 3\ns_add_u32 s14, s14, s15\ns_lshl_b32 s94, s14, 10\ns_add_u32 s94, s94, {WO_}")
    a(f"s_add_u32 s95, s94, 4096\nv_add_u32 v9, 32768, v11")
    stamp(7)
    a("s_barrier")
    stamp(8)
    poll(8, 12, "Lpo"); vm.q = []
    stamp(9)
    for hh in range(8):
        for rt in range(2):
            a(f"buffer_load_dwordx4 {vr(OF+8*hh+4*rt,4)}, v{11 if rt == 0 else 9}, {srd(SWS)}, s{94 + (hh >> 2)} offen offset:{(hh & 3)*1024} sc1")
        vm.add(f"O{hh}", 2)
    a(f"s_cmp_lg_u32 s2, 0\ns_cbranch_scc1 Lnoep\ns_cmp_lg_u32 s{sI}, 0\ns_cbranch_scc1 Lnoep\ns_mov_b32 s14, {EPOCH}")
    flag_store(14, 12)
    a("s_waitcnt vmcnt(0)\nLnoep:")
    a(f"s_lshl_b32 s14, s{sI}, 12\nv_add_u32 v1, s14, v11\ns_lshl_b32 s14, s{sI}, 14\nv_add_u32 v2, s14, v11")
    for hh in range(8):
        vm.wait(f"O{hh}")
        mf4(WOF + 8 * hh, OF + 8 * hh, False)
    stamp(10)
    a("s_nop 7")
    for T in (0, 2, 1, 3):
        for q in range(4):
            a(f"ds_write_b128 v1, {vr(FA+16*T+4*q,4)} offset:{T*16384+q*1024}")
    a("s_waitcnt lgkmcnt(0)\ns_barrier")
    for s in range(4):
        for q in range(4):
            a(f"ds_read_b128 {vr(FA+16*s+4*q,4)}, v2 offset:{s*4096+q*1024}")
    a("s_waitcnt lgkmcnt(8)")
    for k in range(8): a(f"v_pk_add_f32 {vr(FA+2*k,2)}, {vr(FA+2*k,2)}, {vr(FA+16+2*k,2)}")
    a("s_waitcnt lgkmcnt(0)")
    for k in range(8): a(f"v_pk_add_f32 {vr(FA+32+2*k,2)}, {vr(FA+32+2*k,2)}, {vr(FA+48+2*k,2)}")
    for k in range(8): a(f"v_pk_add_f32 {vr(FA+2*k,2)}, {vr(FA+2*k,2)}, {vr(FA+32+2*k,2)}")
    for k in range(8): a(f"v_cvt_pk_bf16_f32 v{FA+k}, v{FA+2*k}, v{FA+2*k+1}")
    a("s_nop 1")
    for k in (0, 1, 4, 5): a(f"v_permlane32_swap_b32 v{FA+k}, v{FA+k+2}")
    a("s_nop 0")
    a(f"buffer_store_dwordx4 {vr(FA,4)}, v10, {srd(SOUT)}, 0 offen\nbuffer_store_dwordx4 {vr(FA+4,4)}, v10, {srd(SOUT)}, 0 offen offset:32")
    stamp(11)
    prof_out()
    a("Lend:\ns_endpgm")
    a(f""".section .rodata,"a"
.p2align 6
.amdhsa_kernel {KN}
.amdhsa_next_free_vgpr 256
.amdhsa_next_free_sgpr 102
.amdhsa_accum_offset 256
.amdhsa_group_segment_fixed_size 0
.amdhsa_kernarg_size 96
.amdhsa_user_sgpr_count 2
.amdhsa_user_sgpr_kernarg_segment_ptr 1
.amdhsa_system_sgpr_workgroup_id_x 1
.end_amdhsa_kernel""")
    open(path, "w").write(a.text())


if __name__ == "__main__":
    kw = {}
    for x in sys.argv[2:]:
        k, v = x.split("=")
        kw[k] = int(v)
    gen(sys.argv[1], **kw)
```

```python
import sys, os
sys.path.insert(0, os.path.dirname(os.path.abspath(__file__)))
from asmlib import Asm
KN = "gated_mix__softmax_full_mha__dense_activation_squared_relu__prompt_kernel"

WQ, WKV, WH, WO_, WG = 0, 0x200000, 0x600000, 0xC00000, 0xE00000
FQ, FH, FO, EPOCH, WPROF = 0xE10000, 0xE20000, 0xE30000, 0xE50000, 0xF00000
SLOT = 28672
RING = 131072
GLDS = 155648
SPIN = 400000
sW, sX, sJ, sR, sC, sROT, sHEAD, sQB, sSUB, sCB, sN = 3, 4, 5, 6, 7, 8, 9, 10, 11, 12, 13
SX, SWQ, SW1, SWS, SWO, SW2, SOUT, SB1, SB2, SG = 40, 44, 48, 52, 56, 60, 64, 68, 72, 76
sMASK, sCNT, sI = 96, 98, 99


def srd(b): return f"s[{b}:{b+3}]"
def vr(b, n): return f"v[{b}:{b+n-1}]" if n > 1 else f"v{b}"
MF = "v_mfma_f32_32x32x16_bf16"
SM = "v_smfmac_f32_32x32x32_bf16"


class VM:
    def __init__(s, a): s.a = a; s.q = []
    def add(s, tag, n=1): s.q += [tag] * n
    def wait(s, tag):
        idx = [i for i, t in enumerate(s.q) if t == tag]
        if not idx: return
        n = len(s.q) - 1 - idx[-1]
        assert n < 64
        s.a(f"s_waitcnt vmcnt({n})")
        s.q = s.q[idx[-1] + 1:]
    def all(s): s.a("s_waitcnt vmcnt(0)"); s.q = []


class LG:
    def __init__(s, a): s.a = a; s.q = []
    def add(s, tag): s.q.append(tag)
    def wait(s, *tags):
        idx = [i for i, t in enumerate(s.q) if t in tags]
        if not idx: return
        n = min(len(s.q) - 1 - idx[-1], 15)
        s.a(f"s_waitcnt lgkmcnt({n})")
        s.q = s.q[len(s.q) - n:] if n else []
    def all(s): s.a("s_waitcnt lgkmcnt(0)"); s.q = []


def gen(path, PROF=0, FQPOS=4, PRIO=0, FORCE_SLOW=0, SPIN=SPIN, LOOK=3):
    a = Asm()
    nst = [0]
    def stamp(i):
        if PROF == 1: a(f"s_memrealtime s[{16+2*i}:{17+2*i}]")
    def cstamp(i):
        if PROF == 1: a(f"s_memtime s[{16+2*i}:{17+2*i}]")
    def st3(i):
        if PROF == 3: a(f"s_memtime s[{16+2*i}:{17+2*i}]")
    def prof_out():
        if not PROF: return
        a("s_waitcnt lgkmcnt(0)")
        a(f"s_lshl_b32 s14, s2, 3\ns_add_u32 s14, s14, s{sW}\ns_lshl_b32 s14, s14, 6\ns_add_u32 s14, s14, {WPROF}")
        a("s_mov_b64 exec, 1")
        for i in range(12):
            a(f"v_mov_b32 v1, s{16+2*i}\nbuffer_store_dword v1, off, {srd(SWS)}, s14 offset:{4*i}")
        a("s_mov_b64 exec, -1")
    lab = [0]
    def poll(vaddr, vtmp, name):
        va = vaddr if isinstance(vaddr, list) else [vaddr]
        a(f"s_mov_b32 s15, {SPIN}")
        a(f"{name}:")
        for k, v in enumerate(va): a(f"buffer_load_dword v{vtmp+k}, v{v}, {srd(SWS)}, 0 offen sc1")
        a("s_sub_u32 s15, s15, 1\ns_cmp_eq_u32 s15, 0")
        a(f"s_cbranch_scc1 {name}_x")
        a("s_waitcnt vmcnt(0)")
        for k in range(1, len(va)): a(f"v_xor_b32 v{vtmp+k}, s{sN}, v{vtmp+k}")
        if len(va) > 1:
            a(f"v_xor_b32 v{vtmp}, s{sN}, v{vtmp}\nv_or3_b32 v{vtmp}, v{vtmp}, v{vtmp+1}, v{vtmp+len(va)-1}\nv_cmp_ne_u32 vcc, 0, v{vtmp}")
        else: a(f"v_cmp_ne_u32 vcc, s{sN}, v{vtmp}")
        a(f"s_nop 4\ns_cmp_lg_u64 vcc, 0\ns_cbranch_scc1 {name}")
        a(f"{name}_x:\ns_waitcnt vmcnt(0)")
    def flag_store(soff, vtmp):
        a(f"v_mov_b32 v{vtmp}, s{sN}\ns_mov_b64 exec, 1\nbuffer_store_dword v{vtmp}, off, {srd(SWS)}, s{soff} sc1\ns_mov_b64 exec, -1")

    a("; @launch grid=(256,1,1) block=(512,1,1) lds=163840")
    a('.amdgcn_target "amdgcn-amd-amdhsa--gfx950"')
    a(f".text\n.globl {KN}\n.p2align 8\n.type {KN},@function\n{KN}:")
    a("s_cmp_ge_u32 s2, 256\ns_cbranch_scc1 Lend")
    a("s_load_dwordx16 s[16:31], s[0:1], 0\ns_load_dwordx8 s[32:39], s[0:1], 64")
    a(f"v_lshrrev_b32 v1, 6, v0\nv_and_b32 v0, 63, v0\ns_and_b32 s{sX}, s2, 7\nv_readfirstlane_b32 s{sW}, v1\ns_lshr_b32 s{sJ}, s2, 3")
    a(f"s_and_b32 s14, s{sX}, 1\ns_lshl_b32 s14, s14, 3\ns_and_b32 s15, s{sJ}, 7\ns_add_u32 s{sR}, s14, s15")
    a(f"s_lshr_b32 s14, s{sX}, 1\ns_lshl_b32 s14, s14, 2\ns_lshr_b32 s80, s{sJ}, 3\ns_add_u32 s{sC}, s14, s80")
    a(f"s_lshl_b32 s80, s80, 1\ns_add_u32 s{sROT}, s15, s80")
    a(f"s_and_b32 s14, s{sJ}, 3\ns_lshl_b32 s15, s{sX}, 2\ns_add_u32 s{sHEAD}, s15, s14\ns_lshr_b32 s{sQB}, s{sJ}, 2")
    a(f"s_and_b32 s{sSUB}, s{sX}, 3\ns_and_b32 s15, s{sX}, 4\ns_add_u32 s{sCB}, s15, s14")
    a(f"s_and_b32 s{sI}, s{sW}, 3")
    a(f"s_mov_b32 s{sMASK}, 0xffff\ns_mov_b32 s{sMASK+1}, 0xffff")
    sizes = {SX: (16, 2097152), SWQ: (18, 1572864), SWO: (20, 524288), SW1: (24, 1409024), SB1: (26, 2752),
             SW2: (28, 1409024), SB2: (30, 1024), SG: (32, 1024), SOUT: (34, 2097152), SWS: (38, 268435456)}
    for b, (p, sz) in sizes.items():
        a(f"s_mov_b32 s{b+2}, {sz}\ns_mov_b32 s{b+3}, 0x20000")
    a(f"s_cmp_eq_u32 s{sC}, 15\ns_cselect_b32 s{SW1+2}, 0, s{SW1+2}")
    a(f"s_cmp_ge_u32 s{sW}, 4\ns_cbranch_scc1 Lload")

    def mk_srd(lst):
        for b in lst:
            p = sizes[b][0]
            a(f"s_mov_b32 s{b}, s{p}\ns_mov_b32 s{b+1}, s{p+1}")
    def nonce(v):
        a(f"v_readfirstlane_b32 s14, v{v}\ns_mul_i32 s{sN}, s14, 0x9E3779B1\ns_add_u32 s{sN}, s{sN}, 0x7F4A7C15\ns_or_b32 s{sN}, s{sN}, 0x80000000")
        a(f"s_xor_b32 s15, s{sN}, 1\ns_cmp_eq_u32 s{sN}, s14\ns_cselect_b32 s{sN}, s15, s{sN}")

    XF, ACC, WF, BI = 16, 144, 192, 240
    vL31, vH, vXA, vWL, vWA, vT, vQS, vST = 1, 2, 3, 7, 8, 9, 12, 13
    a(f"v_and_b32 v{vL31}, 31, v0\nv_lshrrev_b32 v{vH}, 5, v0")
    a(f"v_bfe_u32 v9, v0, 1, 3\nv_xor_b32 v9, v9, v{vH}\nv_lshlrev_b32 v9, 4, v9\nv_lshl_add_u32 v9, v{vL31}, 7, v9")
    a(f"s_lshl_b32 s14, s{sI}, 12\nv_add_u32 v{vXA}, s14, v9")
    for k in range(1, 4): a(f"v_xor_b32 v{vXA+k}, {32*k}, v{vXA}")
    a(f"v_bfe_u32 v9, v0, 2, 2\nv_lshl_add_u32 v9, v{vH}, 3, v9\nv_mul_u32_u24 v9, 192, v9\nv_bfe_u32 v10, v0, 4, 1\nv_lshl_add_u32 v9, v10, 5, v9")
    a(f"v_and_b32 v10, 3, v0\nv_lshl_add_u32 v{vWL}, v10, 3, v9")
    a(f"v_lshlrev_b32 v{vQS}, 4, v0")
    a(f"v_and_b32 v9, 0x33, v0\nv_and_b32 v10, 4, v0\nv_lshl_add_u32 v9, v10, 1, v9\nv_bfe_u32 v10, v0, 3, 1\nv_lshl_add_u32 v9, v10, 2, v9\nv_lshlrev_b32 v9, 4, v9")
    a(f"v_and_b32 v11, 15, v0\nv_lshl_add_u32 v11, v{vH}, 4, v11\nv_lshlrev_b32 v11, 4, v11\nv_bfe_u32 v10, v0, 4, 1\nv_lshl_add_u32 v11, v10, 17, v11\nv_add_u32 v10, 1024, v11")
    a(f"s_lshl_b32 s14, s{sR}, 2\ns_add_u32 s80, s14, s{sI}")
    for i in range(3):
        o1, o2, sc = [81, 83, 92][i], [82, 84, 93][i], [90, 94, 100][i]
        a(f"s_mul_i32 s14, s{sC}, 3\ns_add_u32 s14, s14, {i}\ns_lshr_b32 s15, s14, 4\ns_and_b32 s14, s14, 15\ns_lshl_b32 s14, s14, 7\ns_add_u32 s14, s14, s80")
        a(f"s_lshl_b32 s{o1}, s14, 11\ns_add_u32 s{o1}, s{o1}, {WKV}\ns_lshl_b32 s14, s14, 10")
        a(f"s_movk_i32 s{o2}, 512\ns_cmp_eq_u32 s15, 1\ns_cselect_b32 s{o2}, 131072, s{o2}\ns_cselect_b64 vcc, -1, 0\nv_cndmask_b32 v{vST+i}, v10, v9, vcc")
        a(f"s_cmp_eq_u32 s15, 0\ns_cselect_b32 s{o2}, 65536, s{o2}\ns_cselect_b32 s{o1}, s14, s{o1}\ns_cselect_b32 s{sc}, 0x3eb8aa3b, 1.0\ns_cselect_b64 vcc, -1, 0\nv_cndmask_b32 v{vST+i}, v{vST+i}, v{vQS}, vcc")
        a(f"s_add_u32 s{o2}, s{o2}, s{o1}\ns_mov_b32 s{sc+1}, s{sc}")
    for k in range(16): a(f"v_mov_b32 v{BI+k}, 0")
    a(f"v_mov_b32 v9, 0x3f80\nv_cmp_gt_u32 vcc, 32, v0\ns_mul_i32 s14, s{sC}, 192\nv_lshl_add_u32 v10, v{vL31}, 1, s14\nv_cndmask_b32 v{BI+12}, 0, v9, vcc")
    a("s_waitcnt lgkmcnt(0)")
    mk_srd([SWS, SB1])
    a(f"s_mov_b32 s15, {EPOCH}\nbuffer_load_dword v11, off, {srd(SWS)}, s15 sc1")
    for i in range(3): a(f"buffer_load_ushort v{BI+4*i}, v10, {srd(SB1)}, 0 offen offset:{64*i}")
    a(f"s_mul_i32 s85, s80, 86\ns_mul_i32 s14, s{sC}, 6\ns_add_u32 s85, s85, s14\ns_lshl_b32 s85, s85, 10\ns_add_u32 s85, s85, {WH}\ns_add_u32 s86, s85, 4096")
    a(f"s_lshl_b32 s14, s{sC}, 2\ns_add_u32 s14, s14, s{sI}\ns_lshl_b32 s14, s14, 5\ns_add_u32 s14, s14, s{sR}\ns_lshl_b32 s14, s14, 2\ns_add_u32 s87, s14, {FQ}")
    a(f"s_lshl_b32 s14, s80, 5\ns_add_u32 s14, s14, s{sC}\ns_lshl_b32 s14, s14, 2\ns_add_u32 s88, s14, {FH}")
    a("s_waitcnt vmcnt(0)")
    nonce(11)
    stamp(0)

    lg = LG(a)
    slots = [0, 1, 2, 3, 4, 0, 1, 2]
    segs = [0, 0, 57344, 57344, 114688, 0, 0, 57344]
    bbase = [143360, 86016, 98304, 114688, 126976, 0, 12288, 28672]
    halves = [("A", s, hf) for s in range(8) for hf in range(2)] + [("B", t, hf) for t in range(8) for hf in range(2)]
    seg = [0]
    PB = {("A", 1): 0, ("A", 3): 2, ("A", 4): 4, ("A", 7): 6, ("B", 2): 8, ("B", 6): 10}
    def prep(h):
        k, s, hf = halves[h]
        if hf: return
        if k == "A":
            if segs[s] != seg[0]:
                for q in range(4): a(f"v_add_u32 v{vXA+q}, {(segs[s]-seg[0]) & 0xffffffff:#x}, v{vXA+q}")
                seg[0] = segs[s]
            a(f"v_add_u32 v{vWA}, {slots[s]*SLOT+16384}, v{vWL}")
        else:
            a(f"v_add_u32 v{vWA}, {bbase[s]}, v{vWL}")
        if k == "A" or s % 2 == 0:
            if PROF == 2 and (k, s) in PB: a(f"s_memtime s[{16+2*PB[(k,s)]}:{17+2*PB[(k,s)]}]")
            a("s_barrier")
            if PROF == 2 and (k, s) in PB: a(f"s_memtime s[{18+2*PB[(k,s)]}:{19+2*PB[(k,s)]}]")
    def reads(h):
        k, s, hf = halves[h]
        L = []
        for ksl in range(2):
            ks = 2 * hf + ksl
            if k == "A": L.append((f"ds_read_b128 {vr(XF+16*s+4*ks,4)}, v{vXA+ks} offset:{slots[s]*SLOT-segs[s]}", (h, ksl, "x")))
            for t in range(3):
                d = WF + 24 * hf + 12 * ksl + 4 * t
                for u in range(2):
                    L.append((f"ds_read_b64_tr_b16 {vr(d+2*u,2)}, v{vWA} offset:{t*64+ks*3072+u*768}", (h, ksl, t)))
        return L
    def emit_reads(L, n):
        for _ in range(min(n, len(L))):
            ins, tag = L.pop(0); a(ins); lg.add(tag)
    def half(h, pat='TTT'):
        k, s, hf = halves[h]
        L = []
        if h + 1 < len(halves):
            prep(h + 1); L = reads(h + 1)
        for j in range(6):
            ksl, t = j // 3, j % 3
            ks = 2 * hf + ksl
            lg.wait((h, ksl, "x"), (h, ksl, t))
            x = vr(XF + 16 * s + 4 * ks, 4); w = vr(WF + 24 * hf + 12 * ksl + 4 * t, 4); d = vr(ACC + 16 * t, 16)
            c = "0" if (h == 0 and ksl == 0) else d
            a(f"{MF} {d}, {x}, {w}, {c}" if (k == "A" and pat[t] == "N") else f"{MF} {d}, {w}, {x}, {c}")
            emit_reads(L, 3)
        assert not L
    prep(0)
    stamp(1)
    emit_reads(reads(0), 99)
    a(f"s_cmp_eq_u32 s{sC}, 10\ns_cbranch_scc1 LA_TTN\ns_cmp_gt_u32 s{sC}, 10\ns_cbranch_scc1 LA_NNN")
    q0, seg0 = list(lg.q), seg[0]
    for pat in ("TTT", "TTN", "NNN"):
        lg.q = list(q0); seg[0] = seg0
        a(f"LA_{pat}:")
        for h in range(16): half(h, pat)
        stamp(2); st3(0)
        a("s_nop 7")
        if pat[0] == "N": a("s_nop 1")
        for i in range(3):
            b = ACC + 16 * i
            o1, o2, sc = [81, 83, 92][i], [82, 84, 93][i], [90, 94, 100][i]
            if pat[i] == "T":
                for k in range(8): a(f"v_pk_mul_f32 {vr(b+2*k,2)}, {vr(b+2*k,2)}, s[{sc}:{sc+1}]")
            for k in range(8): a(f"v_cvt_pk_bf16_f32 v{b+k}, v{b+2*k}, v{b+2*k+1}")
            a(f"buffer_store_dwordx4 {vr(b,4)}, v{vST+i}, {srd(SWS)}, s{o1} offen sc1\nbuffer_store_dwordx4 {vr(b+4,4)}, v{vST+i}, {srd(SWS)}, s{o2} offen sc1")
            st3(1 + i)
        if pat != "NNN": a("s_branch LB")
    a(f"s_cmp_eq_u32 s{sC}, 15\ns_cbranch_scc1 Lgate")
    a("LB:")
    for i in range(3): a(f"{MF} {vr(ACC+16*i,16)}, {vr(BI+4*i,4)}, {vr(BI+12,4)}, 0")
    for h in range(16, 32):
        if FQPOS == h - 16:
            st3(7); a("s_waitcnt vmcnt(0)"); st3(8); flag_store(87, 9); stamp(11)
        half(h)
        if h - 16 < 3: st3(4 + h - 16)
    stamp(3); st3(9)
    a("s_nop 7")
    for i in range(3):
        b = ACC + 16 * i
        if i == 1: a(f"s_cmp_eq_u32 s{sC}, 14\ns_cbranch_scc1 Latt")
        for k in range(16): a(f"v_max_f32 v{b+k}, 0, v{b+k}")
        for k in range(8): a(f"v_pk_mul_f32 {vr(b+2*k,2)}, {vr(b+2*k,2)}, {vr(b+2*k,2)}")
        for k in range(8): a(f"v_cvt_pk_bf16_f32 v{b+k}, v{b+2*k}, v{b+2*k+1}")
        for m in range(2):
            o = (2 * i + m) * 1024
            a(f"buffer_store_dwordx4 {vr(b+4*m,4)}, v{vQS}, {srd(SWS)}, s{85 if o < 4096 else 86} offen offset:{o % 4096} sc1")
    a("s_branch Latt")
    a("Lgate:\ns_waitcnt lgkmcnt(0)")
    a(f"v_lshlrev_b32 v11, 4, v{vH}\nv_add_u32 v11, {GLDS}, v11")
    def gread(s_):
        a(f"s_add_u32 s14, s{sROT}, {s_}\ns_and_b32 s14, s14, 7\ns_lshl_b32 s14, s14, 7\nv_add_u32 v9, s14, v11")
        for ks in range(4): a(f"ds_read_b128 {vr(WF+16*(s_&3)+4*ks,4)}, v9 offset:{ks*32}")
    for s_ in range(3): gread(s_)
    a("s_waitcnt vmcnt(0)")
    flag_store(87, 10); stamp(11)
    a("s_barrier\ns_barrier\ns_barrier")
    for s_ in range(8):
        if s_ + 3 < 8: gread(s_ + 3)
        a(f"s_waitcnt lgkmcnt({4*min(3, 7-s_)})")
        for ks in range(4):
            d = vr(ACC + 16 * (ks & 1), 16)
            a(f"{MF} {d}, {vr(WF+16*(s_&3)+4*ks,4)}, {vr(XF+16*s_+4*ks,4)}, {'0' if s_ == 0 and ks < 2 else d}")
    a(f"s_nop 7\ns_nop 7\nv_add_f32 v{ACC}, v{ACC}, v{ACC+16}")
    a(f"v_mul_f32 v9, 0xbfb8aa3b, v{ACC}\nv_exp_f32 v9, v9\ns_lshl_b32 s14, s80, 7\ns_add_u32 s14, s14, {WG}\nv_add_f32 v9, 1.0, v9\nv_rcp_f32 v9, v9\nv_lshlrev_b32 v10, 2, v{vL31}\ns_nop 0")
    a(f"buffer_store_dword v9, v10, {srd(SWS)}, s14 offen sc1")

    X, Y, OA, OB, QA, QB, KB, VB, IDX, vK, vV, vGF, vGA, vFL, GA, GBv = 16, 32, 48, 64, 80, 84, 88, 96, 112, 113, 114, 115, 116, 117, 118, 119
    a("Latt:")
    st3(10)
    for k in range(32): a(f"v_mov_b32 v{OA+k}, 0")
    a(f"v_and_b32 v9, 27, v0\nv_cmp_eq_u32 vcc, 16, v9\nv_mov_b32 v10, 0x3f803f80\nv_mov_b32 v{IDX}, 0xdddddddd\nv_add_u32 v{vK}, {58*2048}, v{vQS}")
    a(f"v_cndmask_b32 v{VB}, 0, v10, vcc")
    for k in range(1, 16): a(f"v_mov_b32 v{VB+k}, v{VB}")
    a(f"v_and_b32 v9, 15, v0\nv_lshl_add_u32 v9, v{vH}, 4, v9\nv_lshlrev_b32 v9, 4, v9\nv_add_u32 v{vV}, {58*2048+1024}, v9")
    a(f"s_lshl_b32 s14, s{sI}, 13\ns_add_u32 s14, s14, {RING+6144}\nv_add_u32 v9, s14, v{vQS}")
    a(f"s_lshl_b32 s14, s{sQB}, 2\ns_add_u32 s80, s14, s{sI}\ns_lshl_b32 s14, s80, 8\ns_add_u32 s15, s14, {FH+60}\ns_add_u32 s14, s14, {WG}\nv_lshl_add_u32 v{vGA}, v{vL31}, 2, s14")
    a(f"v_and_b32 v10, 1, v0\nv_lshl_add_u32 v{vGF}, v10, 7, s15")
    a(f"s_lshl_b32 s14, s80, 2\ns_lshr_b32 s15, s{sHEAD}, 3\ns_add_u32 s14, s14, s15\ns_lshl_b32 s14, s14, 5\ns_and_b32 s15, s{sHEAD}, 7\ns_add_u32 s14, s14, s15\ns_lshl_b32 s14, s14, 2\ns_add_u32 s89, s14, {FO}")
    a(f"s_lshl_b32 s14, s80, 6\ns_add_u32 s14, s14, s{sHEAD}\ns_lshl_b32 s81, s14, 10\ns_add_u32 s81, s81, {WO_}\ns_add_u32 s82, s81, 32768")
    a(f"s_mov_b32 s{sCNT}, 0")
    a("s_barrier")
    stamp(4); cstamp(7); st3(11)
    if PRIO: a(f"s_setprio {PRIO}")
    a(f"ds_read_b128 {vr(QA,4)}, v9\nds_read_b128 {vr(KB,4)}, v{vK} offset:{5*2048}\nds_read_b128 {vr(QB,4)}, v9 offset:1024\nds_read_b128 {vr(KB+4,4)}, v{vK} offset:{4*2048}")
    a(f"s_mov_b64 exec, s[{sMASK}:{sMASK+1}]\nds_read_b128 {vr(VB,4)}, v{vV} offset:{5*2048}\nds_read_b128 {vr(VB+4,4)}, v{vV} offset:{5*2048+512}\ns_mov_b64 exec, -1")
    a(f"s_waitcnt lgkmcnt(4)\n{MF} {vr(X,16)}, {vr(KB,4)}, {vr(QA,4)}, 0\ns_waitcnt lgkmcnt(2)\ns_nop 7\ns_nop 3")
    def ex(b, lo, hi):
        for k in range(lo, hi + 1): a(f"v_exp_f32 v{b+k}, v{b+k}")
    ex(X, 0, 1)
    def tile(u, koff, voff, last):
        kc, kn = KB + 4 * (u & 1), KB + 4 * ((u + 1) & 1)
        vc, vn = VB + 8 * (u & 1), VB + 8 * ((u + 1) & 1)
        ex(X, 2, 4)
        a(f"{MF} {vr(Y,16)}, {vr(kc,4)}, {vr(QB,4)}, 0")
        a("s_waitcnt lgkmcnt(0)")
        if koff is not None: a(f"ds_read_b128 {vr(kc,4)}, v{vK} offset:{koff}")
        ex(X, 5, 9)
        a(f"{SM} {vr(OA,16)}, {vr(vc,4)}, {vr(X,8)}, v{IDX}")
        if voff is not None:
            a(f"s_mov_b64 exec, s[{sMASK}:{sMASK+1}]\nds_read_b128 {vr(vn,4)}, v{vV} offset:{voff}\nds_read_b128 {vr(vn+4,4)}, v{vV} offset:{voff+512}\ns_mov_b64 exec, -1")
        ex(X, 10, 15); ex(Y, 0, 1)
        a(f"{SM} {vr(OA,16)}, {vr(vc+4,4)}, {vr(X+8,8)}, v{IDX}")
        ex(Y, 2, 4)
        if not last: a(f"{MF} {vr(X,16)}, {vr(kn,4)}, {vr(QA,4)}, 0")
        ex(Y, 5, 9)
        a(f"{SM} {vr(OB,16)}, {vr(vc,4)}, {vr(Y,8)}, v{IDX}")
        ex(Y, 10, 15)
        if not last: ex(X, 0, 1)
        else: a("s_nop 1")
        a(f"{SM} {vr(OB,16)}, {vr(vc+4,4)}, {vr(Y+8,8)}, v{IDX}")
    a("Lloop:")
    for u in range(4): tile(u, (3 - u) * 2048, (4 - u) * 2048, False)
    a(f"s_add_u32 s{sCNT}, s{sCNT}, 1\nv_add_u32 v{vK}, 0xffffe000, v{vK}\nv_add_u32 v{vV}, 0xffffe000, v{vV}")
    a(f"s_bitcmp1_b32 {(1<<1)|(1<<3)|(1<<12)|(1<<13)|(1<<15)}, s{sCNT}\ns_cbranch_scc0 Lloop")
    a(f"s_cmp_eq_u32 s{sCNT}, 15\ns_cbranch_scc1 Llast\ns_cmp_eq_u32 s{sCNT}, 12\ns_cbranch_scc1 Lev2\ns_cmp_eq_u32 s{sCNT}, 13\ns_cbranch_scc1 Lev3\ns_cmp_eq_u32 s{sCNT}, 3\ns_cbranch_scc1 Lev1")
    a("s_waitcnt vmcnt(0)")
    flag_store(88, 9)
    cstamp(9)
    a("Lev1:\ns_barrier")
    cstamp(10)
    a("s_branch Lloop")
    a(f"Lev2:\nbuffer_load_dword v{vFL}, v{vGF}, {srd(SWS)}, 0 offen sc1\ns_branch Lloop")
    a(f"Lev3:\ns_waitcnt vmcnt(0)\nv_cmp_ne_u32 vcc, s{sN}, v{vFL}\ns_nop 4\ns_cmp_eq_u64 vcc, 0\ns_cbranch_scc1 Lev3b")
    poll(vGF, vFL, "Lpg")
    a(f"Lev3b:\nbuffer_load_dword v{GA}, v{vGA}, {srd(SWS)}, 0 offen sc1\nbuffer_load_dword v{GBv}, v{vGA}, {srd(SWS)}, 0 offen offset:128 sc1\ns_branch Lloop")
    a(f"Llast:\nv_add_u32 v{vK}, 4096, v{vK}\nv_add_u32 v{vV}, 4096, v{vV}")
    for u in range(4): tile(u, (1 - u) * 2048 if u < 2 else None, (2 - u) * 2048 if u < 3 else None, u == 3)
    stamp(5); cstamp(8)
    a("s_mov_b32 s14, 0x7f800000\ns_mov_b32 s15, 0x30800000\ns_mov_b32 s92, 0x5f800000")
    for n, O in enumerate((OA, OB)):
        if n == 1: a("s_nop 3")
        a(f"v_max3_f32 v9, |v{O}|, |v{O+1}|, |v{O+2}|\nv_max3_f32 v9, v9, |v{O+3}|, |v{O+4}|\nv_max3_f32 v9, v9, |v{O+5}|, |v{O+6}|\nv_max_f32 v9, v9, |v{O+7}|")
        a(f"v_cmp_gt_f32 s[{80+6*n}:{81+6*n}], s14, v9" if False else f"v_cmp_gt_f32 vcc, s14, v9\nv_cmp_lt_f32 s[84:85], s15, v{O+8}\nv_cmp_gt_f32 s[86:87], s92, v{O+8}\ns_nop 4")
        a("s_and_b64 vcc, vcc, s[84:85]\ns_and_b64 vcc, vcc, s[86:87]\ns_cmp_lg_u64 vcc, -1\ns_cbranch_scc1 Lslow")
    if FORCE_SLOW: a("s_branch Lslow")
    a("Lfin:")
    a(f"v_rcp_f32 v9, v{OA+8}\nv_rcp_f32 v10, v{OB+8}\ns_waitcnt vmcnt(0)\nv_mul_f32 v9, v9, v{GA}\nv_mul_f32 v10, v10, v{GBv}")
    for n, O in enumerate((OA, OB)):
        for k in range(8): a(f"v_mul_f32 v{O+k}, v{9+n}, v{O+k}")
        for k in range(4): a(f"v_cvt_pk_bf16_f32 v{O+k}, v{O+2*k}, v{O+2*k+1}")
        a(f"buffer_store_dwordx4 {vr(O,4)}, v{vQS}, {srd(SWS)}, s{81+n} offen sc1")
    a("s_waitcnt vmcnt(0)")
    flag_store(89, 9)
    stamp(6)
    prof_out()
    a("s_endpgm")
    NA, NB = 120, 136
    a("Lslow:")
    a(f"v_mov_b32 v{vK}, v{vQS}\nv_mov_b32 v9, 0xff800000\nv_mov_b32 v10, 0xff800000\ns_mov_b32 s{sCNT}, 0")
    a(f"Ls1:\nds_read_b128 {vr(KB,4)}, v{vK}\nv_add_u32 v{vK}, 2048, v{vK}\ns_add_u32 s{sCNT}, s{sCNT}, 1\ns_waitcnt lgkmcnt(0)")
    a(f"{MF} {vr(X,16)}, {vr(KB,4)}, {vr(QA,4)}, 0\n{MF} {vr(Y,16)}, {vr(KB,4)}, {vr(QB,4)}, 0\ns_nop 7\ns_nop 3")
    for n, S in enumerate((X, Y)):
        for k in range(8): a(f"v_max3_f32 v{9+n}, v{9+n}, v{S+2*k}, v{S+2*k+1}")
    a(f"s_cmp_lt_u32 s{sCNT}, 64\ns_cbranch_scc1 Ls1")
    for n, N in enumerate((NA, NB)):
        a(f"v_mov_b32 v11, v{9+n}\ns_nop 1\nv_permlane32_swap_b32 v{9+n}, v11\ns_nop 1\nv_max_f32 v11, v11, v{9+n}\nv_xor_b32 v11, 0x80000000, v11")
        for k in range(16): a(f"v_mov_b32 v{N+k}, v11")
    for k in range(32): a(f"v_mov_b32 v{OA+k}, 0")
    a(f"v_mov_b32 v{vK}, v{vQS}\ns_mov_b32 s{sCNT}, 0")
    a(f"Ls2:\nds_read_b128 {vr(KB,4)}, v{vK}\ns_mov_b64 exec, s[{sMASK}:{sMASK+1}]\nds_read_b128 {vr(VB,4)}, v{vV}\nds_read_b128 {vr(VB+4,4)}, v{vV} offset:512\ns_mov_b64 exec, -1")
    a(f"v_add_u32 v{vK}, 2048, v{vK}\nv_add_u32 v{vV}, 2048, v{vV}\ns_add_u32 s{sCNT}, s{sCNT}, 1\ns_waitcnt lgkmcnt(0)")
    a(f"{MF} {vr(X,16)}, {vr(KB,4)}, {vr(QA,4)}, {vr(NA,16)}\n{MF} {vr(Y,16)}, {vr(KB,4)}, {vr(QB,4)}, {vr(NB,16)}\ns_nop 7\ns_nop 3")
    ex(X, 0, 15); ex(Y, 0, 15)
    a("s_nop 1")
    a(f"{SM} {vr(OA,16)}, {vr(VB,4)}, {vr(X,8)}, v{IDX}\n{SM} {vr(OB,16)}, {vr(VB,4)}, {vr(Y,8)}, v{IDX}")
    a(f"{SM} {vr(OA,16)}, {vr(VB+4,4)}, {vr(X+8,8)}, v{IDX}\n{SM} {vr(OB,16)}, {vr(VB+4,4)}, {vr(Y+8,8)}, v{IDX}")
    a(f"s_cmp_lt_u32 s{sCNT}, 64\ns_cbranch_scc1 Ls2\ns_nop 7\ns_nop 7\ns_branch Lfin")

    a("Lload:")
    vm = VM(a)
    a(f"v_lshrrev_b32 v12, 3, v0\nv_and_b32 v13, 7, v0\nv_lshrrev_b32 v14, 4, v0\nv_xor_b32 v13, v13, v14\nv_lshlrev_b32 v12, 10, v12")
    a(f"s_lshl_b32 s14, s{sR}, 2\ns_add_u32 s14, s14, s{sI}\ns_lshl_b32 s14, s14, 15\nv_add_u32 v12, s14, v12")
    a(f"v_lshl_add_u32 v1, v13, 4, v12\nv_xor_b32 v2, 64, v1\nv_add_u32 v2, 8192, v2\nv_add_u32 v3, 16384, v1\nv_add_u32 v4, 16384, v2")
    a(f"s_mul_i32 s14, s{sC}, 192\ns_lshl_b32 s15, s{sI}, 4")
    for u in range(3):
        a(f"v_add_u32 v12, {64*u}, v0\nv_mul_u32_u24 v13, 5462, v12\nv_lshrrev_b32 v13, 16, v13\nv_mul_u32_u24 v14, 12, v13\nv_sub_u32 v12, v12, v14\nv_lshl_add_u32 v12, v12, 4, s14\nv_add_u32 v13, s15, v13")
        a(f"v_mul_u32_u24 v14, 3072, v13\nv_add_u32 v{5+u}, v14, v12\nv_mul_u32_u24 v14, 2752, v13\nv_add_u32 v{8+u}, v14, v12")
    a(f"v_lshlrev_b32 v11, 4, v0\ns_lshl_b32 s80, s{sI}, 12\ns_mul_i32 s81, s{sI}, 3072")
    a("s_waitcnt lgkmcnt(0)")
    mk_srd([SX, SWQ, SWS, SW1])
    a(f"s_mov_b32 s15, {EPOCH}\nbuffer_load_dword v15, off, {srd(SWS)}, s15 sc1")
    vm.add("ep")
    def dma(mreg, mimm, v, sr, so, tag, off=0, sc=""):
        if mreg is not None: a(f"s_add_u32 m0, s{mreg}, {mimm}\ns_nop 0")
        a(f"buffer_load_dwordx4 v{v}, {srd(sr)}, s{so} offen {f'offset:{off}' if off else ''} {sc} lds")
        vm.add(tag)
    def stA(s):
        a(f"s_add_u32 s14, s{sROT}, {s}\ns_and_b32 s14, s14, 7\ns_lshl_b32 s82, s14, 7\ns_mul_i32 s83, s14, 196608")
        b = slots[s] * SLOT
        for u in range(4): dma(80, b + u * 1024, 1 + u, SX, 82, f"A{s}")
        for t in range(3): dma(81, b + 16384 + t * 1024, 5 + t, SWQ, 83, f"A{s}")
    def stB(t):
        a(f"s_add_u32 s14, s{sROT}, {t}\ns_and_b32 s14, s14, 7\ns_mul_i32 s83, s14, 176128")
        for i in range(3): dma(81, bbase[t] + i * 1024, 8 + i, SW1, 83, f"B{t}")
    for s in range(LOOK): stA(s)
    mk_srd([SWO, SW2, SOUT, SB2, SG])
    stamp(0)
    nxt = {0: [("A", 3)], 1: [("A", 4)], 2: [("A", 5)], 3: [("A", 6)], 4: [("A", 7), ("B", 0)], 5: [("B", 1), ("B", 2)], 6: [("B", 3), ("B", 4)], 7: [("B", 5), ("B", 6)]}
    if LOOK == 4: nxt[0] = [("A", 4)]; nxt[1] = [("B", 0)]; nxt[4] = [("A", 7)]
    if LOOK == 2: nxt[0] = [("A", 2), ("A", 3)]
    for s in range(8):
        vm.wait(f"A{s}")
        if s == 0: nonce(15)
        a("s_barrier")
        if s == 1:
            a(f"s_mov_b32 m0, {GLDS}\ns_mov_b32 s14, 0")
            dma(None, 0, 11, SG, 14, "G")
        for k, n in nxt[s]: (stA if k == "A" else stB)(n)
    stamp(1)
    a(f"s_lshr_b32 s84, s{sHEAD}, 1\ns_lshl_b32 s85, s{sI}, 7\ns_add_u32 s85, s85, {FQ}\nv_and_b32 v12, 15, v0\nv_lshlrev_b32 v12, 2, v12")
    a(f"s_add_u32 s14, s84, 16\ns_mul_i32 s14, s14, 21846\ns_lshr_b32 s14, s14, 16\ns_lshl_b32 s14, s14, 9\ns_add_u32 s14, s14, s85\nv_add_u32 v1, s14, v12")
    a(f"s_add_u32 s14, s84, 32\ns_mul_i32 s14, s14, 21846\ns_lshr_b32 s14, s14, 16\ns_lshl_b32 s14, s14, 9\ns_add_u32 s14, s14, s85\nv_add_u32 v13, s14, v12\nv_cmp_gt_u32 vcc, 16, v0")
    a(f"s_mul_i32 s14, s84, 21846\ns_lshr_b32 s14, s14, 16\ns_lshl_b32 s14, s14, 9\nv_cndmask_b32 v1, v13, v1, vcc\ns_and_b32 s15, s{sI}, 1\ns_lshl_b32 s15, s15, 8\ns_add_u32 s14, s14, s15")
    a(f"s_lshl_b32 s15, s{sQB}, 1\ns_lshr_b32 s86, s{sI}, 1\ns_add_u32 s15, s15, s86\ns_lshl_b32 s15, s15, 2\ns_add_u32 s14, s14, s15\ns_add_u32 s14, s14, {FQ}")
    a(f"v_and_b32 v12, 1, v0\nv_lshl_add_u32 v13, v12, 7, s14\nv_cmp_gt_u32 vcc, 32, v0\nv_lshrrev_b32 v12, 2, v0\ns_nop 0\nv_cndmask_b32 v1, v13, v1, vcc\nv_and_b32 v13, 3, v0")
    a(f"v_lshlrev_b32 v2, 10, v12\nv_lshl_add_u32 v2, v13, 4, v2\ns_lshl_b32 s14, s{sCB}, 7\nv_add_u32 v2, s14, v2\nv_add_u32 v3, 64, v2")
    a(f"s_lshl_b32 s85, s{sI}, 11\ns_lshl_b32 s84, s{sHEAD}, 17\ns_add_u32 s84, s84, {WKV}\ns_add_u32 s84, s84, s85")
    a(f"s_lshl_b32 s14, s{sHEAD}, 6\ns_lshl_b32 s15, s{sQB}, 3\ns_add_u32 s14, s14, s15\ns_lshl_b32 s15, s{sI}, 1\ns_add_u32 s14, s14, s15\ns_lshl_b32 s88, s14, 10")
    a(f"s_lshl_b32 s89, s{sI}, 13\ns_add_u32 s89, s89, {RING}")
    vm.wait("B1")
    a("s_barrier")
    stB(7)
    vm.wait("B3")
    a("s_barrier")
    vm.wait("B5")
    a("s_barrier")
    a(f"buffer_load_dword v12, v1, {srd(SWS)}, 0 offen sc1")
    vm.add("P", 1)
    vm.wait("B7")
    a("s_barrier")
    stamp(2)
    vm.all()
    a(f"v_cmp_ne_u32 vcc, s{sN}, v12\ns_nop 4\ns_cmp_eq_u64 vcc, 0\ns_cbranch_scc1 Lpq_ok")
    poll(1, 12, "Lpq")
    a("Lpq_ok:")
    stamp(3)
    def kvdma(g0, g1, tag):
        for g in range(g0, g1 - 1, -1):
            a(f"s_add_u32 m0, s85, {g*8192}\ns_add_u32 s86, s84, {g*8192}")
            dma(None, 0, 11, SWS, 86, tag, sc="sc1"); dma(None, 0, 11, SWS, 86, tag, off=1024, sc="sc1")
    dma(89, 6144, 11, SWS, 88, "Q", sc="sc1")
    dma(None, 0, 11, SWS, 88, "Q", off=1024, sc="sc1")
    kvdma(15, 14, "KV1")
    kvdma(13, 12, "KV2")
    vm.wait("KV1")
    a("s_barrier")
    stamp(4)
    kvdma(11, 7, "KV2b")
    vm.wait("KV2")
    a("s_barrier")
    kvdma(6, 0, "KV3")
    FA, HB, W2F, WOF, OF = 16, 80, 112, 128, 192
    a(f"s_lshl_b32 s90, s{sI}, 14\ns_lshl_b32 s91, s{sI}, 17")
    def w2dma(n):
        sl = (n & 3) * 2048
        if n < 22:
            a(f"s_add_u32 s14, s90, {n*65536}")
            dma(89, sl, 2, SW2, 14, f"W{n}"); dma(89, sl + 1024, 3, SW2, 14, f"W{n}")
        else:
            a(f"s_add_u32 s14, s91, {(n-22)*16384}")
            dma(89, sl, 2, SWO, 14, f"W{n}"); dma(89, sl + 1024, 3, SWO, 14, f"W{n}")
    for n in range(3): w2dma(n)
    a(f"v_lshrrev_b32 v14, 5, v0\nv_bfe_u32 v12, v0, 2, 2\nv_lshl_add_u32 v12, v14, 2, v12\nv_lshlrev_b32 v12, 6, v12\nv_bfe_u32 v13, v0, 4, 1\nv_lshl_add_u32 v12, v13, 5, v12")
    a(f"v_and_b32 v13, 3, v0\nv_lshl_add_u32 v12, v13, 3, v12\nv_add_u32 v4, s89, v12")
    a(f"s_lshl_b32 s14, s{sQB}, 2\ns_add_u32 s92, s14, s{sSUB}")
    a(f"s_lshl_b32 s14, s92, 8\ns_add_u32 s14, s14, {FH}\nv_bfe_u32 v12, v0, 4, 1\nv_and_b32 v13, 15, v0\nv_lshlrev_b32 v12, 7, v12\nv_lshl_add_u32 v12, v13, 2, v12\nv_add_u32 v5, s14, v12")
    a(f"v_and_b32 v13, 31, v0\ns_lshl_b32 s14, s92, 8\ns_add_u32 s14, s14, {WG}\nv_lshl_add_u32 v6, v13, 2, s14")
    a(f"s_lshl_b32 s14, s{sCB}, 7\nv_lshl_add_u32 v7, v13, 1, s14")
    a(f"s_lshl_b32 s14, s92, 2\ns_add_u32 s14, s14, s{sI}\ns_lshl_b32 s14, s14, 7\ns_add_u32 s14, s14, {FO}\nv_and_b32 v12, 7, v0\nv_lshl_add_u32 v8, v12, 2, s14")
    a(f"s_mul_i32 s93, s92, {2*86*1024}\ns_lshl_b32 s14, s{sI}, 10\ns_add_u32 s93, s93, s14\ns_add_u32 s93, s93, {WH}\nv_add_u32 v9, {86*1024}, v11")
    a(f"s_lshr_b32 s14, s{sI}, 1\ns_lshl_b32 s14, s14, 5\ns_lshl_b32 s15, s92, 6\ns_add_u32 s14, s14, s15\nv_add_u32 v12, s14, v13\nv_lshlrev_b32 v12, 10, v12\nv_lshl_add_u32 v12, v14, 4, v12")
    a(f"s_lshl_b32 s14, s{sCB}, 7\ns_and_b32 s15, s{sI}, 1\ns_lshl_b32 s15, s15, 6\ns_add_u32 s14, s14, s15\nv_add_u32 v10, s14, v12")
    for k in range(12): a(f"v_mov_b32 v{OF+k}, 0")
    a(f"v_mov_b32 v12, 0x3f80\nv_cmp_gt_u32 vcc, 32, v0\ns_nop 1\nv_cndmask_b32 v{OF+8}, 0, v12, vcc")
    vm.wait("KV3")
    a("s_barrier")
    stamp(5)
    poll(5, 12, "Lph"); vm.q = []
    stamp(6)
    a(f"buffer_load_dword v13, v6, {srd(SWS)}, 0 offen sc1\nbuffer_load_dword v14, v6, {srd(SWS)}, 0 offen offset:128 sc1")
    a(f"buffer_load_ushort v{OF}, v7, {srd(SB2)}, 0 offen\nbuffer_load_ushort v{OF+4}, v7, {srd(SB2)}, 0 offen offset:64")
    vm.add("G", 4)
    def hload(n):
        b = HB + 8 * (n & 3)
        a(f"s_add_u32 s14, s93, {n*4096}\nbuffer_load_dwordx4 {vr(b,4)}, v11, {srd(SWS)}, s14 offen sc1\nbuffer_load_dwordx4 {vr(b+4,4)}, v9, {srd(SWS)}, s14 offen sc1")
        vm.add(f"H{n}", 2)
    for n in range(3): hload(n)
    def trreads(n, dst):
        sl = (n & 3) * 2048
        for ct in range(2):
            for u in range(2):
                a(f"ds_read_b64_tr_b16 {vr(dst+4*ct+2*u,2)}, v4 offset:{sl+ct*1024+u*512}")
    def mf4(wb, hb, first):
        for ct in range(2):
            for rt in range(2):
                d = vr(FA + 16 * (2 * rt + ct), 16)
                a(f"{MF} {d}, {vr(wb+4*ct,4)}, {vr(hb+4*rt,4)}, {'0' if first else d}")
    for n in range(30):
        if n + 3 < 22: hload(n + 3)
        if n + 3 < 30: w2dma(n + 3)
        vm.wait(f"H{n}"); vm.wait(f"W{n}")
        if n < 22:
            wb = W2F + 8 * (n & 1)
            if n == 21: a(f"s_cmp_ge_u32 s{sI}, 2\ns_cbranch_scc1 Lb2")
            trreads(n, wb)
            a("s_waitcnt lgkmcnt(0)")
            mf4(wb, HB + 8 * (n & 3), n == 0)
            if n == 21:
                a(f"s_branch Lb2x\nLb2:\ns_cmp_eq_u32 s{sI}, 3\ns_cbranch_scc1 Lb2x")
                for ct in range(2):
                    for rt in range(2):
                        d = vr(FA + 16 * (2 * rt + ct), 16)
                        a(f"{MF} {d}, {vr(OF+4*ct,4)}, {vr(OF+8,4)}, {d}")
                a("Lb2x:")
        else:
            trreads(n, WOF + 8 * (n - 22))
            a("s_waitcnt lgkmcnt(0)")
    a("v_sub_f32 v13, 1.0, v13\nv_sub_f32 v14, 1.0, v14")
    for k in range(64): a(f"v_mul_f32 v{FA+k}, v{13 + (k >> 5)}, v{FA+k}")
    a(f"s_lshl_b32 s14, s92, 6\ns_lshl_b32 s15, s{sI}, 3\ns_add_u32 s14, s14, s15\ns_lshl_b32 s94, s14, 10\ns_add_u32 s94, s94, {WO_}")
    a(f"s_add_u32 s95, s94, 4096\nv_add_u32 v9, 32768, v11")
    stamp(7)
    a("s_barrier")
    stamp(8)
    poll(8, 12, "Lpo"); vm.q = []
    stamp(9)
    for hh in range(8):
        for rt in range(2):
            a(f"buffer_load_dwordx4 {vr(OF+8*hh+4*rt,4)}, v{11 if rt == 0 else 9}, {srd(SWS)}, s{94 + (hh >> 2)} offen offset:{(hh & 3)*1024} sc1")
        vm.add(f"O{hh}", 2)
    a(f"s_cmp_lg_u32 s2, 0\ns_cbranch_scc1 Lnoep\ns_cmp_lg_u32 s{sI}, 0\ns_cbranch_scc1 Lnoep\ns_mov_b32 s14, {EPOCH}")
    flag_store(14, 12)
    a("s_waitcnt vmcnt(0)\nLnoep:")
    a(f"s_lshl_b32 s14, s{sI}, 12\nv_add_u32 v1, s14, v11\ns_lshl_b32 s14, s{sI}, 14\nv_add_u32 v2, s14, v11")
    for hh in range(8):
        vm.wait(f"O{hh}")
        mf4(WOF + 8 * hh, OF + 8 * hh, False)
    stamp(10)
    a("s_nop 7")
    for T in (0, 2, 1, 3):
        for q in range(4):
            a(f"ds_write_b128 v1, {vr(FA+16*T+4*q,4)} offset:{T*16384+q*1024}")
    a("s_waitcnt lgkmcnt(0)\ns_barrier")
    for s in range(4):
        for q in range(4):
            a(f"ds_read_b128 {vr(FA+16*s+4*q,4)}, v2 offset:{s*4096+q*1024}")
    a("s_waitcnt lgkmcnt(8)")
    for k in range(8): a(f"v_pk_add_f32 {vr(FA+2*k,2)}, {vr(FA+2*k,2)}, {vr(FA+16+2*k,2)}")
    a("s_waitcnt lgkmcnt(0)")
    for k in range(8): a(f"v_pk_add_f32 {vr(FA+32+2*k,2)}, {vr(FA+32+2*k,2)}, {vr(FA+48+2*k,2)}")
    for k in range(8): a(f"v_pk_add_f32 {vr(FA+2*k,2)}, {vr(FA+2*k,2)}, {vr(FA+32+2*k,2)}")
    for k in range(8): a(f"v_cvt_pk_bf16_f32 v{FA+k}, v{FA+2*k}, v{FA+2*k+1}")
    a("s_nop 1")
    for k in (0, 1, 4, 5): a(f"v_permlane32_swap_b32 v{FA+k}, v{FA+k+2}")
    a("s_nop 0")
    a(f"buffer_store_dwordx4 {vr(FA,4)}, v10, {srd(SOUT)}, 0 offen\nbuffer_store_dwordx4 {vr(FA+4,4)}, v10, {srd(SOUT)}, 0 offen offset:32")
    stamp(11)
    prof_out()
    a("Lend:\ns_endpgm")
    a(f""".section .rodata,"a"
.p2align 6
.amdhsa_kernel {KN}
.amdhsa_next_free_vgpr 256
.amdhsa_next_free_sgpr 102
.amdhsa_accum_offset 256
.amdhsa_group_segment_fixed_size 0
.amdhsa_kernarg_size 96
.amdhsa_user_sgpr_count 2
.amdhsa_user_sgpr_kernarg_segment_ptr 1
.amdhsa_system_sgpr_workgroup_id_x 1
.end_amdhsa_kernel""")
    open(path, "w").write(a.text())


if __name__ == "__main__":
    kw = {}
    for x in sys.argv[2:]:
        k, v = x.split("=")
        kw[k] = int(v)
    gen(sys.argv[1], **kw)
```

```python
import sys, os
sys.path.insert(0, os.path.dirname(os.path.abspath(__file__)))
from asmlib import Asm
KN = "gated_mix__softmax_full_mha__dense_activation_squared_relu__prompt_kernel"

WQ, WKV, WH, WO_, WG = 0, 0x200000, 0x600000, 0xC00000, 0xE00000
FQ, FH, FO, EPOCH, WPROF = 0xE10000, 0xE20000, 0xE30000, 0xE50000, 0xF00000
SLOT = 28672
RING = 131072
GLDS = 155648
SPIN = 400000
sW, sX, sJ, sR, sC, sROT, sHEAD, sQB, sSUB, sCB, sN = 3, 4, 5, 6, 7, 8, 9, 10, 11, 12, 13
SX, SWQ, SW1, SWS, SWO, SW2, SOUT, SB1, SB2, SG = 40, 44, 48, 52, 56, 60, 64, 68, 72, 76
sMASK, sCNT, sI = 96, 98, 99


def srd(b): return f"s[{b}:{b+3}]"
def vr(b, n): return f"v[{b}:{b+n-1}]" if n > 1 else f"v{b}"
MF = "v_mfma_f32_32x32x16_bf16"
SM = "v_smfmac_f32_32x32x32_bf16"


class VM:
    def __init__(s, a): s.a = a; s.q = []
    def add(s, tag, n=1): s.q += [tag] * n
    def wait(s, tag):
        idx = [i for i, t in enumerate(s.q) if t == tag]
        if not idx: return
        n = len(s.q) - 1 - idx[-1]
        assert n < 64
        s.a(f"s_waitcnt vmcnt({n})")
        s.q = s.q[idx[-1] + 1:]
    def all(s): s.a("s_waitcnt vmcnt(0)"); s.q = []


class LG:
    def __init__(s, a): s.a = a; s.q = []
    def add(s, tag): s.q.append(tag)
    def wait(s, *tags):
        idx = [i for i, t in enumerate(s.q) if t in tags]
        if not idx: return
        n = min(len(s.q) - 1 - idx[-1], 15)
        s.a(f"s_waitcnt lgkmcnt({n})")
        s.q = s.q[len(s.q) - n:] if n else []
    def all(s): s.a("s_waitcnt lgkmcnt(0)"); s.q = []


def gen(path, PROF=0, FQPOS=4, PRIO=0, FORCE_SLOW=0, SPIN=SPIN, LOOK=3, DBG=0):
    a = Asm()
    lab = [0]
    def stamp(i):
        if PROF == 1: a(f"s_memrealtime s[{16+2*i}:{17+2*i}]")
    def cstamp(i):
        if PROF == 1: a(f"s_memtime s[{16+2*i}:{17+2*i}]")
    def st3(i):
        if PROF == 3: a(f"s_memtime s[{16+2*i}:{17+2*i}]")
    def dbg_srd(b):
        if DBG: a(f"s_mov_b32 s{b}, s36\ns_mov_b32 s{b+1}, s37\ns_mov_b32 s{b+2}, 256\ns_mov_b32 s{b+3}, 0x20000")
    def dbg_out(b, idxs, o, last):
        lab[0] += 1
        a(f"s_waitcnt lgkmcnt(0)\ns_mov_b64 exec, 1\nv_mov_b32 v1, s{16+2*last}\nbuffer_atomic_umax v1, off, {srd(b)}, 0 offset:56\ns_not_b32 s14, s16\nv_mov_b32 v2, s14\nbuffer_atomic_umax v2, off, {srd(b)}, 0 offset:60")
        a(f"s_cmp_lg_u32 s2, {DBG}\ns_cbranch_scc1 Ldb{lab[0]}\ns_cmp_lg_u32 s{sI}, 0\ns_cbranch_scc1 Ldb{lab[0]}")
        for n, k in enumerate(idxs): a(f"v_mov_b32 v{3+n}, s{16+2*k}\nbuffer_store_dword v{3+n}, off, {srd(b)}, 0 offset:{4*(o+n)}")
        a(f"Ldb{lab[0]}:\ns_mov_b64 exec, -1")
    def prof_out(who=0):
        if DBG:
            if who == 0: dbg_out(76, [0, 1, 2, 3, 4, 5, 6], 0, 6)
            else: dbg_out(68, [2, 3, 6, 7, 9, 10, 11], 7, 11)
            return
        if not PROF: return
        a("s_waitcnt lgkmcnt(0)")
        a(f"s_lshl_b32 s14, s2, 3\ns_add_u32 s14, s14, s{sW}\ns_lshl_b32 s14, s14, 6\ns_add_u32 s14, s14, {WPROF}")
        a("s_mov_b64 exec, 1")
        for i in range(12):
            a(f"v_mov_b32 v1, s{16+2*i}\nbuffer_store_dword v1, off, {srd(SWS)}, s14 offset:{4*i}")
        a("s_mov_b64 exec, -1")
    def poll(vaddr, vtmp, name):
        va = vaddr if isinstance(vaddr, list) else [vaddr]
        a(f"s_mov_b32 s15, {SPIN}")
        a(f"{name}:")
        for k, v in enumerate(va): a(f"buffer_load_dword v{vtmp+k}, v{v}, {srd(SWS)}, 0 offen sc1")
        a("s_sub_u32 s15, s15, 1\ns_cmp_eq_u32 s15, 0")
        a(f"s_cbranch_scc1 {name}_x")
        a("s_waitcnt vmcnt(0)")
        for k in range(1, len(va)): a(f"v_xor_b32 v{vtmp+k}, s{sN}, v{vtmp+k}")
        if len(va) > 1:
            a(f"v_xor_b32 v{vtmp}, s{sN}, v{vtmp}\nv_or3_b32 v{vtmp}, v{vtmp}, v{vtmp+1}, v{vtmp+len(va)-1}\nv_cmp_ne_u32 vcc, 0, v{vtmp}")
        else: a(f"v_cmp_ne_u32 vcc, s{sN}, v{vtmp}")
        a(f"s_nop 4\ns_cmp_lg_u64 vcc, 0\ns_cbranch_scc1 {name}")
        a(f"{name}_x:\ns_waitcnt vmcnt(0)")
    def flag_store(soff, vtmp):
        a(f"v_mov_b32 v{vtmp}, s{sN}\ns_mov_b64 exec, 1\nbuffer_store_dword v{vtmp}, off, {srd(SWS)}, s{soff} sc1\ns_mov_b64 exec, -1")

    a("; @launch grid=(256,1,1) block=(512,1,1) lds=163840")
    a('.amdgcn_target "amdgcn-amd-amdhsa--gfx950"')
    a(f".text\n.globl {KN}\n.p2align 8\n.type {KN},@function\n{KN}:")
    a("s_cmp_ge_u32 s2, 256\ns_cbranch_scc1 Lend")
    a("s_load_dwordx16 s[16:31], s[0:1], 0\ns_load_dwordx8 s[32:39], s[0:1], 64")
    a(f"v_lshrrev_b32 v1, 6, v0\nv_and_b32 v0, 63, v0\ns_and_b32 s{sX}, s2, 7\nv_readfirstlane_b32 s{sW}, v1\ns_lshr_b32 s{sJ}, s2, 3")
    a(f"s_and_b32 s14, s{sX}, 1\ns_lshl_b32 s14, s14, 3\ns_and_b32 s15, s{sJ}, 7\ns_add_u32 s{sR}, s14, s15")
    a(f"s_lshr_b32 s14, s{sX}, 1\ns_lshl_b32 s14, s14, 2\ns_lshr_b32 s80, s{sJ}, 3\ns_add_u32 s{sC}, s14, s80")
    a(f"s_lshl_b32 s80, s80, 1\ns_add_u32 s{sROT}, s15, s80")
    a(f"s_and_b32 s14, s{sJ}, 3\ns_lshl_b32 s15, s{sX}, 2\ns_add_u32 s{sHEAD}, s15, s14\ns_lshr_b32 s{sQB}, s{sJ}, 2")
    a(f"s_and_b32 s{sSUB}, s{sX}, 3\ns_and_b32 s15, s{sX}, 4\ns_add_u32 s{sCB}, s15, s14")
    a(f"s_and_b32 s{sI}, s{sW}, 3")
    a(f"s_mov_b32 s{sMASK}, 0xffff\ns_mov_b32 s{sMASK+1}, 0xffff")
    sizes = {SX: (16, 2097152), SWQ: (18, 1572864), SWO: (20, 524288), SW1: (24, 1409024), SB1: (26, 2752),
             SW2: (28, 1409024), SB2: (30, 1024), SG: (32, 1024), SOUT: (34, 2097152), SWS: (38, 268435456)}
    for b, (p, sz) in sizes.items():
        a(f"s_mov_b32 s{b+2}, {sz}\ns_mov_b32 s{b+3}, 0x20000")
    a(f"s_cmp_eq_u32 s{sC}, 15\ns_cselect_b32 s{SW1+2}, 0, s{SW1+2}")
    a(f"s_cmp_ge_u32 s{sW}, 4\ns_cbranch_scc1 Lload")

    def mk_srd(lst):
        for b in lst:
            p = sizes[b][0]
            a(f"s_mov_b32 s{b}, s{p}\ns_mov_b32 s{b+1}, s{p+1}")
    def nonce(v):
        a(f"v_readfirstlane_b32 s14, v{v}\ns_mul_i32 s{sN}, s14, 0x9E3779B1\ns_add_u32 s{sN}, s{sN}, 0x7F4A7C15\ns_or_b32 s{sN}, s{sN}, 0x80000000")
        a(f"s_xor_b32 s15, s{sN}, 1\ns_cmp_eq_u32 s{sN}, s14\ns_cselect_b32 s{sN}, s15, s{sN}")

    XF, ACC, WF, BI = 16, 144, 192, 240
    vL31, vH, vXA, vWL, vWA, vT, vQS, vST = 1, 2, 3, 7, 8, 9, 12, 13
    a(f"v_and_b32 v{vL31}, 31, v0\nv_lshrrev_b32 v{vH}, 5, v0")
    a(f"v_bfe_u32 v9, v0, 1, 3\nv_xor_b32 v9, v9, v{vH}\nv_lshlrev_b32 v9, 4, v9\nv_lshl_add_u32 v9, v{vL31}, 7, v9")
    a(f"s_lshl_b32 s14, s{sI}, 12\nv_add_u32 v{vXA}, s14, v9")
    for k in range(1, 4): a(f"v_xor_b32 v{vXA+k}, {32*k}, v{vXA}")
    a(f"v_bfe_u32 v9, v0, 2, 2\nv_lshl_add_u32 v9, v{vH}, 3, v9\nv_mul_u32_u24 v9, 192, v9\nv_bfe_u32 v10, v0, 4, 1\nv_lshl_add_u32 v9, v10, 5, v9")
    a(f"v_and_b32 v10, 3, v0\nv_lshl_add_u32 v{vWL}, v10, 3, v9")
    a(f"v_lshlrev_b32 v{vQS}, 4, v0")
    a(f"v_and_b32 v9, 0x33, v0\nv_and_b32 v10, 4, v0\nv_lshl_add_u32 v9, v10, 1, v9\nv_bfe_u32 v10, v0, 3, 1\nv_lshl_add_u32 v9, v10, 2, v9\nv_lshlrev_b32 v9, 4, v9")
    a(f"v_and_b32 v11, 15, v0\nv_lshl_add_u32 v11, v{vH}, 4, v11\nv_lshlrev_b32 v11, 4, v11\nv_bfe_u32 v10, v0, 4, 1\nv_lshl_add_u32 v11, v10, 17, v11\nv_add_u32 v10, 1024, v11")
    a(f"s_lshl_b32 s14, s{sR}, 2\ns_add_u32 s80, s14, s{sI}")
    for i in range(3):
        o1, o2, sc = [81, 83, 92][i], [82, 84, 93][i], [90, 94, 100][i]
        a(f"s_mul_i32 s14, s{sC}, 3\ns_add_u32 s14, s14, {i}\ns_lshr_b32 s15, s14, 4\ns_and_b32 s14, s14, 15\ns_lshl_b32 s14, s14, 7\ns_add_u32 s14, s14, s80")
        a(f"s_lshl_b32 s{o1}, s14, 11\ns_add_u32 s{o1}, s{o1}, {WKV}\ns_lshl_b32 s14, s14, 10")
        a(f"s_movk_i32 s{o2}, 512\ns_cmp_eq_u32 s15, 1\ns_cselect_b32 s{o2}, 131072, s{o2}\ns_cselect_b64 vcc, -1, 0\nv_cndmask_b32 v{vST+i}, v10, v9, vcc")
        a(f"s_cmp_eq_u32 s15, 0\ns_cselect_b32 s{o2}, 65536, s{o2}\ns_cselect_b32 s{o1}, s14, s{o1}\ns_cselect_b32 s{sc}, 0x3eb8aa3b, 1.0\ns_cselect_b64 vcc, -1, 0\nv_cndmask_b32 v{vST+i}, v{vST+i}, v{vQS}, vcc")
        a(f"s_add_u32 s{o2}, s{o2}, s{o1}\ns_mov_b32 s{sc+1}, s{sc}")
    for k in range(16): a(f"v_mov_b32 v{BI+k}, 0")
    a(f"v_mov_b32 v9, 0x3f80\nv_cmp_gt_u32 vcc, 32, v0\ns_mul_i32 s14, s{sC}, 192\nv_lshl_add_u32 v10, v{vL31}, 1, s14\nv_cndmask_b32 v{BI+12}, 0, v9, vcc")
    a("s_waitcnt lgkmcnt(0)")
    mk_srd([SWS, SB1]); dbg_srd(76)
    a(f"s_mov_b32 s15, {EPOCH}\nbuffer_load_dword v11, off, {srd(SWS)}, s15 sc1")
    for i in range(3): a(f"buffer_load_ushort v{BI+4*i}, v10, {srd(SB1)}, 0 offen offset:{64*i}")
    a(f"s_mul_i32 s85, s80, 86\ns_mul_i32 s14, s{sC}, 6\ns_add_u32 s85, s85, s14\ns_lshl_b32 s85, s85, 10\ns_add_u32 s85, s85, {WH}\ns_add_u32 s86, s85, 4096")
    a(f"s_lshl_b32 s14, s{sC}, 2\ns_add_u32 s14, s14, s{sI}\ns_lshl_b32 s14, s14, 5\ns_add_u32 s14, s14, s{sR}\ns_lshl_b32 s14, s14, 2\ns_add_u32 s87, s14, {FQ}")
    a(f"s_lshl_b32 s14, s80, 5\ns_add_u32 s14, s14, s{sC}\ns_lshl_b32 s14, s14, 2\ns_add_u32 s88, s14, {FH}")
    a("s_waitcnt vmcnt(0)")
    nonce(11)
    stamp(0)

    lg = LG(a)
    slots = [0, 1, 2, 3, 4, 0, 1, 2]
    segs = [0, 0, 57344, 57344, 114688, 0, 0, 57344]
    bbase = [143360, 86016, 98304, 114688, 126976, 0, 12288, 28672]
    halves = [("A", s, hf) for s in range(8) for hf in range(2)] + [("B", t, hf) for t in range(8) for hf in range(2)]
    seg = [0]
    PB = {("A", 1): 0, ("A", 3): 2, ("A", 4): 4, ("A", 7): 6, ("B", 2): 8, ("B", 6): 10}
    def prep(h):
        k, s, hf = halves[h]
        if hf: return
        if k == "A":
            if segs[s] != seg[0]:
                for q in range(4): a(f"v_add_u32 v{vXA+q}, {(segs[s]-seg[0]) & 0xffffffff:#x}, v{vXA+q}")
                seg[0] = segs[s]
            a(f"v_add_u32 v{vWA}, {slots[s]*SLOT+16384}, v{vWL}")
        else:
            a(f"v_add_u32 v{vWA}, {bbase[s]}, v{vWL}")
        if k == "A" or s % 2 == 0:
            if PROF == 2 and (k, s) in PB: a(f"s_memtime s[{16+2*PB[(k,s)]}:{17+2*PB[(k,s)]}]")
            a("s_barrier")
            if PROF == 2 and (k, s) in PB: a(f"s_memtime s[{18+2*PB[(k,s)]}:{19+2*PB[(k,s)]}]")
    def reads(h):
        k, s, hf = halves[h]
        L = []
        for ksl in range(2):
            ks = 2 * hf + ksl
            if k == "A": L.append((f"ds_read_b128 {vr(XF+16*s+4*ks,4)}, v{vXA+ks} offset:{slots[s]*SLOT-segs[s]}", (h, ksl, "x")))
            for t in range(3):
                d = WF + 24 * hf + 12 * ksl + 4 * t
                for u in range(2):
                    L.append((f"ds_read_b64_tr_b16 {vr(d+2*u,2)}, v{vWA} offset:{t*64+ks*3072+u*768}", (h, ksl, t)))
        return L
    def emit_reads(L, n):
        for _ in range(min(n, len(L))):
            ins, tag = L.pop(0); a(ins); lg.add(tag)
    def half(h, pat='TTT'):
        k, s, hf = halves[h]
        L = []
        if h + 1 < len(halves):
            prep(h + 1); L = reads(h + 1)
        for j in range(6):
            ksl, t = j // 3, j % 3
            ks = 2 * hf + ksl
            lg.wait((h, ksl, "x"), (h, ksl, t))
            x = vr(XF + 16 * s + 4 * ks, 4); w = vr(WF + 24 * hf + 12 * ksl + 4 * t, 4); d = vr(ACC + 16 * t, 16)
            c = "0" if (h == 0 and ksl == 0) else d
            a(f"{MF} {d}, {x}, {w}, {c}" if (k == "A" and pat[t] == "N") else f"{MF} {d}, {w}, {x}, {c}")
            emit_reads(L, 3)
        assert not L
    prep(0)
    stamp(1)
    emit_reads(reads(0), 99)
    a(f"s_cmp_eq_u32 s{sC}, 10\ns_cbranch_scc1 LA_TTN\ns_cmp_gt_u32 s{sC}, 10\ns_cbranch_scc1 LA_NNN")
    q0, seg0 = list(lg.q), seg[0]
    for pat in ("TTT", "TTN", "NNN"):
        lg.q = list(q0); seg[0] = seg0
        a(f"LA_{pat}:")
        for h in range(16): half(h, pat)
        stamp(2); st3(0)
        a("s_nop 7")
        if pat[0] == "N": a("s_nop 1")
        for i in range(3):
            b = ACC + 16 * i
            o1, o2, sc = [81, 83, 92][i], [82, 84, 93][i], [90, 94, 100][i]
            if pat[i] == "T":
                for k in range(8): a(f"v_pk_mul_f32 {vr(b+2*k,2)}, {vr(b+2*k,2)}, s[{sc}:{sc+1}]")
            for k in range(8): a(f"v_cvt_pk_bf16_f32 v{b+k}, v{b+2*k}, v{b+2*k+1}")
            a(f"buffer_store_dwordx4 {vr(b,4)}, v{vST+i}, {srd(SWS)}, s{o1} offen sc1\nbuffer_store_dwordx4 {vr(b+4,4)}, v{vST+i}, {srd(SWS)}, s{o2} offen sc1")
            st3(1 + i)
        if pat != "NNN": a("s_branch LB")
    a(f"s_cmp_eq_u32 s{sC}, 15\ns_cbranch_scc1 Lgate")
    a("LB:")
    for i in range(3): a(f"{MF} {vr(ACC+16*i,16)}, {vr(BI+4*i,4)}, {vr(BI+12,4)}, 0")
    for h in range(16, 32):
        if FQPOS == h - 16:
            st3(7); a("s_waitcnt vmcnt(0)"); st3(8); flag_store(87, 9); stamp(11)
        half(h)
        if h - 16 < 3: st3(4 + h - 16)
    stamp(3); st3(9)
    a("s_nop 7")
    for i in range(3):
        b = ACC + 16 * i
        if i == 1: a(f"s_cmp_eq_u32 s{sC}, 14\ns_cbranch_scc1 Latt")
        for k in range(16): a(f"v_max_f32 v{b+k}, 0, v{b+k}")
        for k in range(8): a(f"v_pk_mul_f32 {vr(b+2*k,2)}, {vr(b+2*k,2)}, {vr(b+2*k,2)}")
        for k in range(8): a(f"v_cvt_pk_bf16_f32 v{b+k}, v{b+2*k}, v{b+2*k+1}")
        for m in range(2):
            o = (2 * i + m) * 1024
            a(f"buffer_store_dwordx4 {vr(b+4*m,4)}, v{vQS}, {srd(SWS)}, s{85 if o < 4096 else 86} offen offset:{o % 4096} sc1")
    a("s_branch Latt")
    a("Lgate:\ns_waitcnt lgkmcnt(0)")
    a(f"v_lshlrev_b32 v11, 4, v{vH}\nv_add_u32 v11, {GLDS}, v11")
    def gread(s_):
        a(f"s_add_u32 s14, s{sROT}, {s_}\ns_and_b32 s14, s14, 7\ns_lshl_b32 s14, s14, 7\nv_add_u32 v9, s14, v11")
        for ks in range(4): a(f"ds_read_b128 {vr(WF+16*(s_&3)+4*ks,4)}, v9 offset:{ks*32}")
    for s_ in range(3): gread(s_)
    a("s_waitcnt vmcnt(0)")
    flag_store(87, 10); stamp(11)
    a("s_barrier\ns_barrier\ns_barrier")
    for s_ in range(8):
        if s_ + 3 < 8: gread(s_ + 3)
        a(f"s_waitcnt lgkmcnt({4*min(3, 7-s_)})")
        for ks in range(4):
            d = vr(ACC + 16 * (ks & 1), 16)
            a(f"{MF} {d}, {vr(WF+16*(s_&3)+4*ks,4)}, {vr(XF+16*s_+4*ks,4)}, {'0' if s_ == 0 and ks < 2 else d}")
    a(f"s_nop 7\ns_nop 7\nv_add_f32 v{ACC}, v{ACC}, v{ACC+16}")
    a(f"v_mul_f32 v9, 0xbfb8aa3b, v{ACC}\nv_exp_f32 v9, v9\ns_lshl_b32 s14, s80, 7\ns_add_u32 s14, s14, {WG}\nv_add_f32 v9, 1.0, v9\nv_rcp_f32 v9, v9\nv_lshlrev_b32 v10, 2, v{vL31}\ns_nop 0")
    a(f"buffer_store_dword v9, v10, {srd(SWS)}, s14 offen sc1")

    X, Y, OA, OB, QA, QB, KB, VB, IDX, vK, vV, vGF, vGA, vFL, GA, GBv = 16, 32, 48, 64, 80, 84, 88, 96, 112, 113, 114, 115, 116, 117, 118, 119
    a("Latt:")
    st3(10)
    for k in range(32): a(f"v_mov_b32 v{OA+k}, 0")
    a(f"v_and_b32 v9, 27, v0\nv_cmp_eq_u32 vcc, 16, v9\nv_mov_b32 v10, 0x3f803f80\nv_mov_b32 v{IDX}, 0xdddddddd\nv_add_u32 v{vK}, {58*2048}, v{vQS}")
    a(f"v_cndmask_b32 v{VB}, 0, v10, vcc")
    for k in range(1, 16): a(f"v_mov_b32 v{VB+k}, v{VB}")
    a(f"v_and_b32 v9, 15, v0\nv_lshl_add_u32 v9, v{vH}, 4, v9\nv_lshlrev_b32 v9, 4, v9\nv_add_u32 v{vV}, {58*2048+1024}, v9")
    a(f"s_lshl_b32 s14, s{sI}, 13\ns_add_u32 s14, s14, {RING+6144}\nv_add_u32 v9, s14, v{vQS}")
    a(f"s_lshl_b32 s14, s{sQB}, 2\ns_add_u32 s80, s14, s{sI}\ns_lshl_b32 s14, s80, 8\ns_add_u32 s15, s14, {FH+60}\ns_add_u32 s14, s14, {WG}\nv_lshl_add_u32 v{vGA}, v{vL31}, 2, s14")
    a(f"v_and_b32 v10, 1, v0\nv_lshl_add_u32 v{vGF}, v10, 7, s15")
    a(f"s_lshl_b32 s14, s80, 2\ns_lshr_b32 s15, s{sHEAD}, 3\ns_add_u32 s14, s14, s15\ns_lshl_b32 s14, s14, 5\ns_and_b32 s15, s{sHEAD}, 7\ns_add_u32 s14, s14, s15\ns_lshl_b32 s14, s14, 2\ns_add_u32 s89, s14, {FO}")
    a(f"s_lshl_b32 s14, s80, 6\ns_add_u32 s14, s14, s{sHEAD}\ns_lshl_b32 s81, s14, 10\ns_add_u32 s81, s81, {WO_}\ns_add_u32 s82, s81, 32768")
    a(f"s_mov_b32 s{sCNT}, 0")
    a("s_barrier")
    stamp(4); cstamp(7); st3(11)
    if PRIO: a(f"s_setprio {PRIO}")
    a(f"ds_read_b128 {vr(QA,4)}, v9\nds_read_b128 {vr(KB,4)}, v{vK} offset:{5*2048}\nds_read_b128 {vr(QB,4)}, v9 offset:1024\nds_read_b128 {vr(KB+4,4)}, v{vK} offset:{4*2048}")
    a(f"s_mov_b64 exec, s[{sMASK}:{sMASK+1}]\nds_read_b128 {vr(VB,4)}, v{vV} offset:{5*2048}\nds_read_b128 {vr(VB+4,4)}, v{vV} offset:{5*2048+512}\ns_mov_b64 exec, -1")
    a(f"s_waitcnt lgkmcnt(4)\n{MF} {vr(X,16)}, {vr(KB,4)}, {vr(QA,4)}, 0\ns_waitcnt lgkmcnt(2)\ns_nop 7\ns_nop 3")
    def ex(b, lo, hi):
        for k in range(lo, hi + 1): a(f"v_exp_f32 v{b+k}, v{b+k}")
    ex(X, 0, 1)
    def tile(u, koff, voff, last):
        kc, kn = KB + 4 * (u & 1), KB + 4 * ((u + 1) & 1)
        vc, vn = VB + 8 * (u & 1), VB + 8 * ((u + 1) & 1)
        ex(X, 2, 4)
        a(f"{MF} {vr(Y,16)}, {vr(kc,4)}, {vr(QB,4)}, 0")
        a("s_waitcnt lgkmcnt(0)")
        if koff is not None: a(f"ds_read_b128 {vr(kc,4)}, v{vK} offset:{koff}")
        ex(X, 5, 9)
        a(f"{SM} {vr(OA,16)}, {vr(vc,4)}, {vr(X,8)}, v{IDX}")
        if voff is not None:
            a(f"s_mov_b64 exec, s[{sMASK}:{sMASK+1}]\nds_read_b128 {vr(vn,4)}, v{vV} offset:{voff}\nds_read_b128 {vr(vn+4,4)}, v{vV} offset:{voff+512}\ns_mov_b64 exec, -1")
        ex(X, 10, 15); ex(Y, 0, 1)
        a(f"{SM} {vr(OA,16)}, {vr(vc+4,4)}, {vr(X+8,8)}, v{IDX}")
        ex(Y, 2, 4)
        if not last: a(f"{MF} {vr(X,16)}, {vr(kn,4)}, {vr(QA,4)}, 0")
        ex(Y, 5, 9)
        a(f"{SM} {vr(OB,16)}, {vr(vc,4)}, {vr(Y,8)}, v{IDX}")
        ex(Y, 10, 15)
        if not last: ex(X, 0, 1)
        else: a("s_nop 1")
        a(f"{SM} {vr(OB,16)}, {vr(vc+4,4)}, {vr(Y+8,8)}, v{IDX}")
    a("Lloop:")
    for u in range(4): tile(u, (3 - u) * 2048, (4 - u) * 2048, False)
    a(f"s_add_u32 s{sCNT}, s{sCNT}, 1\nv_add_u32 v{vK}, 0xffffe000, v{vK}\nv_add_u32 v{vV}, 0xffffe000, v{vV}")
    a(f"s_bitcmp1_b32 {(1<<1)|(1<<3)|(1<<12)|(1<<13)|(1<<15)}, s{sCNT}\ns_cbranch_scc0 Lloop")
    a(f"s_cmp_eq_u32 s{sCNT}, 15\ns_cbranch_scc1 Llast\ns_cmp_eq_u32 s{sCNT}, 12\ns_cbranch_scc1 Lev2\ns_cmp_eq_u32 s{sCNT}, 13\ns_cbranch_scc1 Lev3\ns_cmp_eq_u32 s{sCNT}, 3\ns_cbranch_scc1 Lev1")
    a("s_waitcnt vmcnt(0)")
    flag_store(88, 9)
    cstamp(9)
    a("Lev1:\ns_barrier")
    cstamp(10)
    a("s_branch Lloop")
    a(f"Lev2:\nbuffer_load_dword v{vFL}, v{vGF}, {srd(SWS)}, 0 offen sc1\ns_branch Lloop")
    a(f"Lev3:\ns_waitcnt vmcnt(0)\nv_cmp_ne_u32 vcc, s{sN}, v{vFL}\ns_nop 4\ns_cmp_eq_u64 vcc, 0\ns_cbranch_scc1 Lev3b")
    poll(vGF, vFL, "Lpg")
    a(f"Lev3b:\nbuffer_load_dword v{GA}, v{vGA}, {srd(SWS)}, 0 offen sc1\nbuffer_load_dword v{GBv}, v{vGA}, {srd(SWS)}, 0 offen offset:128 sc1\ns_branch Lloop")
    a(f"Llast:\nv_add_u32 v{vK}, 4096, v{vK}\nv_add_u32 v{vV}, 4096, v{vV}")
    for u in range(4): tile(u, (1 - u) * 2048 if u < 2 else None, (2 - u) * 2048 if u < 3 else None, u == 3)
    stamp(5); cstamp(8)
    a("s_mov_b32 s14, 0x7f800000\ns_mov_b32 s15, 0x30800000\ns_mov_b32 s92, 0x5f800000")
    for n, O in enumerate((OA, OB)):
        if n == 1: a("s_nop 3")
        a(f"v_max3_f32 v9, |v{O}|, |v{O+1}|, |v{O+2}|\nv_max3_f32 v9, v9, |v{O+3}|, |v{O+4}|\nv_max3_f32 v9, v9, |v{O+5}|, |v{O+6}|\nv_max_f32 v9, v9, |v{O+7}|")
        a(f"v_cmp_gt_f32 s[{80+6*n}:{81+6*n}], s14, v9" if False else f"v_cmp_gt_f32 vcc, s14, v9\nv_cmp_lt_f32 s[84:85], s15, v{O+8}\nv_cmp_gt_f32 s[86:87], s92, v{O+8}\ns_nop 4")
        a("s_and_b64 vcc, vcc, s[84:85]\ns_and_b64 vcc, vcc, s[86:87]\ns_cmp_lg_u64 vcc, -1\ns_cbranch_scc1 Lslow")
    if FORCE_SLOW: a("s_branch Lslow")
    a("Lfin:")
    a(f"v_rcp_f32 v9, v{OA+8}\nv_rcp_f32 v10, v{OB+8}\ns_waitcnt vmcnt(0)\nv_mul_f32 v9, v9, v{GA}\nv_mul_f32 v10, v10, v{GBv}")
    for n, O in enumerate((OA, OB)):
        for k in range(8): a(f"v_mul_f32 v{O+k}, v{9+n}, v{O+k}")
        for k in range(4): a(f"v_cvt_pk_bf16_f32 v{O+k}, v{O+2*k}, v{O+2*k+1}")
        a(f"buffer_store_dwordx4 {vr(O,4)}, v{vQS}, {srd(SWS)}, s{81+n} offen sc1")
    a("s_waitcnt vmcnt(0)")
    flag_store(89, 9)
    stamp(6)
    prof_out()
    a("s_endpgm")
    NA, NB = 120, 136
    a("Lslow:")
    a(f"v_mov_b32 v{vK}, v{vQS}\nv_mov_b32 v9, 0xff800000\nv_mov_b32 v10, 0xff800000\ns_mov_b32 s{sCNT}, 0")
    a(f"Ls1:\nds_read_b128 {vr(KB,4)}, v{vK}\nv_add_u32 v{vK}, 2048, v{vK}\ns_add_u32 s{sCNT}, s{sCNT}, 1\ns_waitcnt lgkmcnt(0)")
    a(f"{MF} {vr(X,16)}, {vr(KB,4)}, {vr(QA,4)}, 0\n{MF} {vr(Y,16)}, {vr(KB,4)}, {vr(QB,4)}, 0\ns_nop 7\ns_nop 3")
    for n, S in enumerate((X, Y)):
        for k in range(8): a(f"v_max3_f32 v{9+n}, v{9+n}, v{S+2*k}, v{S+2*k+1}")
    a(f"s_cmp_lt_u32 s{sCNT}, 64\ns_cbranch_scc1 Ls1")
    for n, N in enumerate((NA, NB)):
        a(f"v_mov_b32 v11, v{9+n}\ns_nop 1\nv_permlane32_swap_b32 v{9+n}, v11\ns_nop 1\nv_max_f32 v11, v11, v{9+n}\nv_xor_b32 v11, 0x80000000, v11")
        for k in range(16): a(f"v_mov_b32 v{N+k}, v11")
    for k in range(32): a(f"v_mov_b32 v{OA+k}, 0")
    a(f"v_mov_b32 v{vK}, v{vQS}\ns_mov_b32 s{sCNT}, 0")
    a(f"Ls2:\nds_read_b128 {vr(KB,4)}, v{vK}\ns_mov_b64 exec, s[{sMASK}:{sMASK+1}]\nds_read_b128 {vr(VB,4)}, v{vV}\nds_read_b128 {vr(VB+4,4)}, v{vV} offset:512\ns_mov_b64 exec, -1")
    a(f"v_add_u32 v{vK}, 2048, v{vK}\nv_add_u32 v{vV}, 2048, v{vV}\ns_add_u32 s{sCNT}, s{sCNT}, 1\ns_waitcnt lgkmcnt(0)")
    a(f"{MF} {vr(X,16)}, {vr(KB,4)}, {vr(QA,4)}, {vr(NA,16)}\n{MF} {vr(Y,16)}, {vr(KB,4)}, {vr(QB,4)}, {vr(NB,16)}\ns_nop 7\ns_nop 3")
    ex(X, 0, 15); ex(Y, 0, 15)
    a("s_nop 1")
    a(f"{SM} {vr(OA,16)}, {vr(VB,4)}, {vr(X,8)}, v{IDX}\n{SM} {vr(OB,16)}, {vr(VB,4)}, {vr(Y,8)}, v{IDX}")
    a(f"{SM} {vr(OA,16)}, {vr(VB+4,4)}, {vr(X+8,8)}, v{IDX}\n{SM} {vr(OB,16)}, {vr(VB+4,4)}, {vr(Y+8,8)}, v{IDX}")
    a(f"s_cmp_lt_u32 s{sCNT}, 64\ns_cbranch_scc1 Ls2\ns_nop 7\ns_nop 7\ns_branch Lfin")

    a("Lload:")
    vm = VM(a)
    a(f"v_lshrrev_b32 v12, 3, v0\nv_and_b32 v13, 7, v0\nv_lshrrev_b32 v14, 4, v0\nv_xor_b32 v13, v13, v14\nv_lshlrev_b32 v12, 10, v12")
    a(f"s_lshl_b32 s14, s{sR}, 2\ns_add_u32 s14, s14, s{sI}\ns_lshl_b32 s14, s14, 15\nv_add_u32 v12, s14, v12")
    a(f"v_lshl_add_u32 v1, v13, 4, v12\nv_xor_b32 v2, 64, v1\nv_add_u32 v2, 8192, v2\nv_add_u32 v3, 16384, v1\nv_add_u32 v4, 16384, v2")
    a(f"s_mul_i32 s14, s{sC}, 192\ns_lshl_b32 s15, s{sI}, 4")
    for u in range(3):
        a(f"v_add_u32 v12, {64*u}, v0\nv_mul_u32_u24 v13, 5462, v12\nv_lshrrev_b32 v13, 16, v13\nv_mul_u32_u24 v14, 12, v13\nv_sub_u32 v12, v12, v14\nv_lshl_add_u32 v12, v12, 4, s14\nv_add_u32 v13, s15, v13")
        a(f"v_mul_u32_u24 v14, 3072, v13\nv_add_u32 v{5+u}, v14, v12\nv_mul_u32_u24 v14, 2752, v13\nv_add_u32 v{8+u}, v14, v12")
    a(f"v_lshlrev_b32 v11, 4, v0\ns_lshl_b32 s80, s{sI}, 12\ns_mul_i32 s81, s{sI}, 3072")
    a("s_waitcnt lgkmcnt(0)")
    mk_srd([SX, SWQ, SWS, SW1])
    a(f"s_mov_b32 s15, {EPOCH}\nbuffer_load_dword v15, off, {srd(SWS)}, s15 sc1")
    vm.add("ep")
    def dma(mreg, mimm, v, sr, so, tag, off=0, sc=""):
        if mreg is not None: a(f"s_add_u32 m0, s{mreg}, {mimm}\ns_nop 0")
        a(f"buffer_load_dwordx4 v{v}, {srd(sr)}, s{so} offen {f'offset:{off}' if off else ''} {sc} lds")
        vm.add(tag)
    def stA(s):
        a(f"s_add_u32 s14, s{sROT}, {s}\ns_and_b32 s14, s14, 7\ns_lshl_b32 s82, s14, 7\ns_mul_i32 s83, s14, 196608")
        b = slots[s] * SLOT
        for u in range(4): dma(80, b + u * 1024, 1 + u, SX, 82, f"A{s}")
        for t in range(3): dma(81, b + 16384 + t * 1024, 5 + t, SWQ, 83, f"A{s}")
    def stB(t):
        a(f"s_add_u32 s14, s{sROT}, {t}\ns_and_b32 s14, s14, 7\ns_mul_i32 s83, s14, 176128")
        for i in range(3): dma(81, bbase[t] + i * 1024, 8 + i, SW1, 83, f"B{t}")
    for s in range(LOOK): stA(s)
    mk_srd([SWO, SW2, SOUT, SB2, SG]); dbg_srd(68)
    stamp(0)
    nxt = {0: [("A", 3)], 1: [("A", 4)], 2: [("A", 5)], 3: [("A", 6)], 4: [("A", 7), ("B", 0)], 5: [("B", 1), ("B", 2)], 6: [("B", 3), ("B", 4)], 7: [("B", 5), ("B", 6)]}
    if LOOK == 4: nxt[0] = [("A", 4)]; nxt[1] = [("B", 0)]; nxt[4] = [("A", 7)]
    if LOOK == 2: nxt[0] = [("A", 2), ("A", 3)]
    for s in range(8):
        vm.wait(f"A{s}")
        if s == 0: nonce(15)
        a("s_barrier")
        if s == 1:
            a(f"s_mov_b32 m0, {GLDS}\ns_mov_b32 s14, 0")
            dma(None, 0, 11, SG, 14, "G")
        for k, n in nxt[s]: (stA if k == "A" else stB)(n)
    stamp(1)
    a(f"s_lshr_b32 s84, s{sHEAD}, 1\ns_lshl_b32 s85, s{sI}, 7\ns_add_u32 s85, s85, {FQ}\nv_and_b32 v12, 15, v0\nv_lshlrev_b32 v12, 2, v12")
    a(f"s_add_u32 s14, s84, 16\ns_mul_i32 s14, s14, 21846\ns_lshr_b32 s14, s14, 16\ns_lshl_b32 s14, s14, 9\ns_add_u32 s14, s14, s85\nv_add_u32 v1, s14, v12")
    a(f"s_add_u32 s14, s84, 32\ns_mul_i32 s14, s14, 21846\ns_lshr_b32 s14, s14, 16\ns_lshl_b32 s14, s14, 9\ns_add_u32 s14, s14, s85\nv_add_u32 v13, s14, v12\nv_cmp_gt_u32 vcc, 16, v0")
    a(f"s_mul_i32 s14, s84, 21846\ns_lshr_b32 s14, s14, 16\ns_lshl_b32 s14, s14, 9\nv_cndmask_b32 v1, v13, v1, vcc\ns_and_b32 s15, s{sI}, 1\ns_lshl_b32 s15, s15, 8\ns_add_u32 s14, s14, s15")
    a(f"s_lshl_b32 s15, s{sQB}, 1\ns_lshr_b32 s86, s{sI}, 1\ns_add_u32 s15, s15, s86\ns_lshl_b32 s15, s15, 2\ns_add_u32 s14, s14, s15\ns_add_u32 s14, s14, {FQ}")
    a(f"v_and_b32 v12, 1, v0\nv_lshl_add_u32 v13, v12, 7, s14\nv_cmp_gt_u32 vcc, 32, v0\nv_lshrrev_b32 v12, 2, v0\ns_nop 0\nv_cndmask_b32 v1, v13, v1, vcc\nv_and_b32 v13, 3, v0")
    a(f"v_lshlrev_b32 v2, 10, v12\nv_lshl_add_u32 v2, v13, 4, v2\ns_lshl_b32 s14, s{sCB}, 7\nv_add_u32 v2, s14, v2\nv_add_u32 v3, 64, v2")
    a(f"s_lshl_b32 s85, s{sI}, 11\ns_lshl_b32 s84, s{sHEAD}, 17\ns_add_u32 s84, s84, {WKV}\ns_add_u32 s84, s84, s85")
    a(f"s_lshl_b32 s14, s{sHEAD}, 6\ns_lshl_b32 s15, s{sQB}, 3\ns_add_u32 s14, s14, s15\ns_lshl_b32 s15, s{sI}, 1\ns_add_u32 s14, s14, s15\ns_lshl_b32 s88, s14, 10")
    a(f"s_lshl_b32 s89, s{sI}, 13\ns_add_u32 s89, s89, {RING}")
    vm.wait("B1")
    a("s_barrier")
    stB(7)
    vm.wait("B3")
    a("s_barrier")
    vm.wait("B5")
    a("s_barrier")
    a(f"buffer_load_dword v12, v1, {srd(SWS)}, 0 offen sc1")
    vm.add("P", 1)
    vm.wait("B7")
    a("s_barrier")
    stamp(2)
    vm.all()
    a(f"v_cmp_ne_u32 vcc, s{sN}, v12\ns_nop 4\ns_cmp_eq_u64 vcc, 0\ns_cbranch_scc1 Lpq_ok")
    poll(1, 12, "Lpq")
    a("Lpq_ok:")
    stamp(3)
    def kvdma(g0, g1, tag):
        for g in range(g0, g1 - 1, -1):
            a(f"s_add_u32 m0, s85, {g*8192}\ns_add_u32 s86, s84, {g*8192}")
            dma(None, 0, 11, SWS, 86, tag, sc="sc1"); dma(None, 0, 11, SWS, 86, tag, off=1024, sc="sc1")
    dma(89, 6144, 11, SWS, 88, "Q", sc="sc1")
    dma(None, 0, 11, SWS, 88, "Q", off=1024, sc="sc1")
    kvdma(15, 14, "KV1")
    kvdma(13, 12, "KV2")
    vm.wait("KV1")
    a("s_barrier")
    stamp(4)
    kvdma(11, 7, "KV2b")
    vm.wait("KV2")
    a("s_barrier")
    kvdma(6, 0, "KV3")
    FA, HB, W2F, WOF, OF = 16, 80, 112, 128, 192
    a(f"s_lshl_b32 s90, s{sI}, 14\ns_lshl_b32 s91, s{sI}, 17")
    def w2dma(n):
        sl = (n & 3) * 2048
        if n < 22:
            a(f"s_add_u32 s14, s90, {n*65536}")
            dma(89, sl, 2, SW2, 14, f"W{n}"); dma(89, sl + 1024, 3, SW2, 14, f"W{n}")
        else:
            a(f"s_add_u32 s14, s91, {(n-22)*16384}")
            dma(89, sl, 2, SWO, 14, f"W{n}"); dma(89, sl + 1024, 3, SWO, 14, f"W{n}")
    for n in range(3): w2dma(n)
    a(f"v_lshrrev_b32 v14, 5, v0\nv_bfe_u32 v12, v0, 2, 2\nv_lshl_add_u32 v12, v14, 2, v12\nv_lshlrev_b32 v12, 6, v12\nv_bfe_u32 v13, v0, 4, 1\nv_lshl_add_u32 v12, v13, 5, v12")
    a(f"v_and_b32 v13, 3, v0\nv_lshl_add_u32 v12, v13, 3, v12\nv_add_u32 v4, s89, v12")
    a(f"s_lshl_b32 s14, s{sQB}, 2\ns_add_u32 s92, s14, s{sSUB}")
    a(f"s_lshl_b32 s14, s92, 8\ns_add_u32 s14, s14, {FH}\nv_bfe_u32 v12, v0, 4, 1\nv_and_b32 v13, 15, v0\nv_lshlrev_b32 v12, 7, v12\nv_lshl_add_u32 v12, v13, 2, v12\nv_add_u32 v5, s14, v12")
    a(f"v_and_b32 v13, 31, v0\ns_lshl_b32 s14, s92, 8\ns_add_u32 s14, s14, {WG}\nv_lshl_add_u32 v6, v13, 2, s14")
    a(f"s_lshl_b32 s14, s{sCB}, 7\nv_lshl_add_u32 v7, v13, 1, s14")
    a(f"s_lshl_b32 s14, s92, 2\ns_add_u32 s14, s14, s{sI}\ns_lshl_b32 s14, s14, 7\ns_add_u32 s14, s14, {FO}\nv_and_b32 v12, 7, v0\nv_lshl_add_u32 v8, v12, 2, s14")
    a(f"s_mul_i32 s93, s92, {2*86*1024}\ns_lshl_b32 s14, s{sI}, 10\ns_add_u32 s93, s93, s14\ns_add_u32 s93, s93, {WH}\nv_add_u32 v9, {86*1024}, v11")
    a(f"s_lshr_b32 s14, s{sI}, 1\ns_lshl_b32 s14, s14, 5\ns_lshl_b32 s15, s92, 6\ns_add_u32 s14, s14, s15\nv_add_u32 v12, s14, v13\nv_lshlrev_b32 v12, 10, v12\nv_lshl_add_u32 v12, v14, 4, v12")
    a(f"s_lshl_b32 s14, s{sCB}, 7\ns_and_b32 s15, s{sI}, 1\ns_lshl_b32 s15, s15, 6\ns_add_u32 s14, s14, s15\nv_add_u32 v10, s14, v12")
    for k in range(12): a(f"v_mov_b32 v{OF+k}, 0")
    a(f"v_mov_b32 v12, 0x3f80\nv_cmp_gt_u32 vcc, 32, v0\ns_nop 1\nv_cndmask_b32 v{OF+8}, 0, v12, vcc")
    vm.wait("KV3")
    a("s_barrier")
    stamp(5)
    poll(5, 12, "Lph"); vm.q = []
    stamp(6)
    a(f"buffer_load_dword v13, v6, {srd(SWS)}, 0 offen sc1\nbuffer_load_dword v14, v6, {srd(SWS)}, 0 offen offset:128 sc1")
    a(f"buffer_load_ushort v{OF}, v7, {srd(SB2)}, 0 offen\nbuffer_load_ushort v{OF+4}, v7, {srd(SB2)}, 0 offen offset:64")
    vm.add("G", 4)
    def hload(n):
        b = HB + 8 * (n & 3)
        a(f"s_add_u32 s14, s93, {n*4096}\nbuffer_load_dwordx4 {vr(b,4)}, v11, {srd(SWS)}, s14 offen sc1\nbuffer_load_dwordx4 {vr(b+4,4)}, v9, {srd(SWS)}, s14 offen sc1")
        vm.add(f"H{n}", 2)
    for n in range(3): hload(n)
    def trreads(n, dst):
        sl = (n & 3) * 2048
        for ct in range(2):
            for u in range(2):
                a(f"ds_read_b64_tr_b16 {vr(dst+4*ct+2*u,2)}, v4 offset:{sl+ct*1024+u*512}")
    def mf4(wb, hb, first):
        for ct in range(2):
            for rt in range(2):
                d = vr(FA + 16 * (2 * rt + ct), 16)
                a(f"{MF} {d}, {vr(wb+4*ct,4)}, {vr(hb+4*rt,4)}, {'0' if first else d}")
    for n in range(30):
        if n + 3 < 22: hload(n + 3)
        if n + 3 < 30: w2dma(n + 3)
        vm.wait(f"H{n}"); vm.wait(f"W{n}")
        if n < 22:
            wb = W2F + 8 * (n & 1)
            if n == 21: a(f"s_cmp_ge_u32 s{sI}, 2\ns_cbranch_scc1 Lb2")
            trreads(n, wb)
            a("s_waitcnt lgkmcnt(0)")
            mf4(wb, HB + 8 * (n & 3), n == 0)
            if n == 21:
                a(f"s_branch Lb2x\nLb2:\ns_cmp_eq_u32 s{sI}, 3\ns_cbranch_scc1 Lb2x")
                for ct in range(2):
                    for rt in range(2):
                        d = vr(FA + 16 * (2 * rt + ct), 16)
                        a(f"{MF} {d}, {vr(OF+4*ct,4)}, {vr(OF+8,4)}, {d}")
                a("Lb2x:")
        else:
            trreads(n, WOF + 8 * (n - 22))
            a("s_waitcnt lgkmcnt(0)")
    a("v_sub_f32 v13, 1.0, v13\nv_sub_f32 v14, 1.0, v14")
    for k in range(64): a(f"v_mul_f32 v{FA+k}, v{13 + (k >> 5)}, v{FA+k}")
    a(f"s_lshl_b32 s14, s92, 6\ns_lshl_b32 s15, s{sI}, 3\ns_add_u32 s14, s14, s15\ns_lshl_b32 s94, s14, 10\ns_add_u32 s94, s94, {WO_}")
    a(f"s_add_u32 s95, s94, 4096\nv_add_u32 v9, 32768, v11")
    stamp(7)
    a("s_barrier")
    stamp(8)
    poll(8, 12, "Lpo"); vm.q = []
    stamp(9)
    for hh in range(8):
        for rt in range(2):
            a(f"buffer_load_dwordx4 {vr(OF+8*hh+4*rt,4)}, v{11 if rt == 0 else 9}, {srd(SWS)}, s{94 + (hh >> 2)} offen offset:{(hh & 3)*1024} sc1")
        vm.add(f"O{hh}", 2)
    a(f"s_cmp_lg_u32 s2, 0\ns_cbranch_scc1 Lnoep\ns_cmp_lg_u32 s{sI}, 0\ns_cbranch_scc1 Lnoep\ns_mov_b32 s14, {EPOCH}")
    flag_store(14, 12)
    a("s_waitcnt vmcnt(0)\nLnoep:")
    a(f"s_lshl_b32 s14, s{sI}, 12\nv_add_u32 v1, s14, v11\ns_lshl_b32 s14, s{sI}, 14\nv_add_u32 v2, s14, v11")
    for hh in range(8):
        vm.wait(f"O{hh}")
        mf4(WOF + 8 * hh, OF + 8 * hh, False)
    stamp(10)
    a("s_nop 7")
    for T in (0, 2, 1, 3):
        for q in range(4):
            a(f"ds_write_b128 v1, {vr(FA+16*T+4*q,4)} offset:{T*16384+q*1024}")
    a("s_waitcnt lgkmcnt(0)\ns_barrier")
    for s in range(4):
        for q in range(4):
            a(f"ds_read_b128 {vr(FA+16*s+4*q,4)}, v2 offset:{s*4096+q*1024}")
    a("s_waitcnt lgkmcnt(8)")
    for k in range(8): a(f"v_pk_add_f32 {vr(FA+2*k,2)}, {vr(FA+2*k,2)}, {vr(FA+16+2*k,2)}")
    a("s_waitcnt lgkmcnt(0)")
    for k in range(8): a(f"v_pk_add_f32 {vr(FA+32+2*k,2)}, {vr(FA+32+2*k,2)}, {vr(FA+48+2*k,2)}")
    for k in range(8): a(f"v_pk_add_f32 {vr(FA+2*k,2)}, {vr(FA+2*k,2)}, {vr(FA+32+2*k,2)}")
    for k in range(8): a(f"v_cvt_pk_bf16_f32 v{FA+k}, v{FA+2*k}, v{FA+2*k+1}")
    a("s_nop 1")
    for k in (0, 1, 4, 5): a(f"v_permlane32_swap_b32 v{FA+k}, v{FA+k+2}")
    a("s_nop 0")
    a(f"buffer_store_dwordx4 {vr(FA,4)}, v10, {srd(SOUT)}, 0 offen\nbuffer_store_dwordx4 {vr(FA+4,4)}, v10, {srd(SOUT)}, 0 offen offset:32")
    stamp(11)
    prof_out(1)
    a("Lend:\ns_endpgm")
    a(f""".section .rodata,"a"
.p2align 6
.amdhsa_kernel {KN}
.amdhsa_next_free_vgpr 256
.amdhsa_next_free_sgpr 102
.amdhsa_accum_offset 256
.amdhsa_group_segment_fixed_size 0
.amdhsa_kernarg_size 96
.amdhsa_user_sgpr_count 2
.amdhsa_user_sgpr_kernarg_segment_ptr 1
.amdhsa_system_sgpr_workgroup_id_x 1
.end_amdhsa_kernel""")
    open(path, "w").write(a.text())


if __name__ == "__main__":
    kw = {}
    for x in sys.argv[2:]:
        k, v = x.split("=")
        kw[k] = int(v)
    gen(sys.argv[1], **kw)
```

```python
import sys, os
sys.path.insert(0, os.path.dirname(os.path.abspath(__file__)))
from asmlib import Asm
KN = "gated_mix__softmax_full_mha__dense_activation_squared_relu__prompt_kernel"

WQ, WKV, WH, WO_, WG = 0, 0x200000, 0x600000, 0xC00000, 0xE00000
FQ, FH, FO, EPOCH, WPROF = 0xE10000, 0xE20000, 0xE30000, 0xE50000, 0xF00000
SLOT = 28672
RING = 131072
GLDS = 155648
SPIN = 400000
sW, sX, sJ, sR, sC, sROT, sHEAD, sQB, sSUB, sCB, sN = 3, 4, 5, 6, 7, 8, 9, 10, 11, 12, 13
SX, SWQ, SW1, SWS, SWO, SW2, SOUT, SB1, SB2, SG = 40, 44, 48, 52, 56, 60, 64, 68, 72, 76
sMASK, sCNT, sI = 96, 98, 99


def srd(b): return f"s[{b}:{b+3}]"
def vr(b, n): return f"v[{b}:{b+n-1}]" if n > 1 else f"v{b}"
MF = "v_mfma_f32_32x32x16_bf16"
SM = "v_smfmac_f32_32x32x32_bf16"


class VM:
    def __init__(s, a): s.a = a; s.q = []
    def add(s, tag, n=1): s.q += [tag] * n
    def wait(s, tag):
        idx = [i for i, t in enumerate(s.q) if t == tag]
        if not idx: return
        n = len(s.q) - 1 - idx[-1]
        assert n < 64
        s.a(f"s_waitcnt vmcnt({n})")
        s.q = s.q[idx[-1] + 1:]
    def all(s): s.a("s_waitcnt vmcnt(0)"); s.q = []


class LG:
    def __init__(s, a): s.a = a; s.q = []
    def add(s, tag): s.q.append(tag)
    def wait(s, *tags):
        idx = [i for i, t in enumerate(s.q) if t in tags]
        if not idx: return
        n = min(len(s.q) - 1 - idx[-1], 15)
        s.a(f"s_waitcnt lgkmcnt({n})")
        s.q = s.q[len(s.q) - n:] if n else []
    def all(s): s.a("s_waitcnt lgkmcnt(0)"); s.q = []


def gen(path, PROF=0, FQPOS=4, PRIO=0, FORCE_SLOW=0, SPIN=SPIN, LOOK=3, DBG=0, HDEF=1):
    a = Asm()
    lab = [0]
    def stamp(i):
        if PROF == 1: a(f"s_memrealtime s[{16+2*i}:{17+2*i}]")
    def cstamp(i):
        if PROF == 1: a(f"s_memtime s[{16+2*i}:{17+2*i}]")
    def st3(i):
        if PROF == 3: a(f"s_memtime s[{16+2*i}:{17+2*i}]")
    def dbg_srd(b):
        if DBG: a(f"s_mov_b32 s{b}, s36\ns_mov_b32 s{b+1}, s37\ns_mov_b32 s{b+2}, 256\ns_mov_b32 s{b+3}, 0x20000")
    def dbg_out(b, idxs, o, last):
        lab[0] += 1
        a(f"s_waitcnt lgkmcnt(0)\ns_mov_b64 exec, 1\nv_mov_b32 v1, s{16+2*last}\nbuffer_atomic_umax v1, off, {srd(b)}, 0 offset:56\ns_not_b32 s14, s16\nv_mov_b32 v2, s14\nbuffer_atomic_umax v2, off, {srd(b)}, 0 offset:60")
        a(f"s_cmp_lg_u32 s2, {DBG}\ns_cbranch_scc1 Ldb{lab[0]}\ns_cmp_lg_u32 s{sI}, 0\ns_cbranch_scc1 Ldb{lab[0]}")
        for n, k in enumerate(idxs): a(f"v_mov_b32 v{3+n}, s{16+2*k}\nbuffer_store_dword v{3+n}, off, {srd(b)}, 0 offset:{4*(o+n)}")
        a(f"Ldb{lab[0]}:\ns_mov_b64 exec, -1")
    def prof_out(who=0):
        if DBG:
            if who == 0: dbg_out(76, [0, 1, 2, 3, 4, 5, 6], 0, 6)
            else: dbg_out(68, [2, 3, 6, 7, 9, 10, 11], 7, 11)
            return
        if not PROF: return
        a("s_waitcnt lgkmcnt(0)")
        a(f"s_lshl_b32 s14, s2, 3\ns_add_u32 s14, s14, s{sW}\ns_lshl_b32 s14, s14, 6\ns_add_u32 s14, s14, {WPROF}")
        a("s_mov_b64 exec, 1")
        for i in range(12):
            a(f"v_mov_b32 v1, s{16+2*i}\nbuffer_store_dword v1, off, {srd(SWS)}, s14 offset:{4*i}")
        a("s_mov_b64 exec, -1")
    def poll(vaddr, vtmp, name):
        va = vaddr if isinstance(vaddr, list) else [vaddr]
        a(f"s_mov_b32 s15, {SPIN}")
        a(f"{name}:")
        for k, v in enumerate(va): a(f"buffer_load_dword v{vtmp+k}, v{v}, {srd(SWS)}, 0 offen sc1")
        a("s_sub_u32 s15, s15, 1\ns_cmp_eq_u32 s15, 0")
        a(f"s_cbranch_scc1 {name}_x")
        a("s_waitcnt vmcnt(0)")
        for k in range(1, len(va)): a(f"v_xor_b32 v{vtmp+k}, s{sN}, v{vtmp+k}")
        if len(va) > 1:
            a(f"v_xor_b32 v{vtmp}, s{sN}, v{vtmp}\nv_or3_b32 v{vtmp}, v{vtmp}, v{vtmp+1}, v{vtmp+len(va)-1}\nv_cmp_ne_u32 vcc, 0, v{vtmp}")
        else: a(f"v_cmp_ne_u32 vcc, s{sN}, v{vtmp}")
        a(f"s_nop 4\ns_cmp_lg_u64 vcc, 0\ns_cbranch_scc1 {name}")
        a(f"{name}_x:\ns_waitcnt vmcnt(0)")
    def flag_store(soff, vtmp):
        a(f"v_mov_b32 v{vtmp}, s{sN}\ns_mov_b64 exec, 1\nbuffer_store_dword v{vtmp}, off, {srd(SWS)}, s{soff} sc1\ns_mov_b64 exec, -1")

    a("; @launch grid=(256,1,1) block=(512,1,1) lds=163840")
    a('.amdgcn_target "amdgcn-amd-amdhsa--gfx950"')
    a(f".text\n.globl {KN}\n.p2align 8\n.type {KN},@function\n{KN}:")
    a("s_cmp_ge_u32 s2, 256\ns_cbranch_scc1 Lend")
    a("s_load_dwordx16 s[16:31], s[0:1], 0\ns_load_dwordx8 s[32:39], s[0:1], 64")
    a(f"v_lshrrev_b32 v1, 6, v0\nv_and_b32 v0, 63, v0\ns_and_b32 s{sX}, s2, 7\nv_readfirstlane_b32 s{sW}, v1\ns_lshr_b32 s{sJ}, s2, 3")
    a(f"s_and_b32 s14, s{sX}, 1\ns_lshl_b32 s14, s14, 3\ns_and_b32 s15, s{sJ}, 7\ns_add_u32 s{sR}, s14, s15")
    a(f"s_lshr_b32 s14, s{sX}, 1\ns_lshl_b32 s14, s14, 2\ns_lshr_b32 s80, s{sJ}, 3\ns_add_u32 s{sC}, s14, s80")
    a(f"s_lshl_b32 s80, s80, 1\ns_add_u32 s{sROT}, s15, s80")
    a(f"s_and_b32 s14, s{sJ}, 3\ns_lshl_b32 s15, s{sX}, 2\ns_add_u32 s{sHEAD}, s15, s14\ns_lshr_b32 s{sQB}, s{sJ}, 2")
    a(f"s_and_b32 s{sSUB}, s{sX}, 3\ns_and_b32 s15, s{sX}, 4\ns_add_u32 s{sCB}, s15, s14")
    a(f"s_and_b32 s{sI}, s{sW}, 3")
    a(f"s_mov_b32 s{sMASK}, 0xffff\ns_mov_b32 s{sMASK+1}, 0xffff")
    sizes = {SX: (16, 2097152), SWQ: (18, 1572864), SWO: (20, 524288), SW1: (24, 1409024), SB1: (26, 2752),
             SW2: (28, 1409024), SB2: (30, 1024), SG: (32, 1024), SOUT: (34, 2097152), SWS: (38, 268435456)}
    for b, (p, sz) in sizes.items():
        a(f"s_mov_b32 s{b+2}, {sz}\ns_mov_b32 s{b+3}, 0x20000")
    a(f"s_cmp_eq_u32 s{sC}, 15\ns_cselect_b32 s{SW1+2}, 0, s{SW1+2}")
    a(f"s_cmp_ge_u32 s{sW}, 4\ns_cbranch_scc1 Lload")

    def mk_srd(lst):
        for b in lst:
            p = sizes[b][0]
            a(f"s_mov_b32 s{b}, s{p}\ns_mov_b32 s{b+1}, s{p+1}")
    def nonce(v):
        a(f"v_readfirstlane_b32 s14, v{v}\ns_mul_i32 s{sN}, s14, 0x9E3779B1\ns_add_u32 s{sN}, s{sN}, 0x7F4A7C15\ns_or_b32 s{sN}, s{sN}, 0x80000000")
        a(f"s_xor_b32 s15, s{sN}, 1\ns_cmp_eq_u32 s{sN}, s14\ns_cselect_b32 s{sN}, s15, s{sN}")

    XF, ACC, WF, BI = 16, 144, 192, 240
    vL31, vH, vXA, vWL, vWA, vT, vQS, vST = 1, 2, 3, 7, 8, 9, 12, 13
    a(f"v_and_b32 v{vL31}, 31, v0\nv_lshrrev_b32 v{vH}, 5, v0")
    a(f"v_bfe_u32 v9, v0, 1, 3\nv_xor_b32 v9, v9, v{vH}\nv_lshlrev_b32 v9, 4, v9\nv_lshl_add_u32 v9, v{vL31}, 7, v9")
    a(f"s_lshl_b32 s14, s{sI}, 12\nv_add_u32 v{vXA}, s14, v9")
    for k in range(1, 4): a(f"v_xor_b32 v{vXA+k}, {32*k}, v{vXA}")
    a(f"v_bfe_u32 v9, v0, 2, 2\nv_lshl_add_u32 v9, v{vH}, 3, v9\nv_mul_u32_u24 v9, 192, v9\nv_bfe_u32 v10, v0, 4, 1\nv_lshl_add_u32 v9, v10, 5, v9")
    a(f"v_and_b32 v10, 3, v0\nv_lshl_add_u32 v{vWL}, v10, 3, v9")
    a(f"v_lshlrev_b32 v{vQS}, 4, v0")
    a(f"v_and_b32 v9, 0x33, v0\nv_and_b32 v10, 4, v0\nv_lshl_add_u32 v9, v10, 1, v9\nv_bfe_u32 v10, v0, 3, 1\nv_lshl_add_u32 v9, v10, 2, v9\nv_lshlrev_b32 v9, 4, v9")
    a(f"v_and_b32 v11, 15, v0\nv_lshl_add_u32 v11, v{vH}, 4, v11\nv_lshlrev_b32 v11, 4, v11\nv_bfe_u32 v10, v0, 4, 1\nv_lshl_add_u32 v11, v10, 17, v11\nv_add_u32 v10, 1024, v11")
    a(f"s_lshl_b32 s14, s{sR}, 2\ns_add_u32 s80, s14, s{sI}")
    for i in range(3):
        o1, o2, sc = [81, 83, 92][i], [82, 84, 93][i], [90, 94, 100][i]
        a(f"s_mul_i32 s14, s{sC}, 3\ns_add_u32 s14, s14, {i}\ns_lshr_b32 s15, s14, 4\ns_and_b32 s14, s14, 15\ns_lshl_b32 s14, s14, 7\ns_add_u32 s14, s14, s80")
        a(f"s_lshl_b32 s{o1}, s14, 11\ns_add_u32 s{o1}, s{o1}, {WKV}\ns_lshl_b32 s14, s14, 10")
        a(f"s_movk_i32 s{o2}, 512\ns_cmp_eq_u32 s15, 1\ns_cselect_b32 s{o2}, 131072, s{o2}\ns_cselect_b64 vcc, -1, 0\nv_cndmask_b32 v{vST+i}, v10, v9, vcc")
        a(f"s_cmp_eq_u32 s15, 0\ns_cselect_b32 s{o2}, 65536, s{o2}\ns_cselect_b32 s{o1}, s14, s{o1}\ns_cselect_b32 s{sc}, 0x3eb8aa3b, 1.0\ns_cselect_b64 vcc, -1, 0\nv_cndmask_b32 v{vST+i}, v{vST+i}, v{vQS}, vcc")
        a(f"s_add_u32 s{o2}, s{o2}, s{o1}\ns_mov_b32 s{sc+1}, s{sc}")
    for k in range(16): a(f"v_mov_b32 v{BI+k}, 0")
    a(f"v_mov_b32 v9, 0x3f80\nv_cmp_gt_u32 vcc, 32, v0\ns_mul_i32 s14, s{sC}, 192\nv_lshl_add_u32 v10, v{vL31}, 1, s14\nv_cndmask_b32 v{BI+12}, 0, v9, vcc")
    a("s_waitcnt lgkmcnt(0)")
    mk_srd([SWS, SB1]); dbg_srd(76)
    a(f"s_mov_b32 s15, {EPOCH}\nbuffer_load_dword v11, off, {srd(SWS)}, s15 sc1")
    for i in range(3): a(f"buffer_load_ushort v{BI+4*i}, v10, {srd(SB1)}, 0 offen offset:{64*i}")
    a(f"s_mul_i32 s85, s80, 86\ns_mul_i32 s14, s{sC}, 6\ns_add_u32 s85, s85, s14\ns_lshl_b32 s85, s85, 10\ns_add_u32 s85, s85, {WH}\ns_add_u32 s86, s85, 4096")
    a(f"s_lshl_b32 s14, s{sC}, 2\ns_add_u32 s14, s14, s{sI}\ns_lshl_b32 s14, s14, 5\ns_add_u32 s14, s14, s{sR}\ns_lshl_b32 s14, s14, 2\ns_add_u32 s87, s14, {FQ}")
    a(f"s_lshl_b32 s14, s80, 5\ns_add_u32 s14, s14, s{sC}\ns_lshl_b32 s14, s14, 2\ns_add_u32 s88, s14, {FH}")
    a("s_waitcnt vmcnt(0)")
    nonce(11)
    stamp(0)

    lg = LG(a)
    slots = [1, 2, 3, 4, 0, 1, 2, 3]
    segs = [0, 57344, 57344, 114688, 0, 0, 57344, 57344]
    bbase = [143360, 114688, 126976, 0, 12288, 28672, 40960, 57344]
    halves = [("A", s, hf) for s in range(8) for hf in range(2)] + [("B", t, hf) for t in range(8) for hf in range(2)]
    seg = [0]
    PB = {("A", 1): 0, ("A", 3): 2, ("A", 4): 4, ("A", 7): 6, ("B", 2): 8, ("B", 6): 10}
    def prep(h):
        k, s, hf = halves[h]
        if hf: return
        if k == "A":
            if segs[s] != seg[0]:
                for q in range(4): a(f"v_add_u32 v{vXA+q}, {(segs[s]-seg[0]) & 0xffffffff:#x}, v{vXA+q}")
                seg[0] = segs[s]
            a(f"v_add_u32 v{vWA}, {slots[s]*SLOT+16384}, v{vWL}")
        else:
            a(f"v_add_u32 v{vWA}, {bbase[s]}, v{vWL}")
        if k == "A" or s in (0, 2, 4):
            if PROF == 2 and (k, s) in PB: a(f"s_memtime s[{16+2*PB[(k,s)]}:{17+2*PB[(k,s)]}]")
            a("s_barrier")
            if PROF == 2 and (k, s) in PB: a(f"s_memtime s[{18+2*PB[(k,s)]}:{19+2*PB[(k,s)]}]")
    def reads(h):
        k, s, hf = halves[h]
        L = []
        for ksl in range(2):
            ks = 2 * hf + ksl
            if k == "A": L.append((f"ds_read_b128 {vr(XF+16*s+4*ks,4)}, v{vXA+ks} offset:{slots[s]*SLOT-segs[s]}", (h, ksl, "x")))
            for t in range(3):
                d = WF + 24 * hf + 12 * ksl + 4 * t
                for u in range(2):
                    L.append((f"ds_read_b64_tr_b16 {vr(d+2*u,2)}, v{vWA} offset:{t*64+ks*3072+u*768}", (h, ksl, t)))
        return L
    def emit_reads(L, n):
        for _ in range(min(n, len(L))):
            ins, tag = L.pop(0); a(ins); lg.add(tag)
    def half(h, pat='TTT'):
        k, s, hf = halves[h]
        L = []
        if h + 1 < len(halves):
            prep(h + 1); L = reads(h + 1)
        for j in range(6):
            ksl, t = j // 3, j % 3
            ks = 2 * hf + ksl
            lg.wait((h, ksl, "x"), (h, ksl, t))
            x = vr(XF + 16 * s + 4 * ks, 4); w = vr(WF + 24 * hf + 12 * ksl + 4 * t, 4); d = vr(ACC + 16 * t, 16)
            c = "0" if (h == 0 and ksl == 0) else d
            a(f"{MF} {d}, {x}, {w}, {c}" if (k == "A" and pat[t] == "N") else f"{MF} {d}, {w}, {x}, {c}")
            emit_reads(L, 3)
        assert not L
    prep(0)
    stamp(1)
    emit_reads(reads(0), 99)
    a(f"s_cmp_eq_u32 s{sC}, 10\ns_cbranch_scc1 LA_TTN\ns_cmp_gt_u32 s{sC}, 10\ns_cbranch_scc1 LA_NNN")
    q0, seg0 = list(lg.q), seg[0]
    for pat in ("TTT", "TTN", "NNN"):
        lg.q = list(q0); seg[0] = seg0
        a(f"LA_{pat}:")
        for h in range(16): half(h, pat)
        stamp(2); st3(0)
        a("s_nop 7")
        if pat[0] == "N": a("s_nop 1")
        for i in range(3):
            b = ACC + 16 * i
            o1, o2, sc = [81, 83, 92][i], [82, 84, 93][i], [90, 94, 100][i]
            if pat[i] == "T":
                for k in range(8): a(f"v_pk_mul_f32 {vr(b+2*k,2)}, {vr(b+2*k,2)}, s[{sc}:{sc+1}]")
            for k in range(8): a(f"v_cvt_pk_bf16_f32 v{b+k}, v{b+2*k}, v{b+2*k+1}")
            a(f"buffer_store_dwordx4 {vr(b,4)}, v{vST+i}, {srd(SWS)}, s{o1} offen sc1\nbuffer_store_dwordx4 {vr(b+4,4)}, v{vST+i}, {srd(SWS)}, s{o2} offen sc1")
            st3(1 + i)
        if pat != "NNN": a("s_branch LB")
    a(f"s_cmp_eq_u32 s{sC}, 15\ns_cbranch_scc1 Lgate")
    a("LB:")
    for i in range(3): a(f"{MF} {vr(ACC+16*i,16)}, {vr(BI+4*i,4)}, {vr(BI+12,4)}, 0")
    for h in range(16, 32):
        if FQPOS == h - 16:
            st3(7); a("s_waitcnt vmcnt(0)"); st3(8); flag_store(87, 9); stamp(11)
        half(h)
        if h - 16 < 3: st3(4 + h - 16)
    stamp(3); st3(9)
    def hstore(i):
        for m in range(2):
            o = (2 * i + m) * 1024
            a(f"buffer_store_dwordx4 {vr(ACC+16*i+4*m,4)}, v{vQS}, {srd(SWS)}, s{85 if o < 4096 else 86} offen offset:{o % 4096} sc1")
    a("s_nop 7")
    for i in range(3):
        b = ACC + 16 * i
        if i == 1: a(f"s_cmp_eq_u32 s{sC}, 14\ns_cbranch_scc1 Latt")
        for k in range(16): a(f"v_max_f32 v{b+k}, 0, v{b+k}")
        for k in range(8): a(f"v_pk_mul_f32 {vr(b+2*k,2)}, {vr(b+2*k,2)}, {vr(b+2*k,2)}")
        for k in range(8): a(f"v_cvt_pk_bf16_f32 v{b+k}, v{b+2*k}, v{b+2*k+1}")
        if not HDEF: hstore(i)
    a("s_branch Latt")
    a("Lgate:\ns_waitcnt lgkmcnt(0)")
    a(f"v_lshlrev_b32 v11, 4, v{vH}\nv_add_u32 v11, {GLDS}, v11")
    def gread(s_):
        a(f"s_add_u32 s14, s{sROT}, {s_}\ns_and_b32 s14, s14, 7\ns_lshl_b32 s14, s14, 7\nv_add_u32 v9, s14, v11")
        for ks in range(4): a(f"ds_read_b128 {vr(WF+16*(s_&3)+4*ks,4)}, v9 offset:{ks*32}")
    for s_ in range(3): gread(s_)
    a("s_waitcnt vmcnt(0)")
    flag_store(87, 10); stamp(11)
    a("s_barrier\ns_barrier")
    for s_ in range(8):
        if s_ + 3 < 8: gread(s_ + 3)
        a(f"s_waitcnt lgkmcnt({4*min(3, 7-s_)})")
        for ks in range(4):
            d = vr(ACC + 16 * (ks & 1), 16)
            a(f"{MF} {d}, {vr(WF+16*(s_&3)+4*ks,4)}, {vr(XF+16*s_+4*ks,4)}, {'0' if s_ == 0 and ks < 2 else d}")
    a(f"s_nop 7\ns_nop 7\nv_add_f32 v{ACC}, v{ACC}, v{ACC+16}")
    a(f"v_mul_f32 v9, 0xbfb8aa3b, v{ACC}\nv_exp_f32 v9, v9\ns_lshl_b32 s14, s80, 7\ns_add_u32 s14, s14, {WG}\nv_add_f32 v9, 1.0, v9\nv_rcp_f32 v9, v9\nv_lshlrev_b32 v10, 2, v{vL31}\ns_nop 0")
    a(f"buffer_store_dword v9, v10, {srd(SWS)}, s14 offen sc1")

    X, Y, OA, OB, QA, QB, KB, VB, IDX, vK, vV, vGF, vGA, vFL, GA, GBv = 16, 32, 48, 64, 80, 84, 88, 96, 112, 113, 114, 115, 116, 117, 118, 119
    a("Latt:")
    st3(10)
    for k in range(32): a(f"v_mov_b32 v{OA+k}, 0")
    a(f"v_and_b32 v9, 27, v0\nv_cmp_eq_u32 vcc, 16, v9\nv_mov_b32 v10, 0x3f803f80\nv_mov_b32 v{IDX}, 0xdddddddd\nv_add_u32 v{vK}, {58*2048}, v{vQS}")
    a(f"v_cndmask_b32 v{VB}, 0, v10, vcc")
    for k in range(1, 16): a(f"v_mov_b32 v{VB+k}, v{VB}")
    a(f"v_and_b32 v9, 15, v0\nv_lshl_add_u32 v9, v{vH}, 4, v9\nv_lshlrev_b32 v9, 4, v9\nv_add_u32 v{vV}, {58*2048+1024}, v9")
    a(f"s_lshl_b32 s14, s{sI}, 13\ns_add_u32 s14, s14, {RING+6144}\nv_add_u32 v9, s14, v{vQS}")
    a(f"s_lshl_b32 s14, s{sQB}, 2\ns_add_u32 s80, s14, s{sI}\ns_lshl_b32 s14, s80, 8\ns_add_u32 s15, s14, {FH+60}\ns_add_u32 s14, s14, {WG}\nv_lshl_add_u32 v{vGA}, v{vL31}, 2, s14")
    a(f"v_and_b32 v10, 1, v0\nv_lshl_add_u32 v{vGF}, v10, 7, s15")
    a(f"s_lshl_b32 s14, s80, 2\ns_lshr_b32 s15, s{sHEAD}, 3\ns_add_u32 s14, s14, s15\ns_lshl_b32 s14, s14, 5\ns_and_b32 s15, s{sHEAD}, 7\ns_add_u32 s14, s14, s15\ns_lshl_b32 s14, s14, 2\ns_add_u32 s89, s14, {FO}")
    a(f"s_lshl_b32 s14, s80, 6\ns_add_u32 s14, s14, s{sHEAD}\ns_lshl_b32 s81, s14, 10\ns_add_u32 s81, s81, {WO_}\ns_add_u32 s82, s81, 32768")
    a(f"s_mov_b32 s{sCNT}, 0")
    a("s_barrier")
    stamp(4); cstamp(7); st3(11)
    if PRIO: a(f"s_setprio {PRIO}")
    a(f"ds_read_b128 {vr(QA,4)}, v9\nds_read_b128 {vr(KB,4)}, v{vK} offset:{5*2048}\nds_read_b128 {vr(QB,4)}, v9 offset:1024\nds_read_b128 {vr(KB+4,4)}, v{vK} offset:{4*2048}")
    a(f"s_mov_b64 exec, s[{sMASK}:{sMASK+1}]\nds_read_b128 {vr(VB,4)}, v{vV} offset:{5*2048}\nds_read_b128 {vr(VB+4,4)}, v{vV} offset:{5*2048+512}\ns_mov_b64 exec, -1")
    a(f"s_waitcnt lgkmcnt(4)\n{MF} {vr(X,16)}, {vr(KB,4)}, {vr(QA,4)}, 0\ns_waitcnt lgkmcnt(2)\ns_nop 7\ns_nop 3")
    def ex(b, lo, hi):
        for k in range(lo, hi + 1): a(f"v_exp_f32 v{b+k}, v{b+k}")
    ex(X, 0, 1)
    def tile(u, koff, voff, last):
        kc, kn = KB + 4 * (u & 1), KB + 4 * ((u + 1) & 1)
        vc, vn = VB + 8 * (u & 1), VB + 8 * ((u + 1) & 1)
        ex(X, 2, 4)
        a(f"{MF} {vr(Y,16)}, {vr(kc,4)}, {vr(QB,4)}, 0")
        a("s_waitcnt lgkmcnt(0)")
        if koff is not None: a(f"ds_read_b128 {vr(kc,4)}, v{vK} offset:{koff}")
        ex(X, 5, 9)
        a(f"{SM} {vr(OA,16)}, {vr(vc,4)}, {vr(X,8)}, v{IDX}")
        if voff is not None:
            a(f"s_mov_b64 exec, s[{sMASK}:{sMASK+1}]\nds_read_b128 {vr(vn,4)}, v{vV} offset:{voff}\nds_read_b128 {vr(vn+4,4)}, v{vV} offset:{voff+512}\ns_mov_b64 exec, -1")
        ex(X, 10, 15); ex(Y, 0, 1)
        a(f"{SM} {vr(OA,16)}, {vr(vc+4,4)}, {vr(X+8,8)}, v{IDX}")
        ex(Y, 2, 4)
        if not last: a(f"{MF} {vr(X,16)}, {vr(kn,4)}, {vr(QA,4)}, 0")
        ex(Y, 5, 9)
        a(f"{SM} {vr(OB,16)}, {vr(vc,4)}, {vr(Y,8)}, v{IDX}")
        ex(Y, 10, 15)
        if not last: ex(X, 0, 1)
        else: a("s_nop 1")
        a(f"{SM} {vr(OB,16)}, {vr(vc+4,4)}, {vr(Y+8,8)}, v{IDX}")
    a("Lloop:")
    for u in range(4): tile(u, (3 - u) * 2048, (4 - u) * 2048, False)
    a(f"s_add_u32 s{sCNT}, s{sCNT}, 1\nv_add_u32 v{vK}, 0xffffe000, v{vK}\nv_add_u32 v{vV}, 0xffffe000, v{vV}")
    a(f"s_bitcmp1_b32 {(1<<1)|(1<<3)|(1<<12)|(1<<13)|(1<<15)}, s{sCNT}\ns_cbranch_scc0 Lloop")
    a(f"s_cmp_eq_u32 s{sCNT}, 15\ns_cbranch_scc1 Llast\ns_cmp_eq_u32 s{sCNT}, 12\ns_cbranch_scc1 Lev2\ns_cmp_eq_u32 s{sCNT}, 13\ns_cbranch_scc1 Lev3\ns_cmp_eq_u32 s{sCNT}, 3\ns_cbranch_scc1 Lev1")
    if HDEF:
        a(f"s_barrier\ns_cmp_eq_u32 s{sC}, 15\ns_cbranch_scc1 Lloop")
        hstore(0)
        a(f"s_cmp_eq_u32 s{sC}, 14\ns_cbranch_scc1 Lloop")
        hstore(1); hstore(2)
        a("s_branch Lloop\nLev1:\ns_waitcnt vmcnt(0)")
        flag_store(88, 9)
        a("s_barrier\ns_branch Lloop")
    else:
        a("s_waitcnt vmcnt(0)")
        flag_store(88, 9)
        a("Lev1:\ns_barrier\ns_branch Lloop")
    a(f"Lev2:\nbuffer_load_dword v{vFL}, v{vGF}, {srd(SWS)}, 0 offen sc1\ns_branch Lloop")
    a(f"Lev3:\ns_waitcnt vmcnt(0)\nv_cmp_ne_u32 vcc, s{sN}, v{vFL}\ns_nop 4\ns_cmp_eq_u64 vcc, 0\ns_cbranch_scc1 Lev3b")
    poll(vGF, vFL, "Lpg")
    a(f"Lev3b:\nbuffer_load_dword v{GA}, v{vGA}, {srd(SWS)}, 0 offen sc1\nbuffer_load_dword v{GBv}, v{vGA}, {srd(SWS)}, 0 offen offset:128 sc1\ns_branch Lloop")
    a(f"Llast:\nv_add_u32 v{vK}, 4096, v{vK}\nv_add_u32 v{vV}, 4096, v{vV}")
    for u in range(4): tile(u, (1 - u) * 2048 if u < 2 else None, (2 - u) * 2048 if u < 3 else None, u == 3)
    stamp(5); cstamp(8)
    a("s_mov_b32 s14, 0x7f800000\ns_mov_b32 s15, 0x30800000\ns_mov_b32 s92, 0x5f800000")
    for n, O in enumerate((OA, OB)):
        if n == 1: a("s_nop 3")
        a(f"v_max3_f32 v9, |v{O}|, |v{O+1}|, |v{O+2}|\nv_max3_f32 v9, v9, |v{O+3}|, |v{O+4}|\nv_max3_f32 v9, v9, |v{O+5}|, |v{O+6}|\nv_max_f32 v9, v9, |v{O+7}|")
        a(f"v_cmp_gt_f32 s[{80+6*n}:{81+6*n}], s14, v9" if False else f"v_cmp_gt_f32 vcc, s14, v9\nv_cmp_lt_f32 s[84:85], s15, v{O+8}\nv_cmp_gt_f32 s[86:87], s92, v{O+8}\ns_nop 4")
        a("s_and_b64 vcc, vcc, s[84:85]\ns_and_b64 vcc, vcc, s[86:87]\ns_cmp_lg_u64 vcc, -1\ns_cbranch_scc1 Lslow")
    if FORCE_SLOW: a("s_branch Lslow")
    a("Lfin:")
    a(f"v_rcp_f32 v9, v{OA+8}\nv_rcp_f32 v10, v{OB+8}\ns_waitcnt vmcnt(0)\nv_mul_f32 v9, v9, v{GA}\nv_mul_f32 v10, v10, v{GBv}")
    for n, O in enumerate((OA, OB)):
        for k in range(8): a(f"v_mul_f32 v{O+k}, v{9+n}, v{O+k}")
        for k in range(4): a(f"v_cvt_pk_bf16_f32 v{O+k}, v{O+2*k}, v{O+2*k+1}")
        a(f"buffer_store_dwordx4 {vr(O,4)}, v{vQS}, {srd(SWS)}, s{81+n} offen sc1")
    a("s_waitcnt vmcnt(0)")
    flag_store(89, 9)
    stamp(6)
    prof_out()
    a("s_endpgm")
    NA, NB = 120, 136
    a("Lslow:")
    a(f"v_mov_b32 v{vK}, v{vQS}\nv_mov_b32 v9, 0xff800000\nv_mov_b32 v10, 0xff800000\ns_mov_b32 s{sCNT}, 0")
    a(f"Ls1:\nds_read_b128 {vr(KB,4)}, v{vK}\nv_add_u32 v{vK}, 2048, v{vK}\ns_add_u32 s{sCNT}, s{sCNT}, 1\ns_waitcnt lgkmcnt(0)")
    a(f"{MF} {vr(X,16)}, {vr(KB,4)}, {vr(QA,4)}, 0\n{MF} {vr(Y,16)}, {vr(KB,4)}, {vr(QB,4)}, 0\ns_nop 7\ns_nop 3")
    for n, S in enumerate((X, Y)):
        for k in range(8): a(f"v_max3_f32 v{9+n}, v{9+n}, v{S+2*k}, v{S+2*k+1}")
    a(f"s_cmp_lt_u32 s{sCNT}, 64\ns_cbranch_scc1 Ls1")
    for n, N in enumerate((NA, NB)):
        a(f"v_mov_b32 v11, v{9+n}\ns_nop 1\nv_permlane32_swap_b32 v{9+n}, v11\ns_nop 1\nv_max_f32 v11, v11, v{9+n}\nv_xor_b32 v11, 0x80000000, v11")
        for k in range(16): a(f"v_mov_b32 v{N+k}, v11")
    for k in range(32): a(f"v_mov_b32 v{OA+k}, 0")
    a(f"v_mov_b32 v{vK}, v{vQS}\ns_mov_b32 s{sCNT}, 0")
    a(f"Ls2:\nds_read_b128 {vr(KB,4)}, v{vK}\ns_mov_b64 exec, s[{sMASK}:{sMASK+1}]\nds_read_b128 {vr(VB,4)}, v{vV}\nds_read_b128 {vr(VB+4,4)}, v{vV} offset:512\ns_mov_b64 exec, -1")
    a(f"v_add_u32 v{vK}, 2048, v{vK}\nv_add_u32 v{vV}, 2048, v{vV}\ns_add_u32 s{sCNT}, s{sCNT}, 1\ns_waitcnt lgkmcnt(0)")
    a(f"{MF} {vr(X,16)}, {vr(KB,4)}, {vr(QA,4)}, {vr(NA,16)}\n{MF} {vr(Y,16)}, {vr(KB,4)}, {vr(QB,4)}, {vr(NB,16)}\ns_nop 7\ns_nop 3")
    ex(X, 0, 15); ex(Y, 0, 15)
    a("s_nop 1")
    a(f"{SM} {vr(OA,16)}, {vr(VB,4)}, {vr(X,8)}, v{IDX}\n{SM} {vr(OB,16)}, {vr(VB,4)}, {vr(Y,8)}, v{IDX}")
    a(f"{SM} {vr(OA,16)}, {vr(VB+4,4)}, {vr(X+8,8)}, v{IDX}\n{SM} {vr(OB,16)}, {vr(VB+4,4)}, {vr(Y+8,8)}, v{IDX}")
    a(f"s_cmp_lt_u32 s{sCNT}, 64\ns_cbranch_scc1 Ls2\ns_nop 7\ns_nop 7\ns_branch Lfin")

    a("Lload:")
    vm = VM(a)
    a(f"v_lshrrev_b32 v12, 3, v0\nv_and_b32 v13, 7, v0\nv_lshrrev_b32 v14, 4, v0\nv_xor_b32 v13, v13, v14\nv_lshlrev_b32 v12, 10, v12")
    a(f"s_lshl_b32 s14, s{sR}, 2\ns_add_u32 s14, s14, s{sI}\ns_lshl_b32 s14, s14, 15\nv_add_u32 v12, s14, v12")
    a(f"v_lshl_add_u32 v1, v13, 4, v12\nv_xor_b32 v2, 64, v1\nv_add_u32 v2, 8192, v2\nv_add_u32 v3, 16384, v1\nv_add_u32 v4, 16384, v2")
    a(f"s_mul_i32 s14, s{sC}, 192\ns_lshl_b32 s15, s{sI}, 4")
    for u in range(3):
        a(f"v_add_u32 v12, {64*u}, v0\nv_mul_u32_u24 v13, 5462, v12\nv_lshrrev_b32 v13, 16, v13\nv_mul_u32_u24 v14, 12, v13\nv_sub_u32 v12, v12, v14\nv_lshl_add_u32 v12, v12, 4, s14\nv_add_u32 v13, s15, v13")
        a(f"v_mul_u32_u24 v14, 3072, v13\nv_add_u32 v{5+u}, v14, v12\nv_mul_u32_u24 v14, 2752, v13\nv_add_u32 v{8+u}, v14, v12")
    a(f"v_lshlrev_b32 v11, 4, v0\ns_lshl_b32 s80, s{sI}, 12\ns_mul_i32 s81, s{sI}, 3072")
    a("s_waitcnt lgkmcnt(0)")
    mk_srd([SX, SWQ, SWS, SW1])
    a(f"s_mov_b32 s15, {EPOCH}\nbuffer_load_dword v15, off, {srd(SWS)}, s15 sc1")
    vm.add("ep")
    def dma(mreg, mimm, v, sr, so, tag, off=0, sc=""):
        if mreg is not None: a(f"s_add_u32 m0, s{mreg}, {mimm}\ns_nop 0")
        a(f"buffer_load_dwordx4 v{v}, {srd(sr)}, s{so} offen {f'offset:{off}' if off else ''} {sc} lds")
        vm.add(tag)
    def stA(s):
        a(f"s_add_u32 s14, s{sROT}, {s}\ns_and_b32 s14, s14, 7\ns_lshl_b32 s82, s14, 7\ns_mul_i32 s83, s14, 196608")
        b = slots[s] * SLOT
        for u in range(4): dma(80, b + u * 1024, 1 + u, SX, 82, f"A{s}")
        for t in range(3): dma(81, b + 16384 + t * 1024, 5 + t, SWQ, 83, f"A{s}")
    def stB(t):
        a(f"s_add_u32 s14, s{sROT}, {t}\ns_and_b32 s14, s14, 7\ns_mul_i32 s83, s14, 176128")
        for i in range(3): dma(81, bbase[t] + i * 1024, 8 + i, SW1, 83, f"B{t}")
    for s in range(LOOK): stA(s)
    mk_srd([SWO, SW2, SOUT, SB2, SG]); dbg_srd(68)
    stamp(0)
    nxt = {0: [("A", 3)], 1: [("A", 4)], 2: [("A", 5)], 3: [("A", 6)], 4: [("A", 7), ("B", 0)], 5: [("B", 1), ("B", 2)], 6: [("B", 3), ("B", 4)], 7: [("B", 5), ("B", 6)]}
    if LOOK == 4: nxt[0] = [("A", 4)]; nxt[1] = [("B", 0)]; nxt[4] = [("A", 7)]
    if LOOK == 2: nxt[0] = [("A", 2), ("A", 3)]
    for s in range(8):
        vm.wait(f"A{s}")
        if s == 0: nonce(15)
        a("s_barrier")
        if s == 1:
            a(f"s_mov_b32 m0, {GLDS}\ns_mov_b32 s14, 0")
            dma(None, 0, 11, SG, 14, "G")
        for k, n in nxt[s]: (stA if k == "A" else stB)(n)
    stamp(1)
    a(f"s_lshr_b32 s84, s{sHEAD}, 1\ns_lshl_b32 s85, s{sI}, 7\ns_add_u32 s85, s85, {FQ}\nv_and_b32 v12, 15, v0\nv_lshlrev_b32 v12, 2, v12")
    a(f"s_add_u32 s14, s84, 16\ns_mul_i32 s14, s14, 21846\ns_lshr_b32 s14, s14, 16\ns_lshl_b32 s14, s14, 9\ns_add_u32 s14, s14, s85\nv_add_u32 v1, s14, v12")
    a(f"s_add_u32 s14, s84, 32\ns_mul_i32 s14, s14, 21846\ns_lshr_b32 s14, s14, 16\ns_lshl_b32 s14, s14, 9\ns_add_u32 s14, s14, s85\nv_add_u32 v13, s14, v12\nv_cmp_gt_u32 vcc, 16, v0")
    a(f"s_mul_i32 s14, s84, 21846\ns_lshr_b32 s14, s14, 16\ns_lshl_b32 s14, s14, 9\nv_cndmask_b32 v1, v13, v1, vcc\ns_and_b32 s15, s{sI}, 1\ns_lshl_b32 s15, s15, 8\ns_add_u32 s14, s14, s15")
    a(f"s_lshl_b32 s15, s{sQB}, 1\ns_lshr_b32 s86, s{sI}, 1\ns_add_u32 s15, s15, s86\ns_lshl_b32 s15, s15, 2\ns_add_u32 s14, s14, s15\ns_add_u32 s14, s14, {FQ}")
    a(f"v_and_b32 v12, 1, v0\nv_lshl_add_u32 v13, v12, 7, s14\nv_cmp_gt_u32 vcc, 32, v0\nv_lshrrev_b32 v12, 2, v0\ns_nop 0\nv_cndmask_b32 v1, v13, v1, vcc\nv_and_b32 v13, 3, v0")
    a(f"v_lshlrev_b32 v2, 10, v12\nv_lshl_add_u32 v2, v13, 4, v2\ns_lshl_b32 s14, s{sCB}, 7\nv_add_u32 v2, s14, v2\nv_add_u32 v3, 64, v2")
    a(f"s_lshl_b32 s85, s{sI}, 11\ns_lshl_b32 s84, s{sHEAD}, 17\ns_add_u32 s84, s84, {WKV}\ns_add_u32 s84, s84, s85")
    a(f"s_lshl_b32 s14, s{sHEAD}, 6\ns_lshl_b32 s15, s{sQB}, 3\ns_add_u32 s14, s14, s15\ns_lshl_b32 s15, s{sI}, 1\ns_add_u32 s14, s14, s15\ns_lshl_b32 s88, s14, 10")
    a(f"s_lshl_b32 s89, s{sI}, 13\ns_add_u32 s89, s89, {RING}")
    vm.wait("B1")
    a("s_barrier")
    stB(7)
    vm.wait("B3")
    a("s_barrier")
    vm.all()
    a("s_barrier")
    stamp(2)
    poll(1, 12, "Lpq")
    stamp(3)
    def kvdma(g0, g1, tag):
        for g in range(g0, g1 - 1, -1):
            a(f"s_add_u32 m0, s85, {g*8192}\ns_add_u32 s86, s84, {g*8192}")
            dma(None, 0, 11, SWS, 86, tag, sc="sc1"); dma(None, 0, 11, SWS, 86, tag, off=1024, sc="sc1")
    dma(89, 6144, 11, SWS, 88, "Q", sc="sc1")
    dma(None, 0, 11, SWS, 88, "Q", off=1024, sc="sc1")
    kvdma(15, 14, "KV1")
    kvdma(13, 12, "KV2")
    vm.wait("KV1")
    a("s_barrier")
    stamp(4)
    kvdma(11, 7, "KV2b")
    vm.wait("KV2")
    a("s_barrier")
    kvdma(6, 0, "KV3")
    FA, HB, W2F, WOF, OF = 16, 80, 112, 128, 192
    a(f"s_lshl_b32 s90, s{sI}, 14\ns_lshl_b32 s91, s{sI}, 17")
    def w2dma(n):
        sl = (n & 3) * 2048
        if n < 22:
            a(f"s_add_u32 s14, s90, {n*65536}")
            dma(89, sl, 2, SW2, 14, f"W{n}"); dma(89, sl + 1024, 3, SW2, 14, f"W{n}")
        else:
            a(f"s_add_u32 s14, s91, {(n-22)*16384}")
            dma(89, sl, 2, SWO, 14, f"W{n}"); dma(89, sl + 1024, 3, SWO, 14, f"W{n}")
    for n in range(3): w2dma(n)
    a(f"v_lshrrev_b32 v14, 5, v0\nv_bfe_u32 v12, v0, 2, 2\nv_lshl_add_u32 v12, v14, 2, v12\nv_lshlrev_b32 v12, 6, v12\nv_bfe_u32 v13, v0, 4, 1\nv_lshl_add_u32 v12, v13, 5, v12")
    a(f"v_and_b32 v13, 3, v0\nv_lshl_add_u32 v12, v13, 3, v12\nv_add_u32 v4, s89, v12")
    a(f"s_lshl_b32 s14, s{sQB}, 2\ns_add_u32 s92, s14, s{sSUB}")
    a(f"s_lshl_b32 s14, s92, 8\ns_add_u32 s14, s14, {FH}\nv_bfe_u32 v12, v0, 4, 1\nv_and_b32 v13, 15, v0\nv_lshlrev_b32 v12, 7, v12\nv_lshl_add_u32 v12, v13, 2, v12\nv_add_u32 v5, s14, v12")
    a(f"v_and_b32 v13, 31, v0\ns_lshl_b32 s14, s92, 8\ns_add_u32 s14, s14, {WG}\nv_lshl_add_u32 v6, v13, 2, s14")
    a(f"s_lshl_b32 s14, s{sCB}, 7\nv_lshl_add_u32 v7, v13, 1, s14")
    a(f"s_lshl_b32 s14, s92, 2\ns_add_u32 s14, s14, s{sI}\ns_lshl_b32 s14, s14, 7\ns_add_u32 s14, s14, {FO}\nv_and_b32 v12, 7, v0\nv_lshl_add_u32 v8, v12, 2, s14")
    a(f"s_mul_i32 s93, s92, {2*86*1024}\ns_lshl_b32 s14, s{sI}, 10\ns_add_u32 s93, s93, s14\ns_add_u32 s93, s93, {WH}\nv_add_u32 v9, {86*1024}, v11")
    a(f"s_lshr_b32 s14, s{sI}, 1\ns_lshl_b32 s14, s14, 5\ns_lshl_b32 s15, s92, 6\ns_add_u32 s14, s14, s15\nv_add_u32 v12, s14, v13\nv_lshlrev_b32 v12, 10, v12\nv_lshl_add_u32 v12, v14, 4, v12")
    a(f"s_lshl_b32 s14, s{sCB}, 7\ns_and_b32 s15, s{sI}, 1\ns_lshl_b32 s15, s15, 6\ns_add_u32 s14, s14, s15\nv_add_u32 v10, s14, v12")
    for k in range(12): a(f"v_mov_b32 v{OF+k}, 0")
    a(f"v_mov_b32 v12, 0x3f80\nv_cmp_gt_u32 vcc, 32, v0\ns_nop 1\nv_cndmask_b32 v{OF+8}, 0, v12, vcc")
    vm.wait("KV3")
    a("s_barrier")
    stamp(5)
    poll(5, 12, "Lph"); vm.q = []
    stamp(6)
    a(f"buffer_load_dword v13, v6, {srd(SWS)}, 0 offen sc1\nbuffer_load_dword v14, v6, {srd(SWS)}, 0 offen offset:128 sc1")
    a(f"buffer_load_ushort v{OF}, v7, {srd(SB2)}, 0 offen\nbuffer_load_ushort v{OF+4}, v7, {srd(SB2)}, 0 offen offset:64")
    vm.add("G", 4)
    def hload(n):
        b = HB + 8 * (n & 3)
        a(f"s_add_u32 s14, s93, {n*4096}\nbuffer_load_dwordx4 {vr(b,4)}, v11, {srd(SWS)}, s14 offen sc1\nbuffer_load_dwordx4 {vr(b+4,4)}, v9, {srd(SWS)}, s14 offen sc1")
        vm.add(f"H{n}", 2)
    for n in range(3): hload(n)
    def trreads(n, dst):
        sl = (n & 3) * 2048
        for ct in range(2):
            for u in range(2):
                a(f"ds_read_b64_tr_b16 {vr(dst+4*ct+2*u,2)}, v4 offset:{sl+ct*1024+u*512}")
    def mf4(wb, hb, first):
        for ct in range(2):
            for rt in range(2):
                d = vr(FA + 16 * (2 * rt + ct), 16)
                a(f"{MF} {d}, {vr(wb+4*ct,4)}, {vr(hb+4*rt,4)}, {'0' if first else d}")
    for n in range(30):
        if n + 3 < 22: hload(n + 3)
        if n + 3 < 30: w2dma(n + 3)
        vm.wait(f"H{n}"); vm.wait(f"W{n}")
        if n < 22:
            wb = W2F + 8 * (n & 1)
            if n == 21: a(f"s_cmp_ge_u32 s{sI}, 2\ns_cbranch_scc1 Lb2")
            trreads(n, wb)
            a("s_waitcnt lgkmcnt(0)")
            mf4(wb, HB + 8 * (n & 3), n == 0)
            if n == 21:
                a(f"s_branch Lb2x\nLb2:\ns_cmp_eq_u32 s{sI}, 3\ns_cbranch_scc1 Lb2x")
                for ct in range(2):
                    for rt in range(2):
                        d = vr(FA + 16 * (2 * rt + ct), 16)
                        a(f"{MF} {d}, {vr(OF+4*ct,4)}, {vr(OF+8,4)}, {d}")
                a("Lb2x:")
        else:
            trreads(n, WOF + 8 * (n - 22))
            a("s_waitcnt lgkmcnt(0)")
    a("v_sub_f32 v13, 1.0, v13\nv_sub_f32 v14, 1.0, v14")
    for k in range(64): a(f"v_mul_f32 v{FA+k}, v{13 + (k >> 5)}, v{FA+k}")
    a(f"s_lshl_b32 s14, s92, 6\ns_lshl_b32 s15, s{sI}, 3\ns_add_u32 s14, s14, s15\ns_lshl_b32 s94, s14, 10\ns_add_u32 s94, s94, {WO_}")
    a(f"s_add_u32 s95, s94, 4096\nv_add_u32 v9, 32768, v11")
    stamp(7)
    a("s_barrier")
    stamp(8)
    poll(8, 12, "Lpo"); vm.q = []
    stamp(9)
    for hh in range(8):
        for rt in range(2):
            a(f"buffer_load_dwordx4 {vr(OF+8*hh+4*rt,4)}, v{11 if rt == 0 else 9}, {srd(SWS)}, s{94 + (hh >> 2)} offen offset:{(hh & 3)*1024} sc1")
        vm.add(f"O{hh}", 2)
    a(f"s_cmp_lg_u32 s2, 0\ns_cbranch_scc1 Lnoep\ns_cmp_lg_u32 s{sI}, 0\ns_cbranch_scc1 Lnoep\ns_mov_b32 s14, {EPOCH}")
    flag_store(14, 12)
    a("s_waitcnt vmcnt(0)\nLnoep:")
    a(f"s_lshl_b32 s14, s{sI}, 12\nv_add_u32 v1, s14, v11\ns_lshl_b32 s14, s{sI}, 14\nv_add_u32 v2, s14, v11")
    for hh in range(8):
        vm.wait(f"O{hh}")
        mf4(WOF + 8 * hh, OF + 8 * hh, False)
    stamp(10)
    a("s_nop 7")
    for T in (0, 2, 1, 3):
        for q in range(4):
            a(f"ds_write_b128 v1, {vr(FA+16*T+4*q,4)} offset:{T*16384+q*1024}")
    a("s_waitcnt lgkmcnt(0)\ns_barrier")
    for s in range(4):
        for q in range(4):
            a(f"ds_read_b128 {vr(FA+16*s+4*q,4)}, v2 offset:{s*4096+q*1024}")
    a("s_waitcnt lgkmcnt(8)")
    for k in range(8): a(f"v_pk_add_f32 {vr(FA+2*k,2)}, {vr(FA+2*k,2)}, {vr(FA+16+2*k,2)}")
    a("s_waitcnt lgkmcnt(0)")
    for k in range(8): a(f"v_pk_add_f32 {vr(FA+32+2*k,2)}, {vr(FA+32+2*k,2)}, {vr(FA+48+2*k,2)}")
    for k in range(8): a(f"v_pk_add_f32 {vr(FA+2*k,2)}, {vr(FA+2*k,2)}, {vr(FA+32+2*k,2)}")
    for k in range(8): a(f"v_cvt_pk_bf16_f32 v{FA+k}, v{FA+2*k}, v{FA+2*k+1}")
    a("s_nop 1")
    for k in (0, 1, 4, 5): a(f"v_permlane32_swap_b32 v{FA+k}, v{FA+k+2}")
    a("s_nop 0")
    a(f"buffer_store_dwordx4 {vr(FA,4)}, v10, {srd(SOUT)}, 0 offen\nbuffer_store_dwordx4 {vr(FA+4,4)}, v10, {srd(SOUT)}, 0 offen offset:32")
    stamp(11)
    prof_out(1)
    a("Lend:\ns_endpgm")
    a(f""".section .rodata,"a"
.p2align 6
.amdhsa_kernel {KN}
.amdhsa_next_free_vgpr 256
.amdhsa_next_free_sgpr 102
.amdhsa_accum_offset 256
.amdhsa_group_segment_fixed_size 0
.amdhsa_kernarg_size 96
.amdhsa_user_sgpr_count 2
.amdhsa_user_sgpr_kernarg_segment_ptr 1
.amdhsa_system_sgpr_workgroup_id_x 1
.end_amdhsa_kernel""")
    open(path, "w").write(a.text())


if __name__ == "__main__":
    kw = {}
    for x in sys.argv[2:]:
        k, v = x.split("=")
        kw[k] = int(v)
    gen(sys.argv[1], **kw)
```

```python
import sys, os
sys.path.insert(0, os.path.dirname(os.path.abspath(__file__)))
from asmlib import Asm
KN = "gated_mix__softmax_full_mha__dense_activation_squared_relu__prompt_kernel"

WQ, WKV, WH, WO_, WG = 0, 0x200000, 0x600000, 0xC00000, 0xE00000
FQ, FH, FO, EPOCH, WPROF = 0xE10000, 0xE20000, 0xE30000, 0xE50000, 0xF00000
SLOT = 28672
RING = 131072
GLDS = 155648
SPIN = 400000
sW, sX, sJ, sR, sC, sROT, sHEAD, sQB, sSUB, sCB, sN = 3, 4, 5, 6, 7, 8, 9, 10, 11, 12, 13
SX, SWQ, SW1, SWS, SWO, SW2, SOUT, SB1, SB2, SG = 40, 44, 48, 52, 56, 60, 64, 68, 72, 76
sMASK, sCNT, sI = 96, 98, 99


def srd(b): return f"s[{b}:{b+3}]"
def vr(b, n): return f"v[{b}:{b+n-1}]" if n > 1 else f"v{b}"
MF = "v_mfma_f32_32x32x16_bf16"
SM = "v_smfmac_f32_32x32x32_bf16"


class VM:
    def __init__(s, a): s.a = a; s.q = []
    def add(s, tag, n=1): s.q += [tag] * n
    def wait(s, tag):
        idx = [i for i, t in enumerate(s.q) if t == tag]
        if not idx: return
        n = len(s.q) - 1 - idx[-1]
        assert n < 64
        s.a(f"s_waitcnt vmcnt({n})")
        s.q = s.q[idx[-1] + 1:]
    def all(s): s.a("s_waitcnt vmcnt(0)"); s.q = []


class LG:
    def __init__(s, a): s.a = a; s.q = []
    def add(s, tag): s.q.append(tag)
    def wait(s, *tags):
        idx = [i for i, t in enumerate(s.q) if t in tags]
        if not idx: return
        n = min(len(s.q) - 1 - idx[-1], 15)
        s.a(f"s_waitcnt lgkmcnt({n})")
        s.q = s.q[len(s.q) - n:] if n else []
    def all(s): s.a("s_waitcnt lgkmcnt(0)"); s.q = []


def gen(path, PROF=0, FQPOS=4, PRIO=0, FORCE_SLOW=0, SPIN=SPIN, LOOK=3, DBG=0, HDEF=1, NSC=0, BAR1=0, FPRIO=0, HB1=6, HB2=12, EXP=0, HD=5, UNR=1, STG=1, WARM=0, HT0=4, HTF=12, B1=3, B2=11, GL=1, FOS=0, VPRIO=0, AG=0):
    SCK = '' if NSC & 1 else 'sc1'
    SCH = '' if NSC & 2 else 'sc1'
    SCO = '' if NSC & 4 else 'sc1'
    a = Asm()
    lab = [0]
    def stamp(i):
        if PROF == 1: a(f"s_memrealtime s[{16+2*i}:{17+2*i}]")
    def cstamp(i):
        if PROF == 1: a(f"s_memtime s[{16+2*i}:{17+2*i}]")
    def st3(i):
        if PROF == 3: a(f"s_memtime s[{16+2*i}:{17+2*i}]")
    def dbg_srd(b):
        if DBG: a(f"s_mov_b32 s{b}, s36\ns_mov_b32 s{b+1}, s37\ns_mov_b32 s{b+2}, 256\ns_mov_b32 s{b+3}, 0x20000")
    def dbg_out(b, idxs, o, last):
        lab[0] += 1
        a(f"s_waitcnt lgkmcnt(0)\ns_mov_b64 exec, 1\nv_mov_b32 v1, s{16+2*last}\nbuffer_atomic_umax v1, off, {srd(b)}, 0 offset:56\ns_not_b32 s14, s16\nv_mov_b32 v2, s14\nbuffer_atomic_umax v2, off, {srd(b)}, 0 offset:60")
        a(f"s_cmp_lg_u32 s2, {DBG}\ns_cbranch_scc1 Ldb{lab[0]}\ns_cmp_lg_u32 s{sI}, 0\ns_cbranch_scc1 Ldb{lab[0]}")
        for n, k in enumerate(idxs): a(f"v_mov_b32 v{3+n}, s{16+2*k}\nbuffer_store_dword v{3+n}, off, {srd(b)}, 0 offset:{4*(o+n)}")
        a(f"Ldb{lab[0]}:\ns_mov_b64 exec, -1")
    def prof_out(who=0):
        if DBG:
            if who == 0: dbg_out(76, [0, 1, 2, 3, 4, 5, 6], 0, 6)
            else: dbg_out(68, [2, 3, 6, 7, 9, 10, 11], 7, 11)
            return
        if not PROF: return
        a("s_waitcnt lgkmcnt(0)")
        a(f"s_lshl_b32 s14, s2, 3\ns_add_u32 s14, s14, s{sW}\ns_lshl_b32 s14, s14, 6\ns_add_u32 s14, s14, {WPROF}")
        a("s_mov_b64 exec, 1")
        for i in range(12):
            a(f"v_mov_b32 v1, s{16+2*i}\nbuffer_store_dword v1, off, {srd(SWS)}, s14 offset:{4*i}")
        a("s_mov_b64 exec, -1")
    def poll(vaddr, vtmp, name):
        va = vaddr if isinstance(vaddr, list) else [vaddr]
        a(f"s_mov_b32 s15, {SPIN}")
        a(f"{name}:")
        for k, v in enumerate(va): a(f"buffer_load_dword v{vtmp+k}, v{v}, {srd(SWS)}, 0 offen sc1")
        a("s_sub_u32 s15, s15, 1\ns_cmp_eq_u32 s15, 0")
        a(f"s_cbranch_scc1 {name}_x")
        a("s_waitcnt vmcnt(0)")
        for k in range(1, len(va)): a(f"v_xor_b32 v{vtmp+k}, s{sN}, v{vtmp+k}")
        if len(va) > 1:
            a(f"v_xor_b32 v{vtmp}, s{sN}, v{vtmp}\nv_or3_b32 v{vtmp}, v{vtmp}, v{vtmp+1}, v{vtmp+len(va)-1}\nv_cmp_ne_u32 vcc, 0, v{vtmp}")
        else: a(f"v_cmp_ne_u32 vcc, s{sN}, v{vtmp}")
        a(f"s_nop 4\ns_cmp_lg_u64 vcc, 0\ns_cbranch_scc1 {name}")
        a(f"{name}_x:\ns_waitcnt vmcnt(0)")
    def flag_store(soff, vtmp):
        a(f"v_mov_b32 v{vtmp}, s{sN}\ns_mov_b64 exec, 1\nbuffer_store_dword v{vtmp}, off, {srd(SWS)}, s{soff} sc1\ns_mov_b64 exec, -1")

    a("; @launch grid=(256,1,1) block=(512,1,1) lds=163840")
    a('.amdgcn_target "amdgcn-amd-amdhsa--gfx950"')
    a(f".text\n.globl {KN}\n.p2align 8\n.type {KN},@function\n{KN}:")
    a("s_cmp_ge_u32 s2, 256\ns_cbranch_scc1 Lend")
    a("s_load_dwordx16 s[16:31], s[0:1], 0\ns_load_dwordx8 s[32:39], s[0:1], 64")
    a(f"v_lshrrev_b32 v1, 6, v0\nv_and_b32 v0, 63, v0\ns_and_b32 s{sX}, s2, 7\nv_readfirstlane_b32 s{sW}, v1\ns_lshr_b32 s{sJ}, s2, 3")
    a(f"s_and_b32 s14, s{sX}, 1\ns_lshl_b32 s14, s14, 3\ns_and_b32 s15, s{sJ}, 7\ns_add_u32 s{sR}, s14, s15")
    a(f"s_lshr_b32 s14, s{sX}, 1\ns_lshl_b32 s14, s14, 2\ns_lshr_b32 s80, s{sJ}, 3\ns_add_u32 s{sC}, s14, s80")
    a(f"s_lshl_b32 s80, s80, 1\ns_add_u32 s{sROT}, s15, s80")
    a(f"s_and_b32 s14, s{sJ}, 3\ns_lshl_b32 s15, s{sX}, 2\ns_add_u32 s{sHEAD}, s15, s14\ns_lshr_b32 s{sQB}, s{sJ}, 2")
    a(f"s_and_b32 s{sSUB}, s{sX}, 3\ns_and_b32 s15, s{sX}, 4\ns_add_u32 s{sCB}, s15, s14")
    a(f"s_and_b32 s{sI}, s{sW}, 3")
    a(f"s_mov_b32 s{sMASK}, 0xffff\ns_mov_b32 s{sMASK+1}, 0xffff")
    sizes = {SX: (16, 2097152), SWQ: (18, 1572864), SWO: (20, 524288), SW1: (24, 1409024), SB1: (26, 2752),
             SW2: (28, 1409024), SB2: (30, 1024), SG: (32, 1024), SOUT: (34, 2097152), SWS: (38, 268435456)}
    for b, (p, sz) in sizes.items():
        a(f"s_mov_b32 s{b+2}, {sz}\ns_mov_b32 s{b+3}, 0x20000")
    a(f"s_cmp_eq_u32 s{sC}, 15\ns_cselect_b32 s{SW1+2}, 0, s{SW1+2}")
    a(f"s_cmp_ge_u32 s{sW}, 4\ns_cbranch_scc1 Lload")

    def mk_srd(lst):
        for b in lst:
            p = sizes[b][0]
            a(f"s_mov_b32 s{b}, s{p}\ns_mov_b32 s{b+1}, s{p+1}")
    def nonce(v):
        a(f"v_readfirstlane_b32 s14, v{v}\ns_mul_i32 s{sN}, s14, 0x9E3779B1\ns_add_u32 s{sN}, s{sN}, 0x7F4A7C15\ns_or_b32 s{sN}, s{sN}, 0x80000000")
        a(f"s_xor_b32 s15, s{sN}, 1\ns_cmp_eq_u32 s{sN}, s14\ns_cselect_b32 s{sN}, s15, s{sN}")

    XF, ACC, WF, BI = 16, 144, 192, 240
    vL31, vH, vXA, vWL, vWA, vT, vQS, vST = 1, 2, 3, 7, 8, 9, 12, 13
    if WARM & 1:
        a(f"s_getpc_b64 s[92:93]\nLpc:\ns_and_b32 s14, s{sJ}, 3\ns_lshl_b32 s14, s14, 2\ns_add_u32 s14, s14, s{sI}\ns_lshl_b32 s14, s14, 12\nv_lshl_add_u32 v9, v0, 6, s14\nv_min_u32 v9, Lend-Lpc, v9")
        a("global_load_dword v16, v9, s[92:93]")
    a(f"v_and_b32 v{vL31}, 31, v0\nv_lshrrev_b32 v{vH}, 5, v0")
    a(f"v_bfe_u32 v9, v0, 1, 3\nv_xor_b32 v9, v9, v{vH}\nv_lshlrev_b32 v9, 4, v9\nv_lshl_add_u32 v9, v{vL31}, 7, v9")
    a(f"s_lshl_b32 s14, s{sI}, 12\nv_add_u32 v{vXA}, s14, v9")
    for k in range(1, 4): a(f"v_xor_b32 v{vXA+k}, {32*k}, v{vXA}")
    a(f"v_bfe_u32 v9, v0, 2, 2\nv_lshl_add_u32 v9, v{vH}, 3, v9\nv_mul_u32_u24 v9, 192, v9\nv_bfe_u32 v10, v0, 4, 1\nv_lshl_add_u32 v9, v10, 5, v9")
    a(f"v_and_b32 v10, 3, v0\nv_lshl_add_u32 v{vWL}, v10, 3, v9")
    a(f"v_lshlrev_b32 v{vQS}, 4, v0")
    a(f"v_and_b32 v9, 0x33, v0\nv_and_b32 v10, 4, v0\nv_lshl_add_u32 v9, v10, 1, v9\nv_bfe_u32 v10, v0, 3, 1\nv_lshl_add_u32 v9, v10, 2, v9\nv_lshlrev_b32 v9, 4, v9")
    a(f"v_and_b32 v11, 15, v0\nv_lshl_add_u32 v11, v{vH}, 4, v11\nv_lshlrev_b32 v11, 4, v11\nv_bfe_u32 v10, v0, 4, 1\nv_lshl_add_u32 v11, v10, 17, v11\nv_add_u32 v10, 1024, v11")
    a(f"s_lshl_b32 s14, s{sR}, 2\ns_add_u32 s80, s14, s{sI}")
    for i in range(3):
        o1, o2, sc = [81, 83, 92][i], [82, 84, 93][i], [90, 94, 100][i]
        a(f"s_mul_i32 s14, s{sC}, 3\ns_add_u32 s14, s14, {i}\ns_lshr_b32 s15, s14, 4\ns_and_b32 s14, s14, 15\ns_lshl_b32 s14, s14, 7\ns_add_u32 s14, s14, s80")
        a(f"s_lshl_b32 s{o1}, s14, 11\ns_add_u32 s{o1}, s{o1}, {WKV}\ns_lshl_b32 s14, s14, 10")
        a(f"s_movk_i32 s{o2}, 512\ns_cmp_eq_u32 s15, 1\ns_cselect_b32 s{o2}, 131072, s{o2}\ns_cselect_b64 vcc, -1, 0\nv_cndmask_b32 v{vST+i}, v10, v9, vcc")
        a(f"s_cmp_eq_u32 s15, 0\ns_cselect_b32 s{o2}, 65536, s{o2}\ns_cselect_b32 s{o1}, s14, s{o1}\ns_cselect_b32 s{sc}, 0x3eb8aa3b, 1.0\ns_cselect_b64 vcc, -1, 0\nv_cndmask_b32 v{vST+i}, v{vST+i}, v{vQS}, vcc")
        a(f"s_add_u32 s{o2}, s{o2}, s{o1}\ns_mov_b32 s{sc+1}, s{sc}")
    for k in range(16): a(f"v_mov_b32 v{BI+k}, 0")
    a(f"v_mov_b32 v9, 0x3f80\nv_cmp_gt_u32 vcc, 32, v0\ns_mul_i32 s14, s{sC}, 192\nv_lshl_add_u32 v10, v{vL31}, 1, s14\nv_cndmask_b32 v{BI+12}, 0, v9, vcc")
    a("s_waitcnt lgkmcnt(0)")
    mk_srd([SWS, SB1]); dbg_srd(76)
    if UNR:
        for b, lim in ((SX, 15), (SWQ, 14)):
            a(f"s_mov_b32 s{b}, s38\ns_mov_b32 s{b+1}, s39\ns_cmp_lt_u32 s{sC}, {lim}\ns_cselect_b32 s{b+2}, s{SWS+2}, 0")
    a(f"s_mov_b32 s15, {EPOCH}\nbuffer_load_dword v11, off, {srd(SWS)}, s15 sc1")
    for i in range(3): a(f"buffer_load_ushort v{BI+4*i}, v10, {srd(SB1)}, 0 offen offset:{64*i}")
    a(f"s_mul_i32 s85, s80, 86\ns_mul_i32 s14, s{sC}, 6\ns_add_u32 s85, s85, s14\ns_lshl_b32 s85, s85, 10\ns_add_u32 s85, s85, {WH}\ns_add_u32 s86, s85, 4096")
    a(f"s_lshl_b32 s14, s{sC}, 2\ns_add_u32 s14, s14, s{sI}\ns_lshl_b32 s14, s14, 5\ns_add_u32 s14, s14, s{sR}\ns_lshl_b32 s14, s14, 2\ns_add_u32 s87, s14, {FQ}")
    a(f"s_lshl_b32 s14, s80, 5\ns_add_u32 s14, s14, s{sC}\ns_lshl_b32 s14, s14, 2\ns_add_u32 s88, s14, {FH}")
    a("s_waitcnt vmcnt(0)")
    nonce(11)
    stamp(0)

    lg = LG(a)
    slots = [1, 2, 3, 4, 0, 1, 2, 3]
    segs = [0, 57344, 57344, 114688, 0, 0, 57344, 57344]
    bbase = [143360, 114688, 126976, 0, 12288, 28672, 40960, 57344]
    halves = [("A", s, hf) for s in range(8) for hf in range(2)] + [("B", t, hf) for t in range(8) for hf in range(2)]
    seg = [0]
    PB = {("A", 1): 0, ("A", 3): 2, ("A", 4): 4, ("A", 7): 6, ("B", 2): 8, ("B", 6): 10}
    def prep(h):
        k, s, hf = halves[h]
        if hf: return
        if k == "A":
            if segs[s] != seg[0]:
                for q in range(4): a(f"v_add_u32 v{vXA+q}, {(segs[s]-seg[0]) & 0xffffffff:#x}, v{vXA+q}")
                seg[0] = segs[s]
            a(f"v_add_u32 v{vWA}, {slots[s]*SLOT+16384}, v{vWL}")
        else:
            a(f"v_add_u32 v{vWA}, {bbase[s]}, v{vWL}")
        if k == "A" or s in (0, 2, 4):
            if PROF == 2 and (k, s) in PB: a(f"s_memtime s[{16+2*PB[(k,s)]}:{17+2*PB[(k,s)]}]")
            a("s_barrier")
            if PROF == 2 and (k, s) in PB: a(f"s_memtime s[{18+2*PB[(k,s)]}:{19+2*PB[(k,s)]}]")
    def reads(h):
        k, s, hf = halves[h]
        L = []
        for ksl in range(2):
            ks = 2 * hf + ksl
            if k == "A": L.append((f"ds_read_b128 {vr(XF+16*s+4*ks,4)}, v{vXA+ks} offset:{slots[s]*SLOT-segs[s]}", (h, ksl, "x")))
            for t in range(3):
                d = WF + 24 * hf + 12 * ksl + 4 * t
                for u in range(2):
                    L.append((f"ds_read_b64_tr_b16 {vr(d+2*u,2)}, v{vWA} offset:{t*64+ks*3072+u*768}", (h, ksl, t)))
        return L
    def emit_reads(L, n):
        for _ in range(min(n, len(L))):
            ins, tag = L.pop(0); a(ins); lg.add(tag)
    def half(h, pat='TTT'):
        k, s, hf = halves[h]
        L = []
        if h + 1 < len(halves):
            prep(h + 1); L = reads(h + 1)
        for j in range(6):
            ksl, t = j // 3, j % 3
            ks = 2 * hf + ksl
            lg.wait((h, ksl, "x"), (h, ksl, t))
            x = vr(XF + 16 * s + 4 * ks, 4); w = vr(WF + 24 * hf + 12 * ksl + 4 * t, 4); d = vr(ACC + 16 * t, 16)
            c = "0" if (h == 0 and ksl == 0) else d
            a(f"{MF} {d}, {x}, {w}, {c}" if (k == "A" and pat[t] == "N") else f"{MF} {d}, {w}, {x}, {c}")
            emit_reads(L, 3)
        assert not L
    prep(0)
    stamp(1)
    emit_reads(reads(0), 99)
    a(f"s_cmp_eq_u32 s{sC}, 10\ns_cbranch_scc1 LA_TTN\ns_cmp_gt_u32 s{sC}, 10\ns_cbranch_scc1 LA_NNN")
    q0, seg0 = list(lg.q), seg[0]
    for pat in ("TTT", "TTN", "NNN"):
        lg.q = list(q0); seg[0] = seg0
        a(f"LA_{pat}:")
        for h in range(16): half(h, pat)
        stamp(2); st3(0)
        a("s_nop 7")
        if pat[0] == "N": a("s_nop 1")
        for i in range(3):
            b = ACC + 16 * i
            o1, o2, sc = [81, 83, 92][i], [82, 84, 93][i], [90, 94, 100][i]
            if pat[i] == "T":
                for k in range(8): a(f"v_pk_mul_f32 {vr(b+2*k,2)}, {vr(b+2*k,2)}, s[{sc}:{sc+1}]")
            for k in range(8): a(f"v_cvt_pk_bf16_f32 v{b+k}, v{b+2*k}, v{b+2*k+1}")
            a(f"buffer_store_dwordx4 {vr(b,4)}, v{vST+i}, {srd(SWS)}, s{o1} offen sc1\nbuffer_store_dwordx4 {vr(b+4,4)}, v{vST+i}, {srd(SWS)}, s{o2} offen sc1")
            st3(1 + i)
        if pat != "NNN": a("s_branch LB")
    a(f"s_cmp_eq_u32 s{sC}, 15\ns_cbranch_scc1 Lgate")
    a("LB:")
    for i in range(3): a(f"{MF} {vr(ACC+16*i,16)}, {vr(BI+4*i,4)}, {vr(BI+12,4)}, 0")
    for h in range(16, 32):
        if FQPOS == h - 16:
            st3(7); a("s_waitcnt vmcnt(0)"); st3(8); flag_store(87, 9); stamp(11)
        half(h)
        if h - 16 < 3: st3(4 + h - 16)
    stamp(3); st3(9)
    def hstore1(i, m, sr=SWS):
        o = (2 * i + m) * 1024
        return f"buffer_store_dwordx4 {vr(ACC+16*i+4*m,4)}, v{vQS}, {srd(sr)}, s{85 if o < 4096 else 86} offen offset:{o % 4096} sc1"
    def hstore(i):
        for m in range(2): a(hstore1(i, m))
    a("s_nop 7")
    for i in range(3):
        b = ACC + 16 * i
        if i == 1: a(f"s_cmp_eq_u32 s{sC}, 14\ns_cbranch_scc1 Latt")
        for k in range(16): a(f"v_max_f32 v{b+k}, 0, v{b+k}")
        for k in range(8): a(f"v_pk_mul_f32 {vr(b+2*k,2)}, {vr(b+2*k,2)}, {vr(b+2*k,2)}")
        for k in range(8): a(f"v_cvt_pk_bf16_f32 v{b+k}, v{b+2*k}, v{b+2*k+1}")
        if not HDEF: hstore(i)
    a("s_branch Latt")
    a("Lgate:\ns_waitcnt lgkmcnt(0)")
    a(f"v_lshlrev_b32 v11, 4, v{vH}\nv_add_u32 v11, {GLDS}, v11")
    def gread(s_):
        a(f"s_add_u32 s14, s{sROT}, {s_}\ns_and_b32 s14, s14, 7\ns_lshl_b32 s14, s14, 7\nv_add_u32 v9, s14, v11")
        for ks in range(4): a(f"ds_read_b128 {vr(WF+16*(s_&3)+4*ks,4)}, v9 offset:{ks*32}")
    for s_ in range(3): gread(s_)
    a("s_waitcnt vmcnt(0)")
    flag_store(87, 10); stamp(11)
    if not GL: a("s_barrier\ns_barrier")
    for s_ in range(8):
        if s_ + 3 < 8: gread(s_ + 3)
        a(f"s_waitcnt lgkmcnt({4*min(3, 7-s_)})")
        for ks in range(4):
            d = vr(ACC + 16 * (ks & 1), 16)
            a(f"{MF} {d}, {vr(WF+16*(s_&3)+4*ks,4)}, {vr(XF+16*s_+4*ks,4)}, {'0' if s_ == 0 and ks < 2 else d}")
    a(f"s_nop 7\ns_nop 7\nv_add_f32 v{ACC}, v{ACC}, v{ACC+16}")
    a(f"v_mul_f32 v9, 0xbfb8aa3b, v{ACC}\nv_exp_f32 v9, v9\ns_lshl_b32 s14, s80, 7\ns_add_u32 s14, s14, {WG}\nv_add_f32 v9, 1.0, v9\nv_rcp_f32 v9, v9\nv_lshlrev_b32 v10, 2, v{vL31}\ns_nop 0")
    a(f"buffer_store_dword v9, v10, {srd(SWS)}, s14 offen sc1")
    if GL: a("s_waitcnt vmcnt(0)\ns_barrier\ns_barrier")

    X, Y, OA, OB, QA, QB, KB, VB, IDX, vK, vV, vGF, vGA, vFL, GA, GBv = 16, 32, 48, 64, 80, 84, 88, 96, 112, 113, 114, 115, 116, 117, 118, 119
    a("Latt:")
    st3(10)
    for k in range(32): a(f"v_mov_b32 v{OA+k}, 0")
    a(f"v_and_b32 v9, 27, v0\nv_cmp_eq_u32 vcc, 16, v9\nv_mov_b32 v10, 0x3f803f80\nv_mov_b32 v{IDX}, 0xdddddddd\nv_add_u32 v{vK}, {(32 if UNR else 58)*2048}, v{vQS}")
    a(f"v_cndmask_b32 v{VB}, 0, v10, vcc")
    for k in range(1, 16): a(f"v_mov_b32 v{VB+k}, v{VB}")
    a(f"v_and_b32 v9, 15, v0\nv_lshl_add_u32 v9, v{vH}, 4, v9\nv_lshlrev_b32 v9, 4, v9\nv_add_u32 v{vV}, {(32 if UNR else 58)*2048+1024}, v9")
    T0 = 31 if UNR else 5
    a(f"s_lshl_b32 s14, s{sI}, 13\ns_add_u32 s14, s14, {RING+6144}\nv_add_u32 v9, s14, v{vQS}")
    a(f"s_lshl_b32 s14, s{sQB}, 2\ns_add_u32 s80, s14, s{sI}\ns_lshl_b32 s14, s80, 8\ns_add_u32 s15, s14, {FH+60}\ns_add_u32 s14, s14, {WG}\nv_lshl_add_u32 v{vGA}, v{vL31}, 2, s14")
    a(f"v_and_b32 v10, 1, v0\nv_lshl_add_u32 v{vGF}, v10, 7, s15")
    a(f"s_lshl_b32 s14, s80, 2\ns_lshr_b32 s15, s{sHEAD}, 3\ns_add_u32 s14, s14, s15\ns_lshl_b32 s14, s14, 5\ns_and_b32 s15, s{sHEAD}, 7\ns_add_u32 s14, s14, s15\ns_lshl_b32 s14, s14, 2\ns_add_u32 s89, s14, {FO}")
    a(f"s_lshl_b32 s14, s80, 5\ns_add_u32 s14, s14, s{sHEAD}\ns_lshl_b32 s81, s14, 11\ns_add_u32 s81, s81, {WO_}")
    if FOS: a(f"s_lshl_b32 s14, s14, {FOS}\ns_add_u32 s89, s14, {FO}")
    a(f"s_mov_b32 s{sCNT}, 0")
    a("s_barrier")
    stamp(4); cstamp(7); st3(11)
    if PRIO: a(f"s_setprio {PRIO}")
    a(f"ds_read_b128 {vr(QA,4)}, v9\nds_read_b128 {vr(KB,4)}, v{vK} offset:{T0*2048}\nds_read_b128 {vr(QB,4)}, v9 offset:1024\nds_read_b128 {vr(KB+4,4)}, v{vK} offset:{(T0-1)*2048}")
    a(f"s_mov_b64 exec, s[{sMASK}:{sMASK+1}]\nds_read_b128 {vr(VB,4)}, v{vV} offset:{T0*2048}\nds_read_b128 {vr(VB+4,4)}, v{vV} offset:{T0*2048+512}\ns_mov_b64 exec, -1")
    a(f"s_waitcnt lgkmcnt(4)\n{MF} {vr(X,16)}, {vr(KB,4)}, {vr(QA,4)}, 0\ns_waitcnt lgkmcnt(2)\ns_nop 7\ns_nop 3")
    def ex(b, lo, hi):
        for k in range(lo, hi + 1): a(f"v_exp_f32 v{b+k}, v{b+k}")
    ex(X, 0, 1)
    def tile(u, koff, voff, last, ev={}):
        kc, kn = KB + 4 * (u & 1), KB + 4 * ((u + 1) & 1)
        vc, vn = VB + 8 * (u & 1), VB + 8 * ((u + 1) & 1)
        ex(X, 2, 4)
        a(f"{MF} {vr(Y,16)}, {vr(kc,4)}, {vr(QB,4)}, 0")
        a("s_waitcnt lgkmcnt(0)")
        if koff is not None: a(f"ds_read_b128 {vr(kc,4)}, v{vK} offset:{koff}")
        ex(X, 5, 9)
        a(f"{SM} {vr(OA,16)}, {vr(vc,4)}, {vr(X,8)}, v{IDX}")
        if voff is not None:
            a(f"s_mov_b64 exec, s[{sMASK}:{sMASK+1}]\nds_read_b128 {vr(vn,4)}, v{vV} offset:{voff}\nds_read_b128 {vr(vn+4,4)}, v{vV} offset:{voff+512}\ns_mov_b64 exec, -1")
        ex(X, 10, 15); ex(Y, 0, 1)
        a(f"{SM} {vr(OA,16)}, {vr(vc+4,4)}, {vr(X+8,8)}, v{IDX}")
        if "p2" in ev: ev["p2"]()
        ex(Y, 2, 4)
        if not last: a(f"{MF} {vr(X,16)}, {vr(kn,4)}, {vr(QA,4)}, 0")
        if "q2" in ev: ev["q2"]()
        ex(Y, 5, 9)
        a(f"{SM} {vr(OB,16)}, {vr(vc,4)}, {vr(Y,8)}, v{IDX}")
        if "p3" in ev: ev["p3"]()
        ex(Y, 10, 15)
        if not last: ex(X, 0, 1)
        else: a("s_nop 1")
        a(f"{SM} {vr(OB,16)}, {vr(vc+4,4)}, {vr(Y+8,8)}, v{IDX}")
        if "p4" in ev: ev["p4"]()
    if UNR:
        for n in range(64):
            ev = {}
            if n in (B1, B2): ev["p4"] = lambda: a("s_barrier")
            if HT0 <= n < HT0 + 6 and not (EXP & 4): ev["p3"] = lambda k=n-HT0: a(hstore1(k >> 1, k & 1, SX if k < 2 else SWQ))
            if n == HTF: ev["p3"] = lambda: (a("s_waitcnt vmcnt(0)"), flag_store(88, 9))
            if n == 29: ev["q2"] = lambda: a(f"v_add_u32 v{vK}, 0xffff0000, v{vK}")
            if n == 30: ev["q2"] = lambda: a(f"v_add_u32 v{vV}, 0xffff0000, v{vV}")
            if n == 46: ev["p3"] = lambda: a(f"buffer_load_dword v{vFL}, v{vGF}, {srd(SWS)}, 0 offen sc1")
            if n == 52: ev["p3"] = lambda: a(f"s_waitcnt vmcnt(0)\nv_cmp_ne_u32 vcc, s{sN}, v{vFL}")
            if n == 52: ev["p4"] = lambda: a(f"s_cmp_lg_u64 vcc, 0\ns_cbranch_scc1 Lgp\nLgpx:")
            if n == 53: ev["p2"] = lambda: a(f"buffer_load_dword v{GA}, v{vGA}, {srd(SWS)}, 0 offen sc1")
            if n == 53: ev["p3"] = lambda: a(f"buffer_load_dword v{GBv}, v{vGA}, {srd(SWS)}, 0 offen offset:128 sc1")
            kt, vt = 61 - n, 62 - n
            tile(n, (kt & 31) * 2048 if kt >= 0 else None, (vt & 31) * 2048 if vt >= 0 else None, n == 63, ev)
    UNR or a("Lloop:")
    if not UNR:
        for u in range(4): tile(u, (3 - u) * 2048, (4 - u) * 2048, False)
        a(f"s_add_u32 s{sCNT}, s{sCNT}, 1\nv_add_u32 v{vK}, 0xffffe000, v{vK}\nv_add_u32 v{vV}, 0xffffe000, v{vV}")
        a(f"s_bitcmp1_b32 {(1<<1)|(1<<3)|(1<<12)|(1<<13)|(1<<15)}, s{sCNT}\ns_cbranch_scc0 Lloop")
        a(f"s_cmp_eq_u32 s{sCNT}, 15\ns_cbranch_scc1 Llast\ns_cmp_eq_u32 s{sCNT}, 12\ns_cbranch_scc1 Lev2\ns_cmp_eq_u32 s{sCNT}, 13\ns_cbranch_scc1 Lev3\ns_cmp_eq_u32 s{sCNT}, 3\ns_cbranch_scc1 Lev1")
        if HDEF:
            a(f"s_barrier\ns_cmp_eq_u32 s{sC}, 15\ns_cbranch_scc1 Lloop")
            if EXP & 4: a("s_branch Lloop")
            hstore(0)
            a(f"s_cmp_eq_u32 s{sC}, 14\ns_cbranch_scc1 Lloop")
            hstore(1); hstore(2)
            a("s_branch Lloop\nLev1:\ns_waitcnt vmcnt(0)")
            flag_store(88, 9)
            a("s_barrier\ns_branch Lloop")
        else:
            a("s_waitcnt vmcnt(0)")
            flag_store(88, 9)
            a("Lev1:\ns_barrier\ns_branch Lloop")
        a(f"Lev2:\nbuffer_load_dword v{vFL}, v{vGF}, {srd(SWS)}, 0 offen sc1\ns_branch Lloop")
        a(f"Lev3:\ns_waitcnt vmcnt(0)\nv_cmp_ne_u32 vcc, s{sN}, v{vFL}\ns_nop 4\ns_cmp_eq_u64 vcc, 0\ns_cbranch_scc1 Lev3b")
        poll(vGF, vFL, "Lpg")
        a(f"Lev3b:\nbuffer_load_dword v{GA}, v{vGA}, {srd(SWS)}, 0 offen sc1\nbuffer_load_dword v{GBv}, v{vGA}, {srd(SWS)}, 0 offen offset:128 sc1\ns_branch Lloop")
        a(f"Llast:\nv_add_u32 v{vK}, 4096, v{vK}\nv_add_u32 v{vV}, 4096, v{vV}")
        for u in range(4): tile(u, (1 - u) * 2048 if u < 2 else None, (2 - u) * 2048 if u < 3 else None, u == 3)
    stamp(5); cstamp(8)
    a("s_mov_b32 s14, 0x7f800000\ns_mov_b32 s15, 0x30800000\ns_mov_b32 s92, 0x5f800000")
    for n, O in enumerate((OA, OB)):
        if n == 1: a("s_nop 3")
        a(f"v_max3_f32 v9, |v{O}|, |v{O+1}|, |v{O+2}|\nv_max3_f32 v9, v9, |v{O+3}|, |v{O+4}|\nv_max3_f32 v9, v9, |v{O+5}|, |v{O+6}|\nv_max_f32 v9, v9, |v{O+7}|")
        a(f"v_cmp_gt_f32 s[{80+6*n}:{81+6*n}], s14, v9" if False else f"v_cmp_gt_f32 vcc, s14, v9\nv_cmp_lt_f32 s[84:85], s15, v{O+8}\nv_cmp_gt_f32 s[86:87], s92, v{O+8}\ns_nop 4")
        a("s_and_b64 vcc, vcc, s[84:85]\ns_and_b64 vcc, vcc, s[86:87]\ns_cmp_lg_u64 vcc, -1\ns_cbranch_scc1 Lslow")
    if FORCE_SLOW: a("s_branch Lslow")
    a("Lfin:")
    a(f"v_rcp_f32 v9, v{OA+8}\nv_rcp_f32 v10, v{OB+8}\ns_waitcnt vmcnt(0)\nv_mul_f32 v9, v9, v{GA}\nv_mul_f32 v10, v10, v{GBv}")
    for n, O in enumerate((OA, OB)):
        for k in range(8): a(f"v_mul_f32 v{O+k}, v{9+n}, v{O+k}")
        for k in range(4): a(f"v_cvt_pk_bf16_f32 v{O+k}, v{O+2*k}, v{O+2*k+1}")
        a(f"buffer_store_dwordx4 {vr(O,4)}, v{vQS}, {srd(SWS)}, s81 offen offset:{1024*n} sc1")
    if BAR1: a("s_barrier")
    a("s_waitcnt vmcnt(0)")
    flag_store(89, 9)
    stamp(6)
    prof_out()
    a("s_endpgm")
    if UNR:
        a("Lgp:")
        poll(vGF, vFL, "Lpg")
        a("s_branch Lgpx")
    NA, NB = 120, 136
    a("Lslow:")
    a(f"v_mov_b32 v{vK}, v{vQS}\nv_mov_b32 v9, 0xff800000\nv_mov_b32 v10, 0xff800000\ns_mov_b32 s{sCNT}, 0")
    a(f"Ls1:\nds_read_b128 {vr(KB,4)}, v{vK}\nv_add_u32 v{vK}, 2048, v{vK}\ns_add_u32 s{sCNT}, s{sCNT}, 1\ns_waitcnt lgkmcnt(0)")
    a(f"{MF} {vr(X,16)}, {vr(KB,4)}, {vr(QA,4)}, 0\n{MF} {vr(Y,16)}, {vr(KB,4)}, {vr(QB,4)}, 0\ns_nop 7\ns_nop 3")
    for n, S in enumerate((X, Y)):
        for k in range(8): a(f"v_max3_f32 v{9+n}, v{9+n}, v{S+2*k}, v{S+2*k+1}")
    a(f"s_cmp_lt_u32 s{sCNT}, 64\ns_cbranch_scc1 Ls1")
    for n, N in enumerate((NA, NB)):
        a(f"v_mov_b32 v11, v{9+n}\ns_nop 1\nv_permlane32_swap_b32 v{9+n}, v11\ns_nop 1\nv_max_f32 v11, v11, v{9+n}\nv_xor_b32 v11, 0x80000000, v11")
        for k in range(16): a(f"v_mov_b32 v{N+k}, v11")
    for k in range(32): a(f"v_mov_b32 v{OA+k}, 0")
    a(f"v_mov_b32 v{vK}, v{vQS}\ns_mov_b32 s{sCNT}, 0")
    a(f"Ls2:\nds_read_b128 {vr(KB,4)}, v{vK}\ns_mov_b64 exec, s[{sMASK}:{sMASK+1}]\nds_read_b128 {vr(VB,4)}, v{vV}\nds_read_b128 {vr(VB+4,4)}, v{vV} offset:512\ns_mov_b64 exec, -1")
    a(f"v_add_u32 v{vK}, 2048, v{vK}\nv_add_u32 v{vV}, 2048, v{vV}\ns_add_u32 s{sCNT}, s{sCNT}, 1\ns_waitcnt lgkmcnt(0)")
    a(f"{MF} {vr(X,16)}, {vr(KB,4)}, {vr(QA,4)}, {vr(NA,16)}\n{MF} {vr(Y,16)}, {vr(KB,4)}, {vr(QB,4)}, {vr(NB,16)}\ns_nop 7\ns_nop 3")
    ex(X, 0, 15); ex(Y, 0, 15)
    a("s_nop 1")
    a(f"{SM} {vr(OA,16)}, {vr(VB,4)}, {vr(X,8)}, v{IDX}\n{SM} {vr(OB,16)}, {vr(VB,4)}, {vr(Y,8)}, v{IDX}")
    a(f"{SM} {vr(OA,16)}, {vr(VB+4,4)}, {vr(X+8,8)}, v{IDX}\n{SM} {vr(OB,16)}, {vr(VB+4,4)}, {vr(Y+8,8)}, v{IDX}")
    a(f"s_cmp_lt_u32 s{sCNT}, 64\ns_cbranch_scc1 Ls2\ns_nop 7\ns_nop 7\ns_branch Lfin")

    a("Lload:")
    vm = VM(a)
    a(f"v_lshrrev_b32 v12, 3, v0\nv_and_b32 v13, 7, v0\nv_lshrrev_b32 v14, 4, v0\nv_xor_b32 v13, v13, v14\nv_lshlrev_b32 v12, 10, v12")
    a(f"s_lshl_b32 s14, s{sR}, 2\ns_add_u32 s14, s14, s{sI}\ns_lshl_b32 s14, s14, 15\nv_add_u32 v12, s14, v12")
    a(f"v_lshl_add_u32 v1, v13, 4, v12\nv_xor_b32 v2, 64, v1\nv_add_u32 v2, 8192, v2\nv_add_u32 v3, 16384, v1\nv_add_u32 v4, 16384, v2")
    a(f"s_mul_i32 s14, s{sC}, 192\ns_lshl_b32 s15, s{sI}, 4")
    for u in range(3):
        a(f"v_add_u32 v12, {64*u}, v0\nv_mul_u32_u24 v13, 5462, v12\nv_lshrrev_b32 v13, 16, v13\nv_mul_u32_u24 v14, 12, v13\nv_sub_u32 v12, v12, v14\nv_lshl_add_u32 v12, v12, 4, s14\nv_add_u32 v13, s15, v13")
        a(f"v_mul_u32_u24 v14, 3072, v13\nv_add_u32 v{5+u}, v14, v12\nv_mul_u32_u24 v14, 2752, v13\nv_add_u32 v{8+u}, v14, v12")
    a(f"v_lshlrev_b32 v11, 4, v0\ns_lshl_b32 s80, s{sI}, 12\ns_mul_i32 s81, s{sI}, 3072")
    a("s_waitcnt lgkmcnt(0)")
    mk_srd([SX, SWQ, SWS, SW1])
    a(f"s_mov_b32 s15, {EPOCH}\nbuffer_load_dword v15, off, {srd(SWS)}, s15 sc1")
    vm.add("ep")
    def dma(mreg, mimm, v, sr, so, tag, off=0, sc=""):
        if mreg is not None: a(f"s_add_u32 m0, s{mreg}, {mimm}\ns_nop 0")
        a(f"buffer_load_dwordx4 v{v}, {srd(sr)}, s{so} offen {f'offset:{off}' if off else ''} {sc} lds")
        vm.add(tag)
    def stA(s):
        a(f"s_add_u32 s14, s{sROT}, {s}\ns_and_b32 s14, s14, 7\ns_lshl_b32 s82, s14, 7\ns_mul_i32 s83, s14, 196608")
        b = slots[s] * SLOT
        for u in range(4): dma(80, b + u * 1024, 1 + u, SX, 82, f"A{s}")
        for t in range(3): dma(81, b + 16384 + t * 1024, 5 + t, SWQ, 83, f"A{s}")
    def stB(t):
        a(f"s_add_u32 s14, s{sROT}, {t}\ns_and_b32 s14, s14, 7\ns_mul_i32 s83, s14, 176128")
        for i in range(3): dma(81, bbase[t] + i * 1024, 8 + i, SW1, 83, f"B{t}")
    for s in range(LOOK): stA(s)
    mk_srd([SWO, SW2, SOUT, SB2, SG]); dbg_srd(68)
    FA, WOF, OF, HB, W2F, BS = 16, 80, 144, 144, 240, 132
    pFQ, pW0, pW1, pTR, pFH, pG0, pG1, pB2, pFO, pH0, pH1, pOUT, pO0, pO1, pALL, pWA, pWB, pR = range(208, 226)
    def ag0():
        a(f"s_lshr_b32 s84, s{sHEAD}, 1\ns_lshl_b32 s85, s{sI}, 7\ns_add_u32 s85, s85, {FQ}\nv_and_b32 v12, 15, v0\nv_lshlrev_b32 v12, 2, v12")
        a(f"s_add_u32 s14, s84, 16\ns_mul_i32 s14, s14, 21846\ns_lshr_b32 s14, s14, 16\ns_lshl_b32 s14, s14, 9\ns_add_u32 s14, s14, s85\nv_add_u32 v{pFQ}, s14, v12")
        a(f"s_add_u32 s14, s84, 32\ns_mul_i32 s14, s14, 21846\ns_lshr_b32 s14, s14, 16\ns_lshl_b32 s14, s14, 9\ns_add_u32 s14, s14, s85\nv_add_u32 v13, s14, v12\nv_cmp_gt_u32 vcc, 16, v0")
        a(f"s_mul_i32 s14, s84, 21846\ns_lshr_b32 s14, s14, 16\ns_lshl_b32 s14, s14, 9\nv_cndmask_b32 v{pFQ}, v13, v{pFQ}, vcc\ns_and_b32 s15, s{sI}, 1\ns_lshl_b32 s15, s15, 8\ns_add_u32 s14, s14, s15")
        a(f"s_lshl_b32 s15, s{sQB}, 1\ns_lshr_b32 s86, s{sI}, 1\ns_add_u32 s15, s15, s86\ns_lshl_b32 s15, s15, 2\ns_add_u32 s14, s14, s15\ns_add_u32 s14, s14, {FQ}")
        a(f"v_and_b32 v12, 1, v0\nv_lshl_add_u32 v13, v12, 7, s14\nv_cmp_gt_u32 vcc, 32, v0\nv_lshrrev_b32 v12, 2, v0\ns_nop 0\nv_cndmask_b32 v{pFQ}, v13, v{pFQ}, vcc\nv_and_b32 v13, 3, v0")
    def ag1():
        a(f"v_lshlrev_b32 v{pW0}, 10, v12\nv_lshl_add_u32 v{pW0}, v13, 4, v{pW0}\ns_lshl_b32 s14, s{sCB}, 7\ns_and_b32 s15, s{sI}, 1\ns_lshl_b32 s15, s15, 6\ns_add_u32 s14, s14, s15\nv_add_u32 v{pW0}, s14, v{pW0}\nv_xor_b32 v{pW1}, 64, v{pW0}")
        a(f"s_lshl_b32 s85, s{sI}, 11\ns_lshl_b32 s84, s{sHEAD}, 17\ns_add_u32 s84, s84, {WKV}\ns_add_u32 s84, s84, s85")
        a(f"s_lshl_b32 s14, s{sHEAD}, 6\ns_lshl_b32 s15, s{sQB}, 3\ns_add_u32 s14, s14, s15\ns_lshl_b32 s15, s{sI}, 1\ns_add_u32 s14, s14, s15\ns_lshl_b32 s88, s14, 10")
        a(f"s_lshl_b32 s89, s{sI}, 13\ns_add_u32 s89, s89, {RING}")
        a(f"s_lshl_b32 s90, s{sI}, 14\ns_lshl_b32 s91, s{sI}, 17")
    def ag2():
        a(f"v_lshrrev_b32 v14, 5, v0\nv_bfe_u32 v12, v0, 2, 2\nv_lshl_add_u32 v12, v14, 2, v12\nv_lshlrev_b32 v12, 6, v12\nv_bfe_u32 v13, v0, 4, 1\nv_lshl_add_u32 v12, v13, 5, v12")
        a(f"v_and_b32 v13, 3, v0\nv_lshl_add_u32 v12, v13, 3, v12\nv_add_u32 v{pTR}, s89, v12")
        a(f"s_lshl_b32 s14, s{sQB}, 2\ns_add_u32 s92, s14, s{sSUB}")
        a(f"s_lshl_b32 s14, s92, 8\ns_add_u32 s14, s14, {FH}\nv_bfe_u32 v12, v0, 4, 1\nv_and_b32 v13, 15, v0\nv_lshlrev_b32 v12, 7, v12\nv_lshl_add_u32 v12, v13, 2, v12\nv_add_u32 v{pFH}, s14, v12")
    def ag3():
        a(f"v_and_b32 v13, 31, v0\ns_lshl_b32 s14, s92, 8\ns_add_u32 s14, s14, {WG}\ns_lshr_b32 s15, s{sI}, 1\ns_lshl_b32 s15, s15, 7\ns_add_u32 s14, s14, s15\nv_lshl_add_u32 v{pG0}, v13, 2, s14\nv_xor_b32 v{pG1}, 128, v{pG0}")
        a(f"s_lshl_b32 s14, s{sCB}, 7\nv_lshl_add_u32 v{pB2}, v13, 1, s14")
        a(f"s_lshl_b32 s14, s92, 2\ns_add_u32 s14, s14, s{sI}\ns_lshl_b32 s94, s14, 14\ns_add_u32 s94, s94, {WO_}\ns_lshl_b32 s14, s14, {FOS + 3 if FOS else 7}\ns_add_u32 s14, s14, {FO}\nv_and_b32 v12, 7, v0\nv_lshl_add_u32 v{pFO}, v12, {FOS or 2}, s14")
        a(f"s_mul_i32 s93, s92, {2*86*1024}\ns_lshl_b32 s14, s{sI}, 10\ns_add_u32 s93, s93, s14\ns_add_u32 s93, s93, {WH}")
    def ag4():
        a(f"s_lshr_b32 s14, s{sI}, 1\ns_lshl_b32 s14, s14, 5\ns_lshl_b32 s15, s92, 6\ns_add_u32 s14, s14, s15\nv_add_u32 v12, s14, v13\nv_lshlrev_b32 v12, 10, v12\nv_lshl_add_u32 v12, v14, 4, v12")
        a(f"s_lshl_b32 s14, s{sCB}, 7\ns_and_b32 s15, s{sI}, 1\ns_lshl_b32 s15, s15, 6\ns_add_u32 s14, s14, s15\nv_add_u32 v{pOUT}, s14, v12")
        for k in range(12): a(f"v_mov_b32 v{BS+k}, 0")
        a(f"v_mov_b32 v12, 0x3f80\nv_cmp_gt_u32 vcc, 32, v0\ns_lshr_b32 s14, s{sI}, 1\ns_mul_i32 s15, s14, {86*1024}\nv_cndmask_b32 v{BS+8}, 0, v12, vcc")
        a(f"v_add_u32 v{pH0}, s15, v11\ns_sub_u32 s15, {86*1024}, s15\nv_add_u32 v{pH1}, s15, v11")
    def ag5():
        a(f"s_lshr_b32 s14, s{sI}, 1\ns_lshl_b32 s14, s14, 10\nv_add_u32 v{pO0}, s14, v11\nv_xor_b32 v{pO1}, 1024, v{pO0}")
        for j in range(1, 4): a(f"s_xor_b32 s14, s{sI}, {j}\ns_mul_i32 s14, s14, 12288\ns_add_u32 s14, s14, {(j-1)*4096}\nv_add_u32 v{pR+j}, s14, v11")
        a(f"s_mul_i32 s14, s{sI}, 12288\nv_add_u32 v{pR}, s14, v11")
        a(f"v_lshrrev_b32 v14, 4, v0\ns_lshl_b32 s14, s{sI}, 11\ns_add_u32 s14, s14, {FQ}\nv_lshl_add_u32 v14, v14, 9, s14\nv_and_b32 v13, 15, v0\nv_lshl_add_u32 v{pALL}, v13, 2, v14")
        if WARM & 2: a(f"v_bfe_u32 v12, v0, 1, 4\nv_and_b32 v13, 1, v0\nv_lshlrev_b32 v13, 6, v13\nv_lshl_add_u32 v12, v12, 10, v13\ns_lshl_b32 s14, s{sCB}, 7\nv_add_u32 v{pWB}, s14, v12\nv_lshrrev_b32 v13, 5, v0\nv_lshl_add_u32 v{pWA}, v13, 19, v{pWB}")
    agroups = [ag0, ag1, ag2, ag3, ag4, ag5]
    stamp(0)
    nxt = {0: [("A", 3)], 1: [("A", 4)], 2: [("A", 5)], 3: [("A", 6)], 4: [("A", 7), ("B", 0)], 5: [("B", 1), ("B", 2)], 6: [("B", 3), ("B", 4)], 7: [("B", 5), ("B", 6)]}
    if LOOK == 4: nxt[0] = [("A", 4)]; nxt[1] = [("B", 0)]; nxt[4] = [("A", 7)]
    if LOOK == 2: nxt[0] = [("A", 2), ("A", 3)]
    for s in range(8):
        vm.wait(f"A{s}")
        if s == 0: nonce(15)
        a("s_barrier")
        if s == 1:
            a(f"s_mov_b32 m0, {GLDS}\ns_mov_b32 s14, 0")
            dma(None, 0, 11, SG, 14, "G")
        for k, n in nxt[s]: (stA if k == "A" else stB)(n)
        if AG <= s < AG + 6: agroups[s - AG]()
    stamp(1)
    vm.wait("B1")
    a("s_barrier")
    stB(7)
    vm.wait("B3")
    a("s_barrier")
    vm.all()
    a("s_barrier")
    stamp(2)
    def kvdma(g0, g1, tag):
        for g in range(g0, g1 - 1, -1):
            a(f"s_add_u32 m0, s85, {g*8192}\ns_add_u32 s86, s84, {g*8192}")
            dma(None, 0, 11, SWS, 86, tag, sc=SCK); dma(None, 0, 11, SWS, 86, tag, off=1024, sc=SCK)
    PL = f"buffer_load_dword v12, v{pFQ}, {srd(SWS)}, 0 offen sc1"
    def chk(lo, hi, tgt):
        a(f"v_cmp_ne_u32 vcc, s{sN}, v12\ns_mov_b32 s82, {lo:#x}\ns_mov_b32 s83, {hi:#x}\ns_nop 2\ns_and_b64 vcc, vcc, s[82:83]\ns_cbranch_scc0 {tgt}")
    def pollm(lo, hi, name):
        a(f"s_mov_b32 s15, {SPIN}\n{name}:")
        chk(lo, hi, name + "_x")
        a(f"{PL}\ns_sub_u32 s15, s15, 1\ns_cmp_lg_u32 s15, 0\ns_waitcnt vmcnt(0)\ns_cbranch_scc1 {name}\n{name}_x:")
    M1, M2, M3 = ((0xc000c000, 0xffffffff), (0x30003000, 0), (0xffffffff, 0)) if STG else ((0xffffffff, 0xffffffff), (0, 0), (0, 0))
    a(f"{PL}\ns_waitcnt vmcnt(0)")
    pollm(*M1, "Lpq1")
    stamp(3)
    dma(89, 6144, 11, SWS, 88, "Q", sc="sc1")
    dma(None, 0, 11, SWS, 88, "Q", off=1024, sc="sc1")
    kvdma(15, 14, "KV1")
    chk(*M2, "LsA")
    a(f"{PL}\ns_waitcnt vmcnt(0)\ns_barrier")
    stamp(4)
    pollm(*M2, "Lpq2")
    q0 = list(vm.q)
    kvdma(13, 12, "KV2")
    a("s_branch LsC\nLsA:")
    vm.q = q0
    kvdma(13, 12, "KV2")
    vm.wait("KV1")
    a("s_barrier")
    stamp(4)
    a("LsC:")
    chk(*M3, "LsD")
    a(f"{PL}\ns_waitcnt vmcnt(0)\ns_barrier")
    pollm(*M3, "Lpq3")
    q0 = list(vm.q)
    kvdma(11, 7, "KV2b")
    a("s_branch LsF\nLsD:")
    vm.q = q0
    kvdma(11, 7, "KV2b")
    vm.wait("KV2")
    a("s_barrier\nLsF:")
    kvdma(6, 0, "KV3")
    def w2dma(n):
        sl = (n & 3) * 2048
        if n < 22:
            a(f"s_add_u32 s14, s90, {n*65536}")
            dma(89, sl, pW0, SW2, 14, f"W{n}"); dma(89, sl + 1024, pW1, SW2, 14, f"W{n}")
        else:
            a(f"s_add_u32 s14, s91, {(n-22)*16384}")
            dma(89, sl, pW0, SWO, 14, f"W{n}"); dma(89, sl + 1024, pW1, SWO, 14, f"W{n}")
    for n in range(3): w2dma(n)
    if WARM & 2:
        a(f"s_lshl_b32 s14, s{sQB}, 16\ns_add_u32 s14, s14, s90\nbuffer_load_dword v1, v{pWA}, {srd(SW2)}, s14 offen\ns_add_u32 s14, s14, {16*65536}\nbuffer_load_dword v2, v{pWB}, {srd(SW2)}, s14 offen")
        a(f"s_lshl_b32 s14, s{sQB}, 14\ns_add_u32 s14, s14, s91\nbuffer_load_dword v3, v{pWB}, {srd(SWO)}, s14 offen")
        vm.add("WM", 3)
    vm.wait("KV3")
    a("s_barrier")
    stamp(5)
    if FPRIO: a(f"s_setprio {FPRIO}")
    poll(pFH, 12, "Lph"); vm.q = []
    stamp(6)
    a(f"s_cmp_lg_u32 s2, 0\ns_cbranch_scc1 Lnall")
    poll(pALL, 12, "Lpa")
    a("Lnall:")
    a(f"buffer_load_dword v14, v{pG0}, {srd(SWS)}, 0 offen sc1\nbuffer_load_dword v15, v{pG1}, {srd(SWS)}, 0 offen sc1")
    a(f"buffer_load_ushort v{BS}, v{pB2}, {srd(SB2)}, 0 offen\nbuffer_load_ushort v{BS+4}, v{pB2}, {srd(SB2)}, 0 offen offset:64")
    vm.add("G", 4)
    NH = 8
    assert 0 < HD < NH
    def hload(n):
        b = HB + 8 * (n % NH)
        a(f"s_add_u32 s14, s93, {n*4096}\nbuffer_load_dwordx4 {vr(b,4)}, v{pH0}, {srd(SWS)}, s14 offen {SCH}\nbuffer_load_dwordx4 {vr(b+4,4)}, v{pH1}, {srd(SWS)}, s14 offen {SCH}")
        vm.add(f"H{n}", 2)
    for n in range(HD or NH): hload(n)
    hb = {HB1: range(NH, NH + HB1), HB2: range(NH + HB1, 22)}
    if HD: hb = {n: [n + HD] for n in range(22 - HD)}
    if EXP & 2: a("s_branch Lskip")
    def trreads(n, dst):
        sl = (n & 3) * 2048
        for ct in range(2):
            for u in range(2):
                a(f"ds_read_b64_tr_b16 {vr(dst+4*ct+2*u,2)}, v{pTR} offset:{sl+ct*1024+u*512}")
    def mf4(wb, h0, h1, first):
        for ct in range(2):
            for rt in range(2):
                d = vr(FA + 16 * (2 * rt + ct), 16)
                a(f"{MF} {d}, {vr(wb+4*ct,4)}, {vr(h1 if rt else h0,4)}, {'0' if first else d}")
    for n in range(30):
        if n + 3 < 30: w2dma(n + 3)
        for m in hb.get(n, []): hload(m)
        vm.wait(f"H{n}"); vm.wait(f"W{n}")
        if n < 22:
            wb = W2F + 8 * (n & 1)
            if n == 21: a(f"s_cmp_ge_u32 s{sI}, 2\ns_cbranch_scc1 Lb2")
            trreads(n, wb)
            a("s_waitcnt lgkmcnt(0)")
            if not (EXP & 1): mf4(wb, HB + 8 * (n % NH), HB + 8 * (n % NH) + 4, n == 0)
            if n == 21:
                a(f"s_branch Lb2x\nLb2:\ns_cmp_eq_u32 s{sI}, 3\ns_cbranch_scc1 Lb2x")
                mf4(BS, BS + 8, BS + 8, False)
                a("Lb2x:")
        else:
            trreads(n, WOF + 8 * (n - 22))
            a("s_waitcnt lgkmcnt(0)")
        if EXP & 8 and n in (10, 21, 29): stamp({10: 3, 21: 4, 29: 6}[n])
    if VPRIO: a(f"s_setprio {VPRIO}")
    if not BAR1: a(f"buffer_load_dword v12, v{pFO}, {srd(SWS)}, 0 offen sc1")
    a("Lskip:")
    stamp(7)
    sNL, sNM, sE, sT = 80, 81, 82, 83
    if FPRIO or VPRIO: a("s_setprio 0")
    if BAR1:
        a("s_barrier")
        stamp(8)
        a(f"buffer_load_dword v12, v{pFO}, {srd(SWS)}, 0 offen sc1")
    a("v_sub_f32 v14, 1.0, v14\nv_sub_f32 v15, 1.0, v15")
    for k in range(32): a(f"v_pk_mul_f32 {vr(FA+2*k,2)}, {vr(FA+2*k,2)}, v[14:15] op_sel:[0,{k >> 4}] op_sel_hi:[1,{k >> 4}]")
    a(f"s_mov_b32 s{sNL}, 0\ns_mov_b32 s{sNM}, 0\ns_mov_b32 s15, {SPIN}")
    a(f"Lw:\ns_waitcnt vmcnt(0)\nv_cmp_ne_u32 vcc, s{sN}, v12\ns_sub_u32 s15, s15, 1\ns_cmp_eq_u32 s15, 0\ns_cbranch_scc1 Lwx\ns_mov_b32 s{sT}, s{sNL}\ns_nop 1")
    a(f"s_and_b32 s14, vcc_lo, 0xff\ns_bitset1_b32 s14, 8\ns_ff1_i32_b32 s{sE}, s14\ns_max_u32 s{sE}, s{sE}, s{sNL}\ns_cmp_eq_u32 s{sE}, s{sNM}\ns_cbranch_scc0 Lw2")
    a(f"buffer_load_dword v12, v{pFO}, {srd(SWS)}, 0 offen sc1\ns_branch Lw\nLw2:")
    if PROF == 1: a(f"s_cmp_lg_u32 s{sNL}, 0\ns_cbranch_scc1 Lpf1\ns_memrealtime s[34:35]\ns_sub_u32 s16, {SPIN}, s15\nLpf1:")
    a(f"s_sub_u32 s14, s{sE}, s{sNL}\ns_bfm_b32 s84, s14, s{sNL}")
    for hh in range(8):
        b = OF + 8 * hh
        a(f"s_bitcmp1_b32 s84, {hh}\ns_cbranch_scc0 Lwi{hh}\ns_add_u32 s14, s94, {hh*2048}")
        a(f"buffer_load_dwordx4 {vr(b,4)}, v{pO0}, {srd(SWS)}, s14 offen sc1\nbuffer_load_dwordx4 {vr(b+4,4)}, v{pO1}, {srd(SWS)}, s14 offen sc1\nLwi{hh}:")
    if PROF == 1: a(f"s_memrealtime s[20:21]")
    a(f"s_mov_b32 s{sNL}, s{sE}\ns_cmp_eq_u32 s{sE}, 8\ns_cselect_b32 s{sT}, 8, s{sT}\ns_cbranch_scc1 Lw4\nbuffer_load_dword v12, v{pFO}, {srd(SWS)}, 0 offen sc1\nLw4:")
    a(f"s_sub_u32 s14, s{sT}, s{sNM}\ns_bfm_b32 s84, s14, s{sNM}\ns_mov_b32 s{sNM}, s{sT}")
    for hh in range(8):
        b = OF + 8 * hh
        a(f"s_bitcmp1_b32 s84, {hh}\ns_cbranch_scc0 Lwv{hh}\ns_waitcnt vmcnt({2*(7-hh)})")
        mf4(WOF + 8 * hh, b, b + 4, False)
        a(f"Lwv{hh}:")
    a(f"s_cmp_lg_u32 s{sNM}, 8\ns_cbranch_scc1 Lw\nLwx:")
    if PROF == 1: a(f"s_sub_u32 s18, {SPIN}, s15\ns_memrealtime s[26:27]")
    if not BAR1:
        a("s_barrier")
        stamp(8)
    stamp(10)
    a("s_nop 7")
    for j in (2, 1, 3):
        for q in range(4):
            a(f"ds_write_b128 v{pR+j}, {vr(FA+16*j+4*q,4)} offset:{q*1024}")
    a("s_waitcnt lgkmcnt(0)\ns_barrier")
    for j in range(1, 4):
        for q in range(4):
            a(f"ds_read_b128 {vr(FA+16*j+4*q,4)}, v{pR} offset:{(j-1)*4096+q*1024}")
    a(f"s_cmp_lg_u32 s2, 0\ns_cbranch_scc1 Lnoep\ns_cmp_lg_u32 s{sI}, 0\ns_cbranch_scc1 Lnoep\ns_mov_b32 s14, {EPOCH}")
    flag_store(14, 12)
    a("Lnoep:")
    for j in range(1, 4):
        a(f"s_waitcnt lgkmcnt({12-4*j})")
        for k in range(8): a(f"v_pk_add_f32 {vr(FA+2*k,2)}, {vr(FA+2*k,2)}, {vr(FA+16*j+2*k,2)}")
    for k in range(8): a(f"v_cvt_pk_bf16_f32 v{FA+k}, v{FA+2*k}, v{FA+2*k+1}")
    a("s_nop 1")
    for k in (0, 1, 4, 5): a(f"v_permlane32_swap_b32 v{FA+k}, v{FA+k+2}")
    a("s_nop 0")
    a(f"buffer_store_dwordx4 {vr(FA,4)}, v{pOUT}, {srd(SOUT)}, 0 offen\nbuffer_store_dwordx4 {vr(FA+4,4)}, v{pOUT}, {srd(SOUT)}, 0 offen offset:32")
    stamp(11)
    prof_out(1)
    a("Lend:\ns_endpgm")
    a(f""".section .rodata,"a"
.p2align 6
.amdhsa_kernel {KN}
.amdhsa_next_free_vgpr 256
.amdhsa_next_free_sgpr 102
.amdhsa_accum_offset 256
.amdhsa_group_segment_fixed_size 0
.amdhsa_kernarg_size 96
.amdhsa_user_sgpr_count 2
.amdhsa_user_sgpr_kernarg_segment_ptr 1
.amdhsa_system_sgpr_workgroup_id_x 1
.end_amdhsa_kernel""")
    open(path, "w").write(a.text())


if __name__ == "__main__":
    kw = {}
    for x in sys.argv[2:]:
        k, v = x.split("=")
        kw[k] = int(v)
    gen(sys.argv[1], **kw)
```

```python
import sys, os
sys.path.insert(0, os.path.dirname(os.path.abspath(__file__)))
from asmlib import Asm
KN = "gated_mix__softmax_full_mha__dense_activation_squared_relu__prompt_kernel"

WQ, WKV, WH, WO_, WG = 0, 0x200000, 0x600000, 0xC00000, 0xE00000
FQ, FH, FO, EPOCH, WPROF = 0xE10000, 0xE20000, 0xE30000, 0xE50000, 0xF00000
SLOT = 28672
RING = 131072
GLDS = 155648
SPIN = 400000
sW, sX, sJ, sR, sC, sROT, sHEAD, sQB, sSUB, sCB, sN = 3, 4, 5, 6, 7, 8, 9, 10, 11, 12, 13
SX, SWQ, SW1, SWS, SWO, SW2, SOUT, SB1, SB2, SG = 40, 44, 48, 52, 56, 60, 64, 68, 72, 76
sMASK, sCNT, sI = 96, 98, 99


def srd(b): return f"s[{b}:{b+3}]"
def vr(b, n): return f"v[{b}:{b+n-1}]" if n > 1 else f"v{b}"
MF = "v_mfma_f32_32x32x16_bf16"
SM = "v_smfmac_f32_32x32x32_bf16"


class VM:
    def __init__(s, a): s.a = a; s.q = []
    def add(s, tag, n=1): s.q += [tag] * n
    def wait(s, tag):
        idx = [i for i, t in enumerate(s.q) if t == tag]
        if not idx: return
        n = len(s.q) - 1 - idx[-1]
        assert n < 64
        s.a(f"s_waitcnt vmcnt({n})")
        s.q = s.q[idx[-1] + 1:]
    def all(s): s.a("s_waitcnt vmcnt(0)"); s.q = []


class LG:
    def __init__(s, a): s.a = a; s.q = []
    def add(s, tag): s.q.append(tag)
    def wait(s, *tags):
        idx = [i for i, t in enumerate(s.q) if t in tags]
        if not idx: return
        n = min(len(s.q) - 1 - idx[-1], 15)
        s.a(f"s_waitcnt lgkmcnt({n})")
        s.q = s.q[len(s.q) - n:] if n else []
    def all(s): s.a("s_waitcnt lgkmcnt(0)"); s.q = []


def gen(path, PROF=0, FQPOS=4, PRIO=0, FORCE_SLOW=0, SPIN=SPIN, LOOK=3, DBG=0, HDEF=1, NSC=0, BAR1=0, FPRIO=0, HB1=6, HB2=12, EXP=0, HD=5, UNR=1, STG=1, WARM=0, HT0=4, HTF=12, B1=3, B2=11, GL=1, FOS=0, VPRIO=0, AG=0, OSC=0, EARLY=1):
    SCK = '' if NSC & 1 else 'sc1'
    SCH = '' if NSC & 2 else 'sc1'
    SCO = '' if NSC & 4 else 'sc1'
    a = Asm()
    lab = [0]
    def stamp(i):
        if PROF == 1: a(f"s_memrealtime s[{16+2*i}:{17+2*i}]")
    def cstamp(i):
        if PROF == 1: a(f"s_memtime s[{16+2*i}:{17+2*i}]")
    def st3(i):
        if PROF == 3: a(f"s_memtime s[{16+2*i}:{17+2*i}]")
    def dbg_srd(b):
        if DBG: a(f"s_mov_b32 s{b}, s36\ns_mov_b32 s{b+1}, s37\ns_mov_b32 s{b+2}, 256\ns_mov_b32 s{b+3}, 0x20000")
    def dbg_out(b, idxs, o, last):
        lab[0] += 1
        a(f"s_waitcnt lgkmcnt(0)\ns_mov_b64 exec, 1\nv_mov_b32 v1, s{16+2*last}\nbuffer_atomic_umax v1, off, {srd(b)}, 0 offset:56\ns_not_b32 s14, s16\nv_mov_b32 v2, s14\nbuffer_atomic_umax v2, off, {srd(b)}, 0 offset:60")
        a(f"s_cmp_lg_u32 s2, {DBG}\ns_cbranch_scc1 Ldb{lab[0]}\ns_cmp_lg_u32 s{sI}, 0\ns_cbranch_scc1 Ldb{lab[0]}")
        for n, k in enumerate(idxs): a(f"v_mov_b32 v{3+n}, s{16+2*k}\nbuffer_store_dword v{3+n}, off, {srd(b)}, 0 offset:{4*(o+n)}")
        a(f"Ldb{lab[0]}:\ns_mov_b64 exec, -1")
    def prof_out(who=0):
        if DBG:
            if who == 0: dbg_out(76, [0, 1, 2, 3, 4, 5, 6], 0, 6)
            else: dbg_out(68, [2, 3, 6, 7, 9, 10, 11], 7, 11)
            return
        if not PROF: return
        a("s_waitcnt lgkmcnt(0)")
        a(f"s_lshl_b32 s14, s2, 3\ns_add_u32 s14, s14, s{sW}\ns_lshl_b32 s14, s14, 6\ns_add_u32 s14, s14, {WPROF}")
        a("s_mov_b64 exec, 1")
        for i in range(12):
            a(f"v_mov_b32 v1, s{16+2*i}\nbuffer_store_dword v1, off, {srd(SWS)}, s14 offset:{4*i}")
        a("s_mov_b64 exec, -1")
    def poll(vaddr, vtmp, name):
        va = vaddr if isinstance(vaddr, list) else [vaddr]
        a(f"s_mov_b32 s15, {SPIN}")
        a(f"{name}:")
        for k, v in enumerate(va): a(f"buffer_load_dword v{vtmp+k}, v{v}, {srd(SWS)}, 0 offen sc1")
        a("s_sub_u32 s15, s15, 1\ns_cmp_eq_u32 s15, 0")
        a(f"s_cbranch_scc1 {name}_x")
        a("s_waitcnt vmcnt(0)")
        for k in range(1, len(va)): a(f"v_xor_b32 v{vtmp+k}, s{sN}, v{vtmp+k}")
        if len(va) > 1:
            a(f"v_xor_b32 v{vtmp}, s{sN}, v{vtmp}\nv_or3_b32 v{vtmp}, v{vtmp}, v{vtmp+1}, v{vtmp+len(va)-1}\nv_cmp_ne_u32 vcc, 0, v{vtmp}")
        else: a(f"v_cmp_ne_u32 vcc, s{sN}, v{vtmp}")
        a(f"s_nop 4\ns_cmp_lg_u64 vcc, 0\ns_cbranch_scc1 {name}")
        a(f"{name}_x:\ns_waitcnt vmcnt(0)")
    def flag_store(soff, vtmp):
        a(f"v_mov_b32 v{vtmp}, s{sN}\ns_mov_b64 exec, 1\nbuffer_store_dword v{vtmp}, off, {srd(SWS)}, s{soff} sc1\ns_mov_b64 exec, -1")

    a("; @launch grid=(256,1,1) block=(512,1,1) lds=163840")
    a('.amdgcn_target "amdgcn-amd-amdhsa--gfx950"')
    a(f".text\n.globl {KN}\n.p2align 8\n.type {KN},@function\n{KN}:")
    a("s_cmp_ge_u32 s2, 256\ns_cbranch_scc1 Lend")
    if EXP & 16: a("s_memrealtime s[100:101]")
    a("s_load_dwordx16 s[16:31], s[0:1], 0\ns_load_dwordx8 s[32:39], s[0:1], 64")
    a(f"v_lshrrev_b32 v1, 6, v0\nv_and_b32 v0, 63, v0\ns_and_b32 s{sX}, s2, 7\nv_readfirstlane_b32 s{sW}, v1\ns_lshr_b32 s{sJ}, s2, 3")
    a(f"s_and_b32 s14, s{sX}, 1\ns_lshl_b32 s14, s14, 3\ns_and_b32 s15, s{sJ}, 7\ns_add_u32 s{sR}, s14, s15")
    a(f"s_lshr_b32 s14, s{sX}, 1\ns_lshl_b32 s14, s14, 2\ns_lshr_b32 s80, s{sJ}, 3\ns_add_u32 s{sC}, s14, s80")
    a(f"s_lshl_b32 s80, s80, 1\ns_add_u32 s{sROT}, s15, s80")
    a(f"s_and_b32 s{sI}, s{sW}, 3")
    sizes = {SX: (16, 2097152), SWQ: (18, 1572864), SWO: (20, 524288), SW1: (24, 1409024), SB1: (26, 2752),
             SW2: (28, 1409024), SB2: (30, 1024), SG: (32, 1024), SOUT: (34, 2097152), SWS: (38, 268435456)}
    def srd_size(lst):
        for b in lst: a(f"s_mov_b32 s{b+2}, {sizes[b][1]}\ns_mov_b32 s{b+3}, 0x20000")
    def common2():
        a(f"s_and_b32 s14, s{sJ}, 3\ns_lshl_b32 s15, s{sX}, 2\ns_add_u32 s{sHEAD}, s15, s14\ns_lshr_b32 s{sQB}, s{sJ}, 2")
        a(f"s_and_b32 s{sSUB}, s{sX}, 3\ns_and_b32 s15, s{sX}, 4\ns_add_u32 s{sCB}, s15, s14")
    a(f"s_cmp_lt_u32 s{sW}, 4\ns_cbranch_scc1 Lcomp")
    a(";@@COMP")
    a("Lcomp:")

    def mk_srd(lst):
        for b in lst:
            p = sizes[b][0]
            a(f"s_mov_b32 s{b}, s{p}\ns_mov_b32 s{b+1}, s{p+1}")
    def nonce(v):
        a(f"v_readfirstlane_b32 s14, v{v}\ns_mul_i32 s{sN}, s14, 0x9E3779B1\ns_add_u32 s{sN}, s{sN}, 0x7F4A7C15\ns_or_b32 s{sN}, s{sN}, 0x80000000")
        a(f"s_xor_b32 s15, s{sN}, 1\ns_cmp_eq_u32 s{sN}, s14\ns_cselect_b32 s{sN}, s15, s{sN}")

    XF, ACC, WF, BI = 16, 144, 192, 240
    vL31, vH, vXA, vWL, vWA, vT, vQS, vST = 1, 2, 3, 7, 8, 9, 12, 13
    if WARM & 1:
        a(f"s_getpc_b64 s[92:93]\nLpc:\ns_sub_u32 s92, s92, Lpc-{KN}\ns_subb_u32 s93, s93, 0\ns_and_b32 s14, s{sJ}, 3\ns_lshl_b32 s14, s14, 2\ns_add_u32 s14, s14, s{sI}\ns_lshl_b32 s14, s14, 12\nv_lshl_add_u32 v9, v0, 6, s14\nv_min_u32 v9, Llast_-{KN}, v9")
        a("global_load_dword v16, v9, s[92:93]")
    common2(); srd_size([SWS, SB1, SX, SWQ])
    a(f"s_mov_b32 s{sMASK}, 0xffff\ns_mov_b32 s{sMASK+1}, 0xffff")
    a(f"v_and_b32 v{vL31}, 31, v0\nv_lshrrev_b32 v{vH}, 5, v0")
    a(f"v_bfe_u32 v9, v0, 1, 3\nv_xor_b32 v9, v9, v{vH}\nv_lshlrev_b32 v9, 4, v9\nv_lshl_add_u32 v9, v{vL31}, 7, v9")
    a(f"s_lshl_b32 s14, s{sI}, 12\nv_add_u32 v{vXA}, s14, v9")
    for k in range(1, 4): a(f"v_xor_b32 v{vXA+k}, {32*k}, v{vXA}")
    a(f"v_bfe_u32 v9, v0, 2, 2\nv_lshl_add_u32 v9, v{vH}, 3, v9\nv_mul_u32_u24 v9, 192, v9\nv_bfe_u32 v10, v0, 4, 1\nv_lshl_add_u32 v9, v10, 5, v9")
    a(f"v_and_b32 v10, 3, v0\nv_lshl_add_u32 v{vWL}, v10, 3, v9")
    a(f"v_lshlrev_b32 v{vQS}, 4, v0")
    a(f"v_and_b32 v9, 0x33, v0\nv_and_b32 v10, 4, v0\nv_lshl_add_u32 v9, v10, 1, v9\nv_bfe_u32 v10, v0, 3, 1\nv_lshl_add_u32 v9, v10, 2, v9\nv_lshlrev_b32 v9, 4, v9")
    a(f"v_and_b32 v11, 15, v0\nv_lshl_add_u32 v11, v{vH}, 4, v11\nv_lshlrev_b32 v11, 4, v11\nv_bfe_u32 v10, v0, 4, 1\nv_lshl_add_u32 v11, v10, 17, v11\nv_add_u32 v10, 1024, v11")
    a(f"s_lshl_b32 s14, s{sR}, 2\ns_add_u32 s80, s14, s{sI}")
    for i in range(3):
        o1, o2, sc = [81, 83, 92][i], [82, 84, 93][i], [90, 94, 100][i]
        a(f"s_mul_i32 s14, s{sC}, 3\ns_add_u32 s14, s14, {i}\ns_lshr_b32 s15, s14, 4\ns_and_b32 s14, s14, 15\ns_lshl_b32 s14, s14, 7\ns_add_u32 s14, s14, s80")
        a(f"s_lshl_b32 s{o1}, s14, 11\ns_add_u32 s{o1}, s{o1}, {WKV}\ns_lshl_b32 s14, s14, 10")
        a(f"s_movk_i32 s{o2}, 512\ns_cmp_eq_u32 s15, 1\ns_cselect_b32 s{o2}, 131072, s{o2}\ns_cselect_b64 vcc, -1, 0\nv_cndmask_b32 v{vST+i}, v10, v9, vcc")
        a(f"s_cmp_eq_u32 s15, 0\ns_cselect_b32 s{o2}, 65536, s{o2}\ns_cselect_b32 s{o1}, s14, s{o1}\ns_cselect_b32 s{sc}, 0x3eb8aa3b, 1.0\ns_cselect_b64 vcc, -1, 0\nv_cndmask_b32 v{vST+i}, v{vST+i}, v{vQS}, vcc")
        a(f"s_add_u32 s{o2}, s{o2}, s{o1}\ns_mov_b32 s{sc+1}, s{sc}")
    for k in range(16): a(f"v_mov_b32 v{BI+k}, 0")
    a(f"v_mov_b32 v9, 0x3f80\nv_cmp_gt_u32 vcc, 32, v0\ns_mul_i32 s14, s{sC}, 192\nv_lshl_add_u32 v10, v{vL31}, 1, s14\nv_cndmask_b32 v{BI+12}, 0, v9, vcc")
    a("s_waitcnt lgkmcnt(0)")
    mk_srd([SWS, SB1]); dbg_srd(76)
    if UNR:
        for b, lim in ((SX, 15), (SWQ, 14)):
            a(f"s_mov_b32 s{b}, s38\ns_mov_b32 s{b+1}, s39\ns_cmp_lt_u32 s{sC}, {lim}\ns_cselect_b32 s{b+2}, s{SWS+2}, 0")
    a(f"s_mov_b32 s15, {EPOCH}\nbuffer_load_dword v11, off, {srd(SWS)}, s15 sc1")
    for i in range(3): a(f"buffer_load_ushort v{BI+4*i}, v10, {srd(SB1)}, 0 offen offset:{64*i}")
    a(f"s_mul_i32 s85, s80, 86\ns_mul_i32 s14, s{sC}, 6\ns_add_u32 s85, s85, s14\ns_lshl_b32 s85, s85, 10\ns_add_u32 s85, s85, {WH}\ns_add_u32 s86, s85, 4096")
    a(f"s_lshl_b32 s14, s{sC}, 2\ns_add_u32 s14, s14, s{sI}\ns_lshl_b32 s14, s14, 5\ns_add_u32 s14, s14, s{sR}\ns_lshl_b32 s14, s14, 2\ns_add_u32 s87, s14, {FQ}")
    a(f"s_lshl_b32 s14, s80, 5\ns_add_u32 s14, s14, s{sC}\ns_lshl_b32 s14, s14, 2\ns_add_u32 s88, s14, {FH}")
    a("s_waitcnt vmcnt(0)")
    nonce(11)
    stamp(0)

    lg = LG(a)
    slots = [1, 2, 3, 4, 0, 1, 2, 3]
    segs = [0, 57344, 57344, 114688, 0, 0, 57344, 57344]
    bbase = [143360, 114688, 126976, 0, 12288, 28672, 40960, 57344]
    halves = [("A", s, hf) for s in range(8) for hf in range(2)] + [("B", t, hf) for t in range(8) for hf in range(2)]
    seg = [0]
    PB = {("A", 1): 0, ("A", 3): 2, ("A", 4): 4, ("A", 7): 6, ("B", 2): 8, ("B", 6): 10}
    def prep(h):
        k, s, hf = halves[h]
        if hf: return
        if k == "A":
            if segs[s] != seg[0]:
                for q in range(4): a(f"v_add_u32 v{vXA+q}, {(segs[s]-seg[0]) & 0xffffffff:#x}, v{vXA+q}")
                seg[0] = segs[s]
            a(f"v_add_u32 v{vWA}, {slots[s]*SLOT+16384}, v{vWL}")
        else:
            a(f"v_add_u32 v{vWA}, {bbase[s]}, v{vWL}")
        if k == "A" or s in (0, 2, 4):
            if PROF == 2 and (k, s) in PB: a(f"s_memtime s[{16+2*PB[(k,s)]}:{17+2*PB[(k,s)]}]")
            a("s_barrier")
            if PROF == 2 and (k, s) in PB: a(f"s_memtime s[{18+2*PB[(k,s)]}:{19+2*PB[(k,s)]}]")
    def reads(h):
        k, s, hf = halves[h]
        L = []
        for ksl in range(2):
            ks = 2 * hf + ksl
            if k == "A": L.append((f"ds_read_b128 {vr(XF+16*s+4*ks,4)}, v{vXA+ks} offset:{slots[s]*SLOT-segs[s]}", (h, ksl, "x")))
            for t in range(3):
                d = WF + 24 * hf + 12 * ksl + 4 * t
                for u in range(2):
                    L.append((f"ds_read_b64_tr_b16 {vr(d+2*u,2)}, v{vWA} offset:{t*64+ks*3072+u*768}", (h, ksl, t)))
        return L
    def emit_reads(L, n):
        for _ in range(min(n, len(L))):
            ins, tag = L.pop(0); a(ins); lg.add(tag)
    def half(h, pat='TTT'):
        k, s, hf = halves[h]
        L = []
        if h + 1 < len(halves):
            prep(h + 1); L = reads(h + 1)
        for j in range(6):
            ksl, t = j // 3, j % 3
            ks = 2 * hf + ksl
            lg.wait((h, ksl, "x"), (h, ksl, t))
            x = vr(XF + 16 * s + 4 * ks, 4); w = vr(WF + 24 * hf + 12 * ksl + 4 * t, 4); d = vr(ACC + 16 * t, 16)
            c = "0" if (h == 0 and ksl == 0) else d
            a(f"{MF} {d}, {x}, {w}, {c}" if (k == "A" and pat[t] == "N") else f"{MF} {d}, {w}, {x}, {c}")
            emit_reads(L, 3)
        assert not L
    prep(0)
    stamp(1)
    emit_reads(reads(0), 99)
    a(f"s_cmp_eq_u32 s{sC}, 10\ns_cbranch_scc1 LA_TTN\ns_cmp_gt_u32 s{sC}, 10\ns_cbranch_scc1 LA_NNN")
    q0, seg0 = list(lg.q), seg[0]
    for pat in ("TTT", "TTN", "NNN"):
        lg.q = list(q0); seg[0] = seg0
        a(f"LA_{pat}:")
        for h in range(16): half(h, pat)
        stamp(2); st3(0)
        a("s_nop 7")
        if pat[0] == "N": a("s_nop 1")
        for i in range(3):
            b = ACC + 16 * i
            o1, o2, sc = [81, 83, 92][i], [82, 84, 93][i], [90, 94, 100][i]
            if pat[i] == "T":
                for k in range(8): a(f"v_pk_mul_f32 {vr(b+2*k,2)}, {vr(b+2*k,2)}, s[{sc}:{sc+1}]")
            for k in range(8): a(f"v_cvt_pk_bf16_f32 v{b+k}, v{b+2*k}, v{b+2*k+1}")
            a(f"buffer_store_dwordx4 {vr(b,4)}, v{vST+i}, {srd(SWS)}, s{o1} offen sc1\nbuffer_store_dwordx4 {vr(b+4,4)}, v{vST+i}, {srd(SWS)}, s{o2} offen sc1")
            st3(1 + i)
        if pat != "NNN": a("s_branch LB")
    a(f"s_cmp_eq_u32 s{sC}, 15\ns_cbranch_scc1 Lgate")
    a("LB:")
    for i in range(3): a(f"{MF} {vr(ACC+16*i,16)}, {vr(BI+4*i,4)}, {vr(BI+12,4)}, 0")
    for h in range(16, 32):
        if FQPOS == h - 16:
            st3(7); a("s_waitcnt vmcnt(0)"); st3(8); flag_store(87, 9); stamp(11)
        half(h)
        if h - 16 < 3: st3(4 + h - 16)
    stamp(3); st3(9)
    def hstore1(i, m, sr=SWS):
        o = (2 * i + m) * 1024
        return f"buffer_store_dwordx4 {vr(ACC+16*i+4*m,4)}, v{vQS}, {srd(sr)}, s{85 if o < 4096 else 86} offen offset:{o % 4096} sc1"
    def hstore(i):
        for m in range(2): a(hstore1(i, m))
    a("s_nop 7")
    for i in range(3):
        b = ACC + 16 * i
        if i == 1: a(f"s_cmp_eq_u32 s{sC}, 14\ns_cbranch_scc1 Latt")
        for k in range(16): a(f"v_max_f32 v{b+k}, 0, v{b+k}")
        for k in range(8): a(f"v_pk_mul_f32 {vr(b+2*k,2)}, {vr(b+2*k,2)}, {vr(b+2*k,2)}")
        for k in range(8): a(f"v_cvt_pk_bf16_f32 v{b+k}, v{b+2*k}, v{b+2*k+1}")
        if not HDEF: hstore(i)
    a("s_branch Latt")
    a("Lgate:\ns_waitcnt lgkmcnt(0)")
    a(f"v_lshlrev_b32 v11, 4, v{vH}\nv_add_u32 v11, {GLDS}, v11")
    def gread(s_):
        a(f"s_add_u32 s14, s{sROT}, {s_}\ns_and_b32 s14, s14, 7\ns_lshl_b32 s14, s14, 7\nv_add_u32 v9, s14, v11")
        for ks in range(4): a(f"ds_read_b128 {vr(WF+16*(s_&3)+4*ks,4)}, v9 offset:{ks*32}")
    for s_ in range(3): gread(s_)
    a("s_waitcnt vmcnt(0)")
    flag_store(87, 10); stamp(11)
    if not GL: a("s_barrier\ns_barrier")
    for s_ in range(8):
        if s_ + 3 < 8: gread(s_ + 3)
        a(f"s_waitcnt lgkmcnt({4*min(3, 7-s_)})")
        for ks in range(4):
            d = vr(ACC + 16 * (ks & 1), 16)
            a(f"{MF} {d}, {vr(WF+16*(s_&3)+4*ks,4)}, {vr(XF+16*s_+4*ks,4)}, {'0' if s_ == 0 and ks < 2 else d}")
    a(f"s_nop 7\ns_nop 7\nv_add_f32 v{ACC}, v{ACC}, v{ACC+16}")
    a(f"v_mul_f32 v9, 0xbfb8aa3b, v{ACC}\nv_exp_f32 v9, v9\ns_lshl_b32 s14, s80, 7\ns_add_u32 s14, s14, {WG}\nv_add_f32 v9, 1.0, v9\nv_rcp_f32 v9, v9\nv_lshlrev_b32 v10, 2, v{vL31}\ns_nop 0")
    a(f"buffer_store_dword v9, v10, {srd(SWS)}, s14 offen sc1")
    if GL: a("s_waitcnt vmcnt(0)\ns_barrier\ns_barrier")

    X, Y, OA, OB, QA, QB, KB, VB, IDX, vK, vV, vGF, vGA, vFL, GA, GBv = 16, 32, 48, 64, 80, 84, 88, 96, 112, 113, 114, 115, 116, 117, 118, 119
    a("Latt:")
    st3(10)
    for k in range(32): a(f"v_mov_b32 v{OA+k}, 0")
    a(f"v_and_b32 v9, 27, v0\nv_cmp_eq_u32 vcc, 16, v9\nv_mov_b32 v10, 0x3f803f80\nv_mov_b32 v{IDX}, 0xdddddddd\nv_add_u32 v{vK}, {(32 if UNR else 58)*2048}, v{vQS}")
    a(f"v_cndmask_b32 v{VB}, 0, v10, vcc")
    for k in range(1, 16): a(f"v_mov_b32 v{VB+k}, v{VB}")
    a(f"v_and_b32 v9, 15, v0\nv_lshl_add_u32 v9, v{vH}, 4, v9\nv_lshlrev_b32 v9, 4, v9\nv_add_u32 v{vV}, {(32 if UNR else 58)*2048+1024}, v9")
    T0 = 31 if UNR else 5
    a(f"s_lshl_b32 s14, s{sI}, 13\ns_add_u32 s14, s14, {RING+6144}\nv_add_u32 v9, s14, v{vQS}")
    a(f"s_lshl_b32 s14, s{sQB}, 2\ns_add_u32 s80, s14, s{sI}\ns_lshl_b32 s14, s80, 8\ns_add_u32 s15, s14, {FH+60}\ns_add_u32 s14, s14, {WG}\nv_lshl_add_u32 v{vGA}, v{vL31}, 2, s14")
    a(f"v_and_b32 v10, 1, v0\nv_lshl_add_u32 v{vGF}, v10, 7, s15")
    a(f"s_lshl_b32 s14, s80, 2\ns_lshr_b32 s15, s{sHEAD}, 3\ns_add_u32 s14, s14, s15\ns_lshl_b32 s14, s14, 5\ns_and_b32 s15, s{sHEAD}, 7\ns_add_u32 s14, s14, s15\ns_lshl_b32 s14, s14, 2\ns_add_u32 s89, s14, {FO}")
    a(f"s_lshl_b32 s14, s80, 5\ns_add_u32 s14, s14, s{sHEAD}\ns_lshl_b32 s81, s14, 11\ns_add_u32 s81, s81, {WO_}")
    if FOS: a(f"s_lshl_b32 s14, s14, {FOS}\ns_add_u32 s89, s14, {FO}")
    a(f"s_mov_b32 s{sCNT}, 0")
    a("s_barrier")
    stamp(4); cstamp(7); st3(11)
    if PRIO: a(f"s_setprio {PRIO}")
    a(f"ds_read_b128 {vr(QA,4)}, v9\nds_read_b128 {vr(KB,4)}, v{vK} offset:{T0*2048}\nds_read_b128 {vr(QB,4)}, v9 offset:1024\nds_read_b128 {vr(KB+4,4)}, v{vK} offset:{(T0-1)*2048}")
    a(f"s_mov_b64 exec, s[{sMASK}:{sMASK+1}]\nds_read_b128 {vr(VB,4)}, v{vV} offset:{T0*2048}\nds_read_b128 {vr(VB+4,4)}, v{vV} offset:{T0*2048+512}\ns_mov_b64 exec, -1")
    a(f"s_waitcnt lgkmcnt(4)\n{MF} {vr(X,16)}, {vr(KB,4)}, {vr(QA,4)}, 0\ns_waitcnt lgkmcnt(2)\ns_nop 7\ns_nop 3")
    def ex(b, lo, hi):
        for k in range(lo, hi + 1): a(f"v_exp_f32 v{b+k}, v{b+k}")
    ex(X, 0, 1)
    def tile(u, koff, voff, last, ev={}):
        kc, kn = KB + 4 * (u & 1), KB + 4 * ((u + 1) & 1)
        vc, vn = VB + 8 * (u & 1), VB + 8 * ((u + 1) & 1)
        ex(X, 2, 4)
        a(f"{MF} {vr(Y,16)}, {vr(kc,4)}, {vr(QB,4)}, 0")
        a("s_waitcnt lgkmcnt(0)")
        if koff is not None: a(f"ds_read_b128 {vr(kc,4)}, v{vK} offset:{koff}")
        ex(X, 5, 9)
        a(f"{SM} {vr(OA,16)}, {vr(vc,4)}, {vr(X,8)}, v{IDX}")
        if voff is not None:
            a(f"s_mov_b64 exec, s[{sMASK}:{sMASK+1}]\nds_read_b128 {vr(vn,4)}, v{vV} offset:{voff}\nds_read_b128 {vr(vn+4,4)}, v{vV} offset:{voff+512}\ns_mov_b64 exec, -1")
        ex(X, 10, 15); ex(Y, 0, 1)
        a(f"{SM} {vr(OA,16)}, {vr(vc+4,4)}, {vr(X+8,8)}, v{IDX}")
        if "p2" in ev: ev["p2"]()
        ex(Y, 2, 4)
        if not last: a(f"{MF} {vr(X,16)}, {vr(kn,4)}, {vr(QA,4)}, 0")
        if "q2" in ev: ev["q2"]()
        ex(Y, 5, 9)
        a(f"{SM} {vr(OB,16)}, {vr(vc,4)}, {vr(Y,8)}, v{IDX}")
        if "p3" in ev: ev["p3"]()
        ex(Y, 10, 15)
        if not last: ex(X, 0, 1)
        else: a("s_nop 1")
        a(f"{SM} {vr(OB,16)}, {vr(vc+4,4)}, {vr(Y+8,8)}, v{IDX}")
        if "p4" in ev: ev["p4"]()
    if UNR:
        for n in range(64):
            ev = {}
            if n in (B1, B2): ev["p4"] = lambda: a("s_barrier")
            if HT0 <= n < HT0 + 6 and not (EXP & 4): ev["p3"] = lambda k=n-HT0: a(hstore1(k >> 1, k & 1, SX if k < 2 else SWQ))
            if n == HTF: ev["p3"] = lambda: (a("s_waitcnt vmcnt(0)"), flag_store(88, 9))
            if n == 29: ev["q2"] = lambda: a(f"v_add_u32 v{vK}, 0xffff0000, v{vK}")
            if n == 30: ev["q2"] = lambda: a(f"v_add_u32 v{vV}, 0xffff0000, v{vV}")
            if n == 46: ev["p3"] = lambda: a(f"buffer_load_dword v{vFL}, v{vGF}, {srd(SWS)}, 0 offen sc1")
            if n == 52: ev["p3"] = lambda: a(f"s_waitcnt vmcnt(0)\nv_cmp_ne_u32 vcc, s{sN}, v{vFL}")
            if n == 52: ev["p4"] = lambda: a(f"s_cmp_lg_u64 vcc, 0\ns_cbranch_scc1 Lgp\nLgpx:")
            if n == 53: ev["p2"] = lambda: a(f"buffer_load_dword v{GA}, v{vGA}, {srd(SWS)}, 0 offen sc1")
            if n == 53: ev["p3"] = lambda: a(f"buffer_load_dword v{GBv}, v{vGA}, {srd(SWS)}, 0 offen offset:128 sc1")
            kt, vt = 61 - n, 62 - n
            tile(n, (kt & 31) * 2048 if kt >= 0 else None, (vt & 31) * 2048 if vt >= 0 else None, n == 63, ev)
    UNR or a("Lloop:")
    if not UNR:
        for u in range(4): tile(u, (3 - u) * 2048, (4 - u) * 2048, False)
        a(f"s_add_u32 s{sCNT}, s{sCNT}, 1\nv_add_u32 v{vK}, 0xffffe000, v{vK}\nv_add_u32 v{vV}, 0xffffe000, v{vV}")
        a(f"s_bitcmp1_b32 {(1<<1)|(1<<3)|(1<<12)|(1<<13)|(1<<15)}, s{sCNT}\ns_cbranch_scc0 Lloop")
        a(f"s_cmp_eq_u32 s{sCNT}, 15\ns_cbranch_scc1 Llast\ns_cmp_eq_u32 s{sCNT}, 12\ns_cbranch_scc1 Lev2\ns_cmp_eq_u32 s{sCNT}, 13\ns_cbranch_scc1 Lev3\ns_cmp_eq_u32 s{sCNT}, 3\ns_cbranch_scc1 Lev1")
        if HDEF:
            a(f"s_barrier\ns_cmp_eq_u32 s{sC}, 15\ns_cbranch_scc1 Lloop")
            if EXP & 4: a("s_branch Lloop")
            hstore(0)
            a(f"s_cmp_eq_u32 s{sC}, 14\ns_cbranch_scc1 Lloop")
            hstore(1); hstore(2)
            a("s_branch Lloop\nLev1:\ns_waitcnt vmcnt(0)")
            flag_store(88, 9)
            a("s_barrier\ns_branch Lloop")
        else:
            a("s_waitcnt vmcnt(0)")
            flag_store(88, 9)
            a("Lev1:\ns_barrier\ns_branch Lloop")
        a(f"Lev2:\nbuffer_load_dword v{vFL}, v{vGF}, {srd(SWS)}, 0 offen sc1\ns_branch Lloop")
        a(f"Lev3:\ns_waitcnt vmcnt(0)\nv_cmp_ne_u32 vcc, s{sN}, v{vFL}\ns_nop 4\ns_cmp_eq_u64 vcc, 0\ns_cbranch_scc1 Lev3b")
        poll(vGF, vFL, "Lpg")
        a(f"Lev3b:\nbuffer_load_dword v{GA}, v{vGA}, {srd(SWS)}, 0 offen sc1\nbuffer_load_dword v{GBv}, v{vGA}, {srd(SWS)}, 0 offen offset:128 sc1\ns_branch Lloop")
        a(f"Llast:\nv_add_u32 v{vK}, 4096, v{vK}\nv_add_u32 v{vV}, 4096, v{vV}")
        for u in range(4): tile(u, (1 - u) * 2048 if u < 2 else None, (2 - u) * 2048 if u < 3 else None, u == 3)
    stamp(5); cstamp(8)
    def fin(chk):
        for n, O in enumerate((OA, OB)):
            if n == 1 and chk: a("s_nop 4")
            a(f"v_rcp_f32 v{9+n}, v{O+8}\ns_nop 0")
            a(f"v_mul_f32 v{9+n}, v{9+n}, v{GA+n}")
            for k in range(8): a(f"v_mul_f32 v{O+k}, v{9+n}, v{O+k}")
            for k in range(4): a(f"v_cvt_pk_bf16_f32 v{O+k}, v{O+2*k}, v{O+2*k+1}")
            a(f"buffer_store_dwordx4 {vr(O,4)}, v{vQS}, {srd(SWS)}, s81 offen offset:{1024*n} sc1")
    a("s_waitcnt vmcnt(0)")
    fin(True)
    a("s_mov_b32 s14, 0x7fff7fff\ns_mov_b32 s15, 0x30800000\ns_mov_b32 s92, 0x5f800000")
    for k in range(8): a(f"v_and_b32 v{X+k}, s14, v{(OA if k < 4 else OB)+(k&3)}")
    for st in (4, 2, 1):
        for k in range(st): a(f"v_pk_max_u16 v{X+k}, v{X+k}, v{X+k+st}")
    a(f"v_lshrrev_b32 v{X+1}, 16, v{X}\nv_and_b32 v{X}, 0xffff, v{X}\nv_max_u32 v{X}, v{X}, v{X+1}")
    a(f"v_min_f32 v9, v{OA+8}, v{OB+8}\nv_max_f32 v10, v{OA+8}, v{OB+8}\nv_cmp_u_f32 s[82:83], v{OA+8}, v{OB+8}")
    a(f"v_cmp_gt_u32 vcc, 0x7f80, v{X}\nv_cmp_lt_f32 s[84:85], s15, v9\nv_cmp_gt_f32 s[86:87], s92, v10\ns_nop 4")
    a("s_and_b64 vcc, vcc, s[84:85]\ns_and_b64 vcc, vcc, s[86:87]\ns_andn2_b64 vcc, vcc, s[82:83]\ns_cmp_lg_u64 vcc, -1\ns_cbranch_scc1 Lslow")
    if FORCE_SLOW: a("s_branch Lslow")
    a("Lfin:")
    if BAR1: a("s_barrier")
    a("s_waitcnt vmcnt(0)")
    flag_store(89, 9)
    stamp(6)
    prof_out()
    a("s_endpgm")
    if UNR:
        a("Lgp:")
        poll(vGF, vFL, "Lpg")
        a("s_branch Lgpx")
    NA, NB = 120, 136
    a("Lslow:")
    a(f"v_mov_b32 v{vK}, v{vQS}\nv_mov_b32 v9, 0xff800000\nv_mov_b32 v10, 0xff800000\ns_mov_b32 s{sCNT}, 0")
    a(f"Ls1:\nds_read_b128 {vr(KB,4)}, v{vK}\nv_add_u32 v{vK}, 2048, v{vK}\ns_add_u32 s{sCNT}, s{sCNT}, 1\ns_waitcnt lgkmcnt(0)")
    a(f"{MF} {vr(X,16)}, {vr(KB,4)}, {vr(QA,4)}, 0\n{MF} {vr(Y,16)}, {vr(KB,4)}, {vr(QB,4)}, 0\ns_nop 7\ns_nop 3")
    for n, S in enumerate((X, Y)):
        for k in range(8): a(f"v_max3_f32 v{9+n}, v{9+n}, v{S+2*k}, v{S+2*k+1}")
    a(f"s_cmp_lt_u32 s{sCNT}, 64\ns_cbranch_scc1 Ls1")
    for n, N in enumerate((NA, NB)):
        a(f"v_mov_b32 v11, v{9+n}\ns_nop 1\nv_permlane32_swap_b32 v{9+n}, v11\ns_nop 1\nv_max_f32 v11, v11, v{9+n}\nv_xor_b32 v11, 0x80000000, v11")
        for k in range(16): a(f"v_mov_b32 v{N+k}, v11")
    for k in range(32): a(f"v_mov_b32 v{OA+k}, 0")
    a(f"v_mov_b32 v{vK}, v{vQS}\ns_mov_b32 s{sCNT}, 0")
    a(f"Ls2:\nds_read_b128 {vr(KB,4)}, v{vK}\ns_mov_b64 exec, s[{sMASK}:{sMASK+1}]\nds_read_b128 {vr(VB,4)}, v{vV}\nds_read_b128 {vr(VB+4,4)}, v{vV} offset:512\ns_mov_b64 exec, -1")
    a(f"v_add_u32 v{vK}, 2048, v{vK}\nv_add_u32 v{vV}, 2048, v{vV}\ns_add_u32 s{sCNT}, s{sCNT}, 1\ns_waitcnt lgkmcnt(0)")
    a(f"{MF} {vr(X,16)}, {vr(KB,4)}, {vr(QA,4)}, {vr(NA,16)}\n{MF} {vr(Y,16)}, {vr(KB,4)}, {vr(QB,4)}, {vr(NB,16)}\ns_nop 7\ns_nop 3")
    ex(X, 0, 15); ex(Y, 0, 15)
    a("s_nop 1")
    a(f"{SM} {vr(OA,16)}, {vr(VB,4)}, {vr(X,8)}, v{IDX}\n{SM} {vr(OB,16)}, {vr(VB,4)}, {vr(Y,8)}, v{IDX}")
    a(f"{SM} {vr(OA,16)}, {vr(VB+4,4)}, {vr(X+8,8)}, v{IDX}\n{SM} {vr(OB,16)}, {vr(VB+4,4)}, {vr(Y+8,8)}, v{IDX}")
    a(f"s_cmp_lt_u32 s{sCNT}, 64\ns_cbranch_scc1 Ls2\ns_nop 7\ns_nop 7\ns_waitcnt vmcnt(0)")
    fin(False)
    a("s_branch Lfin")

    a("Llast_:\ns_endpgm")
    a(";@@LOAD")
    vm = VM(a)
    a(f"v_lshrrev_b32 v12, 3, v0\nv_and_b32 v13, 7, v0\nv_lshrrev_b32 v14, 4, v0\nv_xor_b32 v13, v13, v14\nv_lshlrev_b32 v12, 10, v12")
    a(f"s_lshl_b32 s14, s{sR}, 2\ns_add_u32 s14, s14, s{sI}\ns_lshl_b32 s14, s14, 15\nv_add_u32 v12, s14, v12")
    a(f"v_lshl_add_u32 v1, v13, 4, v12\nv_xor_b32 v2, 64, v1\nv_add_u32 v2, 8192, v2\nv_add_u32 v3, 16384, v1\nv_add_u32 v4, 16384, v2")
    a(f"s_mul_i32 s14, s{sC}, 192\ns_lshl_b32 s15, s{sI}, 4\ns_movk_i32 s82, 3072\ns_movk_i32 s83, 2752")
    for u in range(3):
        a(f"v_add_u32 v12, {64*u}, v0\nv_mul_u32_u24 v13, 5462, v12\nv_lshrrev_b32 v13, 16, v13\nv_mul_u32_u24 v14, 12, v13\nv_sub_u32 v12, v12, v14\nv_lshl_add_u32 v12, v12, 4, s14\nv_add_u32 v13, s15, v13")
        a(f"v_mad_u32_u24 v{5+u}, v13, s82, v12\nv_mad_u32_u24 v{8+u}, v13, s83, v12")
    a(f"s_lshl_b32 s80, s{sI}, 12\ns_mul_i32 s81, s{sI}, 3072")
    srd_size([SX, SWQ])
    def dma(mreg, mimm, v, sr, so, tag, off=0, sc=""):
        if mreg is not None: a(f"s_add_u32 m0, s{mreg}, {mimm}\ns_nop 0")
        a(f"buffer_load_dwordx4 v{v}, {srd(sr)}, s{so} offen {f'offset:{off}' if off else ''} {sc} lds")
        vm.add(tag)
    def stA(s):
        a(f"s_add_u32 s14, s{sROT}, {s}\ns_and_b32 s14, s14, 7\ns_lshl_b32 s82, s14, 7\ns_mul_i32 s83, s14, 196608")
        if s == 0:
            a("s_waitcnt lgkmcnt(0)")
            mk_srd([SX, SWQ])
            if EXP & 16: a("s_memrealtime s[96:97]")
        b = slots[s] * SLOT
        for u in range(4): dma(80, b + u * 1024, 1 + u, SX, 82, f"A{s}")
        for t in range(3): dma(81, b + 16384 + t * 1024, 5 + t, SWQ, 83, f"A{s}")
    def stB(t):
        a(f"s_add_u32 s14, s{sROT}, {t}\ns_and_b32 s14, s14, 7\ns_mul_i32 s83, s14, 176128")
        for i in range(3): dma(81, bbase[t] + i * 1024, 8 + i, SW1, 83, f"B{t}")
    stA(0)
    srd_size([SWS]); mk_srd([SWS])
    a(f"s_mov_b32 s15, {EPOCH}\nbuffer_load_dword v15, off, {srd(SWS)}, s15 sc1")
    vm.add("A0")
    for s in range(1, LOOK): stA(s)
    srd_size([SW1, SWO, SW2, SOUT, SB2, SG])
    mk_srd([SW1, SWO, SW2, SOUT, SB2, SG]); dbg_srd(68)
    a(f"s_cmp_eq_u32 s{sC}, 15\ns_cselect_b32 s{SW1+2}, 0, s{SW1+2}\nv_lshlrev_b32 v11, 4, v0")
    common2()
    FA, WOF, OF, HB, W2F, BS = 16, 80, 144, 144, 240, 132
    pFQ, pW0, pW1, pTR, pFH, pG0, pG1, pB2, pFO, pH0, pH1, pOUT, pO0, pO1, pALL, pWA, pWB, pR = range(208, 226)
    def ag0():
        a(f"s_lshr_b32 s84, s{sHEAD}, 1\ns_lshl_b32 s85, s{sI}, 7\ns_add_u32 s85, s85, {FQ}\nv_and_b32 v12, 15, v0\nv_lshlrev_b32 v12, 2, v12")
        a(f"s_add_u32 s14, s84, 16\ns_mul_i32 s14, s14, 21846\ns_lshr_b32 s14, s14, 16\ns_lshl_b32 s14, s14, 9\ns_add_u32 s14, s14, s85\nv_add_u32 v{pFQ}, s14, v12")
        a(f"s_add_u32 s14, s84, 32\ns_mul_i32 s14, s14, 21846\ns_lshr_b32 s14, s14, 16\ns_lshl_b32 s14, s14, 9\ns_add_u32 s14, s14, s85\nv_add_u32 v13, s14, v12\nv_cmp_gt_u32 vcc, 16, v0")
        a(f"s_mul_i32 s14, s84, 21846\ns_lshr_b32 s14, s14, 16\ns_lshl_b32 s14, s14, 9\nv_cndmask_b32 v{pFQ}, v13, v{pFQ}, vcc\ns_and_b32 s15, s{sI}, 1\ns_lshl_b32 s15, s15, 8\ns_add_u32 s14, s14, s15")
        a(f"s_lshl_b32 s15, s{sQB}, 1\ns_lshr_b32 s86, s{sI}, 1\ns_add_u32 s15, s15, s86\ns_lshl_b32 s15, s15, 2\ns_add_u32 s14, s14, s15\ns_add_u32 s14, s14, {FQ}")
        a(f"v_and_b32 v12, 1, v0\nv_lshl_add_u32 v13, v12, 7, s14\nv_cmp_gt_u32 vcc, 32, v0\nv_lshrrev_b32 v12, 2, v0\ns_nop 0\nv_cndmask_b32 v{pFQ}, v13, v{pFQ}, vcc\nv_and_b32 v13, 3, v0")
    def ag1():
        a(f"v_lshlrev_b32 v{pW0}, 10, v12\nv_lshl_add_u32 v{pW0}, v13, 4, v{pW0}\ns_lshl_b32 s14, s{sCB}, 7\ns_and_b32 s15, s{sI}, 1\ns_lshl_b32 s15, s15, 6\ns_add_u32 s14, s14, s15\nv_add_u32 v{pW0}, s14, v{pW0}\nv_xor_b32 v{pW1}, 64, v{pW0}")
        a(f"s_lshl_b32 s85, s{sI}, 11\ns_lshl_b32 s84, s{sHEAD}, 17\ns_add_u32 s84, s84, {WKV}\ns_add_u32 s84, s84, s85")
        a(f"s_lshl_b32 s14, s{sHEAD}, 6\ns_lshl_b32 s15, s{sQB}, 3\ns_add_u32 s14, s14, s15\ns_lshl_b32 s15, s{sI}, 1\ns_add_u32 s14, s14, s15\ns_lshl_b32 s88, s14, 10")
        a(f"s_lshl_b32 s89, s{sI}, 13\ns_add_u32 s89, s89, {RING}")
        a(f"s_lshl_b32 s90, s{sI}, 14\ns_lshl_b32 s91, s{sI}, 17")
    def ag2():
        a(f"v_lshrrev_b32 v14, 5, v0\nv_bfe_u32 v12, v0, 2, 2\nv_lshl_add_u32 v12, v14, 2, v12\nv_lshlrev_b32 v12, 6, v12\nv_bfe_u32 v13, v0, 4, 1\nv_lshl_add_u32 v12, v13, 5, v12")
        a(f"v_and_b32 v13, 3, v0\nv_lshl_add_u32 v12, v13, 3, v12\nv_add_u32 v{pTR}, s89, v12")
        a(f"s_lshl_b32 s14, s{sQB}, 2\ns_add_u32 s92, s14, s{sSUB}")
        a(f"s_lshl_b32 s14, s92, 8\ns_add_u32 s14, s14, {FH}\nv_bfe_u32 v12, v0, 4, 1\nv_and_b32 v13, 15, v0\nv_lshlrev_b32 v12, 7, v12\nv_lshl_add_u32 v12, v13, 2, v12\nv_add_u32 v{pFH}, s14, v12")
    def ag3():
        a(f"v_and_b32 v13, 31, v0\ns_lshl_b32 s14, s92, 8\ns_add_u32 s14, s14, {WG}\ns_lshr_b32 s15, s{sI}, 1\ns_lshl_b32 s15, s15, 7\ns_add_u32 s14, s14, s15\nv_lshl_add_u32 v{pG0}, v13, 2, s14\nv_xor_b32 v{pG1}, 128, v{pG0}")
        a(f"s_lshl_b32 s14, s{sCB}, 7\nv_lshl_add_u32 v{pB2}, v13, 1, s14")
        a(f"s_lshl_b32 s14, s92, 2\ns_add_u32 s14, s14, s{sI}\ns_lshl_b32 s94, s14, 14\ns_add_u32 s94, s94, {WO_}\ns_lshl_b32 s14, s14, {FOS + 3 if FOS else 7}\ns_add_u32 s14, s14, {FO}\nv_and_b32 v12, 7, v0\nv_lshl_add_u32 v{pFO}, v12, {FOS or 2}, s14")
        a(f"s_mul_i32 s93, s92, {2*86*1024}\ns_lshl_b32 s14, s{sI}, 10\ns_add_u32 s93, s93, s14\ns_add_u32 s93, s93, {WH}")
    def ag4():
        a(f"s_lshr_b32 s14, s{sI}, 1\ns_lshl_b32 s14, s14, 5\ns_lshl_b32 s15, s92, 6\ns_add_u32 s14, s14, s15\nv_add_u32 v12, s14, v13\nv_lshlrev_b32 v12, 10, v12\nv_lshl_add_u32 v12, v14, 4, v12")
        a(f"s_lshl_b32 s14, s{sCB}, 7\ns_and_b32 s15, s{sI}, 1\ns_lshl_b32 s15, s15, 6\ns_add_u32 s14, s14, s15\nv_add_u32 v{pOUT}, s14, v12")
        for k in range(12): a(f"v_mov_b32 v{BS+k}, 0")
        a(f"v_mov_b32 v12, 0x3f80\nv_cmp_gt_u32 vcc, 32, v0\ns_lshr_b32 s14, s{sI}, 1\ns_mul_i32 s15, s14, {86*1024}\nv_cndmask_b32 v{BS+8}, 0, v12, vcc")
        a(f"v_add_u32 v{pH0}, s15, v11\ns_sub_u32 s15, {86*1024}, s15\nv_add_u32 v{pH1}, s15, v11")
    def ag5():
        a(f"s_lshr_b32 s14, s{sI}, 1\ns_lshl_b32 s14, s14, 10\nv_add_u32 v{pO0}, s14, v11\nv_xor_b32 v{pO1}, 1024, v{pO0}")
        for j in range(1, 4): a(f"s_xor_b32 s14, s{sI}, {j}\ns_mul_i32 s14, s14, 12288\ns_add_u32 s14, s14, {(j-1)*4096}\nv_add_u32 v{pR+j}, s14, v11")
        a(f"s_mul_i32 s14, s{sI}, 12288\nv_add_u32 v{pR}, s14, v11")
        a(f"v_lshrrev_b32 v14, 4, v0\ns_lshl_b32 s14, s{sI}, 11\ns_add_u32 s14, s14, {FQ}\nv_lshl_add_u32 v14, v14, 9, s14\nv_and_b32 v13, 15, v0\nv_lshl_add_u32 v{pALL}, v13, 2, v14")
        if WARM & 2: a(f"v_bfe_u32 v12, v0, 1, 4\nv_and_b32 v13, 1, v0\nv_lshlrev_b32 v13, 6, v13\nv_lshl_add_u32 v12, v12, 10, v13\ns_lshl_b32 s14, s{sCB}, 7\nv_add_u32 v{pWB}, s14, v12\nv_lshrrev_b32 v13, 5, v0\nv_lshl_add_u32 v{pWA}, v13, 19, v{pWB}")
    agroups = [ag0, ag1, ag2, ag3, ag4, ag5]
    stamp(0)
    nxt = {0: [("A", 3)], 1: [("A", 4)], 2: [("A", 5)], 3: [("A", 6)], 4: [("A", 7), ("B", 0)], 5: [("B", 1), ("B", 2)], 6: [("B", 3), ("B", 4)], 7: [("B", 5), ("B", 6)]}
    if LOOK == 4: nxt[0] = [("A", 4)]; nxt[1] = [("B", 0)]; nxt[4] = [("A", 7)]
    if LOOK == 2: nxt[0] = [("A", 2), ("A", 3)]
    for s in range(8):
        vm.wait(f"A{s}")
        if s == 0: nonce(15)
        a("s_barrier")
        if s == 1:
            a(f"s_mov_b32 m0, {GLDS}\ns_mov_b32 s14, 0")
            dma(None, 0, 11, SG, 14, "G")
        for k, n in nxt[s]: (stA if k == "A" else stB)(n)
        if AG <= s < AG + 6: agroups[s - AG]()
    stamp(1)
    vm.wait("B1")
    a("s_barrier")
    stB(7)
    vm.wait("B3")
    a("s_barrier")
    vm.all()
    a("s_barrier")
    stamp(2)
    def kvdma(g0, g1, tag):
        for g in range(g0, g1 - 1, -1):
            a(f"s_add_u32 m0, s85, {g*8192}\ns_add_u32 s86, s84, {g*8192}")
            dma(None, 0, 11, SWS, 86, tag, sc=SCK); dma(None, 0, 11, SWS, 86, tag, off=1024, sc=SCK)
    PL = f"buffer_load_dword v12, v{pFQ}, {srd(SWS)}, 0 offen sc1"
    def chk(lo, hi, tgt):
        a(f"v_cmp_ne_u32 vcc, s{sN}, v12\ns_mov_b32 s82, {lo:#x}\ns_mov_b32 s83, {hi:#x}\ns_nop 2\ns_and_b64 vcc, vcc, s[82:83]\ns_cbranch_scc0 {tgt}")
    def pollm(lo, hi, name):
        a(f"s_mov_b32 s15, {SPIN}\n{name}:")
        chk(lo, hi, name + "_x")
        a(f"{PL}\ns_sub_u32 s15, s15, 1\ns_cmp_lg_u32 s15, 0\ns_waitcnt vmcnt(0)\ns_cbranch_scc1 {name}\n{name}_x:")
    M1, M2, M3 = ((0xc000c000, 0xffffffff), (0x30003000, 0), (0xffffffff, 0)) if STG else ((0xffffffff, 0xffffffff), (0, 0), (0, 0))
    a(f"{PL}\ns_waitcnt vmcnt(0)")
    pollm(*M1, "Lpq1")
    stamp(3)
    dma(89, 6144, 11, SWS, 88, "Q", sc="sc1")
    dma(None, 0, 11, SWS, 88, "Q", off=1024, sc="sc1")
    kvdma(15, 14, "KV1")
    chk(*M2, "LsA")
    a(f"{PL}\ns_waitcnt vmcnt(0)\ns_barrier")
    stamp(4)
    pollm(*M2, "Lpq2")
    q0 = list(vm.q)
    kvdma(13, 12, "KV2")
    a("s_branch LsC\nLsA:")
    vm.q = q0
    kvdma(13, 12, "KV2")
    vm.wait("KV1")
    a("s_barrier")
    stamp(4)
    a("LsC:")
    chk(*M3, "LsD")
    a(f"{PL}\ns_waitcnt vmcnt(0)\ns_barrier")
    pollm(*M3, "Lpq3")
    q0 = list(vm.q)
    kvdma(11, 7, "KV2b")
    a("s_branch LsF\nLsD:")
    vm.q = q0
    kvdma(11, 7, "KV2b")
    vm.wait("KV2")
    a("s_barrier\nLsF:")
    kvdma(6, 0, "KV3")
    def w2dma(n):
        sl = (n & 3) * 2048
        if n < 22:
            a(f"s_add_u32 s14, s90, {n*65536}")
            dma(89, sl, pW0, SW2, 14, f"W{n}"); dma(89, sl + 1024, pW1, SW2, 14, f"W{n}")
        else:
            a(f"s_add_u32 s14, s91, {(n-22)*16384}")
            dma(89, sl, pW0, SWO, 14, f"W{n}"); dma(89, sl + 1024, pW1, SWO, 14, f"W{n}")
    for n in range(3): w2dma(n)
    if WARM & 2:
        a(f"s_lshl_b32 s14, s{sQB}, 16\ns_add_u32 s14, s14, s90\nbuffer_load_dword v1, v{pWA}, {srd(SW2)}, s14 offen\ns_add_u32 s14, s14, {16*65536}\nbuffer_load_dword v2, v{pWB}, {srd(SW2)}, s14 offen")
        a(f"s_lshl_b32 s14, s{sQB}, 14\ns_add_u32 s14, s14, s91\nbuffer_load_dword v3, v{pWB}, {srd(SWO)}, s14 offen")
        vm.add("WM", 3)
    vm.wait("KV3")
    a("s_barrier")
    stamp(5)
    if FPRIO: a(f"s_setprio {FPRIO}")
    poll(pFH, 12, "Lph"); vm.q = []
    stamp(6)
    a(f"s_cmp_lg_u32 s2, 0\ns_cbranch_scc1 Lnall")
    poll(pALL, 12, "Lpa")
    a("Lnall:")
    a(f"buffer_load_dword v14, v{pG0}, {srd(SWS)}, 0 offen sc1\nbuffer_load_dword v15, v{pG1}, {srd(SWS)}, 0 offen sc1")
    a(f"buffer_load_ushort v{BS}, v{pB2}, {srd(SB2)}, 0 offen\nbuffer_load_ushort v{BS+4}, v{pB2}, {srd(SB2)}, 0 offen offset:64")
    vm.add("G", 4)
    NH = 8
    assert 0 < HD < NH
    def hload(n):
        b = HB + 8 * (n % NH)
        a(f"s_add_u32 s14, s93, {n*4096}\nbuffer_load_dwordx4 {vr(b,4)}, v{pH0}, {srd(SWS)}, s14 offen {SCH}\nbuffer_load_dwordx4 {vr(b+4,4)}, v{pH1}, {srd(SWS)}, s14 offen {SCH}")
        vm.add(f"H{n}", 2)
    for n in range(HD or NH): hload(n)
    hb = {HB1: range(NH, NH + HB1), HB2: range(NH + HB1, 22)}
    if HD: hb = {n: [n + HD] for n in range(22 - HD)}
    if EXP & 2: a("s_branch Lskip")
    def trreads(n, dst):
        sl = (n & 3) * 2048
        for ct in range(2):
            for u in range(2):
                a(f"ds_read_b64_tr_b16 {vr(dst+4*ct+2*u,2)}, v{pTR} offset:{sl+ct*1024+u*512}")
    def mf4(wb, h0, h1, first):
        for ct in range(2):
            for rt in range(2):
                d = vr(FA + 16 * (2 * rt + ct), 16)
                a(f"{MF} {d}, {vr(wb+4*ct,4)}, {vr(h1 if rt else h0,4)}, {'0' if first else d}")
    for n in range(30):
        if n + 3 < 30: w2dma(n + 3)
        for m in hb.get(n, []): hload(m)
        vm.wait(f"H{n}"); vm.wait(f"W{n}")
        if n < 22:
            wb = W2F + 8 * (n & 1)
            if n == 21: a(f"s_cmp_ge_u32 s{sI}, 2\ns_cbranch_scc1 Lb2")
            trreads(n, wb)
            a("s_waitcnt lgkmcnt(0)")
            if not (EXP & 1): mf4(wb, HB + 8 * (n % NH), HB + 8 * (n % NH) + 4, n == 0)
            if n == 21:
                a(f"s_branch Lb2x\nLb2:\ns_cmp_eq_u32 s{sI}, 3\ns_cbranch_scc1 Lb2x")
                mf4(BS, BS + 8, BS + 8, False)
                a("Lb2x:")
        else:
            trreads(n, WOF + 8 * (n - 22))
            a("s_waitcnt lgkmcnt(0)")
        if EXP & 8 and n in (10, 21, 29): stamp({10: 3, 21: 4, 29: 6}[n])
    if VPRIO: a(f"s_setprio {VPRIO}")
    if not BAR1: a(f"buffer_load_dword v12, v{pFO}, {srd(SWS)}, 0 offen sc1")
    a("Lskip:")
    stamp(7)
    sNL, sNM, sE, sT = 80, 81, 82, 83
    if FPRIO or VPRIO: a("s_setprio 0")
    if BAR1:
        a("s_barrier")
        stamp(8)
        a(f"buffer_load_dword v12, v{pFO}, {srd(SWS)}, 0 offen sc1")
    a("v_sub_f32 v14, 1.0, v14\nv_sub_f32 v15, 1.0, v15")
    for k in range(32): a(f"v_pk_mul_f32 {vr(FA+2*k,2)}, {vr(FA+2*k,2)}, v[14:15] op_sel:[0,{k >> 4}] op_sel_hi:[1,{k >> 4}]")
    a(f"s_mov_b32 s{sNL}, 0\ns_mov_b32 s{sNM}, 0\ns_mov_b32 s15, {SPIN}")
    a(f"Lw:\ns_waitcnt vmcnt(0)\nv_cmp_ne_u32 vcc, s{sN}, v12\ns_sub_u32 s15, s15, 1\ns_cmp_eq_u32 s15, 0\ns_cbranch_scc1 Lwx\ns_mov_b32 s{sT}, s{sNL}\ns_nop 1")
    a(f"s_and_b32 s14, vcc_lo, 0xff\ns_bitset1_b32 s14, 8\ns_ff1_i32_b32 s{sE}, s14\ns_max_u32 s{sE}, s{sE}, s{sNL}\ns_cmp_eq_u32 s{sE}, s{sNM}\ns_cbranch_scc0 Lw2")
    a(f"buffer_load_dword v12, v{pFO}, {srd(SWS)}, 0 offen sc1\ns_branch Lw\nLw2:")
    if PROF == 1: a(f"s_cmp_lg_u32 s{sNL}, 0\ns_cbranch_scc1 Lpf1\ns_memrealtime s[34:35]\ns_sub_u32 s16, {SPIN}, s15\nLpf1:")
    a(f"s_sub_u32 s14, s{sE}, s{sNL}\ns_bfm_b32 s84, s14, s{sNL}")
    for hh in range(8):
        b = OF + 8 * hh
        a(f"s_bitcmp1_b32 s84, {hh}\ns_cbranch_scc0 Lwi{hh}\ns_add_u32 s14, s94, {hh*2048}")
        a(f"buffer_load_dwordx4 {vr(b,4)}, v{pO0}, {srd(SWS)}, s14 offen sc1\nbuffer_load_dwordx4 {vr(b+4,4)}, v{pO1}, {srd(SWS)}, s14 offen sc1\nLwi{hh}:")
    if PROF == 1: a(f"s_memrealtime s[20:21]")
    a(f"s_mov_b32 s{sNL}, s{sE}\ns_cmp_eq_u32 s{sE}, 8\ns_cselect_b32 s{sT}, 8, s{sT}\ns_cbranch_scc1 Lw4\nbuffer_load_dword v12, v{pFO}, {srd(SWS)}, 0 offen sc1\nLw4:")
    a(f"s_sub_u32 s14, s{sT}, s{sNM}\ns_bfm_b32 s84, s14, s{sNM}\ns_mov_b32 s{sNM}, s{sT}")
    for hh in range(8):
        b = OF + 8 * hh
        a(f"s_bitcmp1_b32 s84, {hh}\ns_cbranch_scc0 Lwv{hh}\ns_waitcnt vmcnt({2*(7-hh)})")
        mf4(WOF + 8 * hh, b, b + 4, False)
        a(f"Lwv{hh}:")
    a(f"s_cmp_lg_u32 s{sNM}, 8\ns_cbranch_scc1 Lw\nLwx:")
    if PROF == 1: a(f"s_sub_u32 s18, {SPIN}, s15\ns_memrealtime s[26:27]")
    if not BAR1:
        a("s_barrier")
        stamp(8)
    stamp(10)
    a("s_nop 7")
    for j in (2, 1, 3):
        for q in range(4):
            a(f"ds_write_b128 v{pR+j}, {vr(FA+16*j+4*q,4)} offset:{q*1024}")
    a("s_waitcnt lgkmcnt(0)\ns_barrier")
    for j in range(1, 4):
        for q in range(4):
            a(f"ds_read_b128 {vr(FA+16*j+4*q,4)}, v{pR} offset:{(j-1)*4096+q*1024}")
    a(f"s_cmp_lg_u32 s2, 0\ns_cbranch_scc1 Lnoep\ns_cmp_lg_u32 s{sI}, 0\ns_cbranch_scc1 Lnoep\ns_mov_b32 s14, {EPOCH}")
    flag_store(14, 12)
    a("Lnoep:")
    for j in range(1, 4):
        a(f"s_waitcnt lgkmcnt({12-4*j})")
        for k in range(8): a(f"v_pk_add_f32 {vr(FA+2*k,2)}, {vr(FA+2*k,2)}, {vr(FA+16*j+2*k,2)}")
    for k in range(8): a(f"v_cvt_pk_bf16_f32 v{FA+k}, v{FA+2*k}, v{FA+2*k+1}")
    a("s_nop 1")
    for k in (0, 1, 4, 5): a(f"v_permlane32_swap_b32 v{FA+k}, v{FA+k+2}")
    a("s_nop 0")
    a(f"buffer_store_dwordx4 {vr(FA,4)}, v{pOUT}, {srd(SOUT)}, 0 offen {['', 'sc1', 'nt', 'sc0 sc1'][OSC]}\nbuffer_store_dwordx4 {vr(FA+4,4)}, v{pOUT}, {srd(SOUT)}, 0 offen offset:32 {['', 'sc1', 'nt', 'sc0 sc1'][OSC]}")
    stamp(11)
    if EXP & 16: a("s_mov_b32 s16, s100\ns_mov_b32 s18, s96")
    prof_out(1)
    a("Lend:\ns_endpgm")
    a(";@@END")
    a(f""".section .rodata,"a"
.p2align 6
.amdhsa_kernel {KN}
.amdhsa_next_free_vgpr 256
.amdhsa_next_free_sgpr 102
.amdhsa_accum_offset 256
.amdhsa_group_segment_fixed_size 0
.amdhsa_kernarg_size 96
.amdhsa_user_sgpr_count 2
.amdhsa_user_sgpr_kernarg_segment_ptr 1
.amdhsa_system_sgpr_workgroup_id_x 1
.end_amdhsa_kernel""")
    L = a.L
    ic, il, ie = L.index(";@@COMP"), L.index(";@@LOAD"), L.index(";@@END")
    a.L = L[:ic] + L[il+1:ie] + L[ic+1:il] + L[ie+1:]
    open(path, "w").write(a.text())


if __name__ == "__main__":
    kw = {}
    for x in sys.argv[2:]:
        k, v = x.split("=")
        kw[k] = int(v)
    gen(sys.argv[1], **kw)
```

```python
import sys, os
sys.path.insert(0, os.path.dirname(os.path.abspath(__file__)))
from asmlib import Asm
KN = "gated_mix__softmax_full_mha__dense_activation_squared_relu__prompt_kernel"

WQ, WKV, WH, WO_, WG = 0, 0x200000, 0x600000, 0xC00000, 0xE00000
FQ, FH, FO, EPOCH, WPROF = 0xE10000, 0xE20000, 0xE30000, 0xE50000, 0xF00000
SLOT = 28672
RING = 131072
GLDS = 155648
SPIN = 400000
sW, sX, sJ, sR, sC, sROT, sHEAD, sQB, sSUB, sCB, sN = 3, 4, 5, 6, 7, 8, 9, 10, 11, 12, 13
SX, SWQ, SW1, SWS, SWO, SW2, SOUT, SB1, SB2, SG = 40, 44, 48, 52, 56, 60, 64, 68, 72, 76
sMASK, sCNT, sI = 96, 98, 99


def srd(b): return f"s[{b}:{b+3}]"
def vr(b, n): return f"v[{b}:{b+n-1}]" if n > 1 else f"v{b}"
MF = "v_mfma_f32_32x32x16_bf16"
SM = "v_smfmac_f32_32x32x32_bf16"


class VM:
    def __init__(s, a): s.a = a; s.q = []
    def add(s, tag, n=1): s.q += [tag] * n
    def wait(s, tag):
        idx = [i for i, t in enumerate(s.q) if t == tag]
        if not idx: return
        n = len(s.q) - 1 - idx[-1]
        assert n < 64
        s.a(f"s_waitcnt vmcnt({n})")
        s.q = s.q[idx[-1] + 1:]
    def all(s): s.a("s_waitcnt vmcnt(0)"); s.q = []


class LG:
    def __init__(s, a): s.a = a; s.q = []
    def add(s, tag): s.q.append(tag)
    def wait(s, *tags):
        idx = [i for i, t in enumerate(s.q) if t in tags]
        if not idx: return
        n = min(len(s.q) - 1 - idx[-1], 15)
        s.a(f"s_waitcnt lgkmcnt({n})")
        s.q = s.q[len(s.q) - n:] if n else []
    def all(s): s.a("s_waitcnt lgkmcnt(0)"); s.q = []


def gen(path, PROF=0, FQPOS=4, PRIO=0, FORCE_SLOW=0, SPIN=SPIN, LOOK=3, DBG=0, HDEF=1, NSC=0, BAR1=0, FPRIO=0, HB1=6, HB2=12, EXP=0, HD=5, UNR=1, STG=1, WARM=0, HT0=4, HTF=12, B1=3, B2=11, GL=1, FOS=0, VPRIO=0, AG=0, OSC=0, EARLY=1, SPR=0, CHN=0, GP=33333, VP=0, DEF=0):
    SCK = '' if NSC & 1 else 'sc1'
    SCH = '' if NSC & 2 else 'sc1'
    SCO = '' if NSC & 4 else 'sc1'
    a = Asm()
    lab = [0]
    def stamp(i):
        if PROF == 1: a(f"s_memrealtime s[{16+2*i}:{17+2*i}]")
    def cstamp(i):
        if PROF == 1: a(f"s_memtime s[{16+2*i}:{17+2*i}]")
    def st3(i):
        if PROF == 3: a(f"s_memtime s[{16+2*i}:{17+2*i}]")
    def dbg_srd(b):
        if DBG: a(f"s_mov_b32 s{b}, s36\ns_mov_b32 s{b+1}, s37\ns_mov_b32 s{b+2}, 256\ns_mov_b32 s{b+3}, 0x20000")
    def dbg_out(b, idxs, o, last):
        lab[0] += 1
        a(f"s_waitcnt lgkmcnt(0)\ns_mov_b64 exec, 1\nv_mov_b32 v1, s{16+2*last}\nbuffer_atomic_umax v1, off, {srd(b)}, 0 offset:56\ns_not_b32 s14, s16\nv_mov_b32 v2, s14\nbuffer_atomic_umax v2, off, {srd(b)}, 0 offset:60")
        a(f"s_cmp_lg_u32 s2, {DBG}\ns_cbranch_scc1 Ldb{lab[0]}\ns_cmp_lg_u32 s{sI}, 0\ns_cbranch_scc1 Ldb{lab[0]}")
        for n, k in enumerate(idxs): a(f"v_mov_b32 v{3+n}, s{16+2*k}\nbuffer_store_dword v{3+n}, off, {srd(b)}, 0 offset:{4*(o+n)}")
        a(f"Ldb{lab[0]}:\ns_mov_b64 exec, -1")
    def prof_out(who=0):
        if DBG:
            if who == 0: dbg_out(76, [0, 1, 2, 3, 4, 5, 6], 0, 6)
            else: dbg_out(68, [2, 3, 6, 7, 9, 10, 11], 7, 11)
            return
        if not PROF: return
        a("s_waitcnt lgkmcnt(0)")
        a(f"s_lshl_b32 s14, s2, 3\ns_add_u32 s14, s14, s{sW}\ns_lshl_b32 s14, s14, 6\ns_add_u32 s14, s14, {WPROF}")
        a("s_mov_b64 exec, 1")
        for i in range(12):
            a(f"v_mov_b32 v1, s{16+2*i}\nbuffer_store_dword v1, off, {srd(SWS)}, s14 offset:{4*i}")
        a("s_mov_b64 exec, -1")
    def poll(vaddr, vtmp, name):
        va = vaddr if isinstance(vaddr, list) else [vaddr]
        a(f"s_mov_b32 s15, {SPIN}")
        a(f"{name}:")
        for k, v in enumerate(va): a(f"buffer_load_dword v{vtmp+k}, v{v}, {srd(SWS)}, 0 offen sc1")
        a("s_sub_u32 s15, s15, 1\ns_cmp_eq_u32 s15, 0")
        a(f"s_cbranch_scc1 {name}_x")
        a("s_waitcnt vmcnt(0)")
        for k in range(1, len(va)): a(f"v_xor_b32 v{vtmp+k}, s{sN}, v{vtmp+k}")
        if len(va) > 1:
            a(f"v_xor_b32 v{vtmp}, s{sN}, v{vtmp}\nv_or3_b32 v{vtmp}, v{vtmp}, v{vtmp+1}, v{vtmp+len(va)-1}\nv_cmp_ne_u32 vcc, 0, v{vtmp}")
        else: a(f"v_cmp_ne_u32 vcc, s{sN}, v{vtmp}")
        a(f"s_nop 4\ns_cmp_lg_u64 vcc, 0\ns_cbranch_scc1 {name}")
        a(f"{name}_x:\ns_waitcnt vmcnt(0)")
    def flag_store(soff, vtmp):
        a(f"v_mov_b32 v{vtmp}, s{sN}\ns_mov_b64 exec, 1\nbuffer_store_dword v{vtmp}, off, {srd(SWS)}, s{soff} sc1\ns_mov_b64 exec, -1")

    a("; @launch grid=(256,1,1) block=(512,1,1) lds=163840")
    a('.amdgcn_target "amdgcn-amd-amdhsa--gfx950"')
    a(f".text\n.globl {KN}\n.p2align 8\n.type {KN},@function\n{KN}:")
    a("s_cmp_ge_u32 s2, 256\ns_cbranch_scc1 Lend")
    if EXP & 16: a("s_memrealtime s[100:101]")
    a("s_load_dwordx16 s[16:31], s[0:1], 0\ns_load_dwordx8 s[32:39], s[0:1], 64")
    a(f"v_lshrrev_b32 v1, 6, v0\nv_and_b32 v0, 63, v0\ns_and_b32 s{sX}, s2, 7\nv_readfirstlane_b32 s{sW}, v1\ns_lshr_b32 s{sJ}, s2, 3")
    a(f"s_and_b32 s14, s{sX}, 1\ns_lshl_b32 s14, s14, 3\ns_and_b32 s15, s{sJ}, 7\ns_add_u32 s{sR}, s14, s15")
    a(f"s_lshr_b32 s14, s{sX}, 1\ns_lshl_b32 s14, s14, 2\ns_lshr_b32 s80, s{sJ}, 3\ns_add_u32 s{sC}, s14, s80")
    a(f"s_lshl_b32 s80, s80, 1\ns_add_u32 s{sROT}, s15, s80")
    a(f"s_and_b32 s{sI}, s{sW}, 3")
    sizes = {SX: (16, 2097152), SWQ: (18, 1572864), SWO: (20, 524288), SW1: (24, 1409024), SB1: (26, 2752),
             SW2: (28, 1409024), SB2: (30, 1024), SG: (32, 1024), SOUT: (34, 2097152), SWS: (38, 268435456)}
    def srd_size(lst):
        for b in lst: a(f"s_mov_b32 s{b+2}, {sizes[b][1]}\ns_mov_b32 s{b+3}, 0x20000")
    def common2():
        a(f"s_and_b32 s14, s{sJ}, 3\ns_lshl_b32 s15, s{sX}, 2\ns_add_u32 s{sHEAD}, s15, s14\ns_lshr_b32 s{sQB}, s{sJ}, 2")
        a(f"s_and_b32 s{sSUB}, s{sX}, 3\ns_and_b32 s15, s{sX}, 4\ns_add_u32 s{sCB}, s15, s14")
    a(f"s_cmp_lt_u32 s{sW}, 4\ns_cbranch_scc1 Lcomp")
    a(";@@COMP")
    a("Lcomp:")

    def mk_srd(lst):
        for b in lst:
            p = sizes[b][0]
            a(f"s_mov_b32 s{b}, s{p}\ns_mov_b32 s{b+1}, s{p+1}")
    def nonce(v):
        a(f"v_readfirstlane_b32 s14, v{v}\ns_mul_i32 s{sN}, s14, 0x9E3779B1\ns_add_u32 s{sN}, s{sN}, 0x7F4A7C15\ns_or_b32 s{sN}, s{sN}, 0x80000000")
        a(f"s_xor_b32 s15, s{sN}, 1\ns_cmp_eq_u32 s{sN}, s14\ns_cselect_b32 s{sN}, s15, s{sN}")

    XF, ACC, WF, BI = 16, 144, 192, 240
    vL31, vH, vXA, vWL, vWA, vT, vQS, vST = 1, 2, 3, 7, 8, 9, 12, 13
    if WARM & 1:
        a(f"s_getpc_b64 s[92:93]\nLpc:\ns_sub_u32 s92, s92, Lpc-{KN}\ns_subb_u32 s93, s93, 0\ns_and_b32 s14, s{sJ}, 3\ns_lshl_b32 s14, s14, 2\ns_add_u32 s14, s14, s{sI}\ns_lshl_b32 s14, s14, 12\nv_lshl_add_u32 v9, v0, 6, s14\nv_min_u32 v9, Llast_-{KN}, v9")
        a("global_load_dword v16, v9, s[92:93]")
    common2(); srd_size([SWS, SB1, SX, SWQ])
    a(f"s_mov_b32 s{sMASK}, 0xffff\ns_mov_b32 s{sMASK+1}, 0xffff")
    a(f"v_and_b32 v{vL31}, 31, v0\nv_lshrrev_b32 v{vH}, 5, v0")
    a(f"v_bfe_u32 v9, v0, 1, 3\nv_xor_b32 v9, v9, v{vH}\nv_lshlrev_b32 v9, 4, v9\nv_lshl_add_u32 v9, v{vL31}, 7, v9")
    a(f"s_lshl_b32 s14, s{sI}, 12\nv_add_u32 v{vXA}, s14, v9")
    for k in range(1, 4): a(f"v_xor_b32 v{vXA+k}, {32*k}, v{vXA}")
    a(f"v_bfe_u32 v9, v0, 2, 2\nv_lshl_add_u32 v9, v{vH}, 3, v9\nv_mul_u32_u24 v9, 192, v9\nv_bfe_u32 v10, v0, 4, 1\nv_lshl_add_u32 v9, v10, 5, v9")
    a(f"v_and_b32 v10, 3, v0\nv_lshl_add_u32 v{vWL}, v10, 3, v9")
    a(f"v_lshlrev_b32 v{vQS}, 4, v0")
    a(f"v_and_b32 v9, 0x33, v0\nv_and_b32 v10, 4, v0\nv_lshl_add_u32 v9, v10, 1, v9\nv_bfe_u32 v10, v0, 3, 1\nv_lshl_add_u32 v9, v10, 2, v9\nv_lshlrev_b32 v9, 4, v9")
    a(f"v_and_b32 v11, 15, v0\nv_lshl_add_u32 v11, v{vH}, 4, v11\nv_lshlrev_b32 v11, 4, v11\nv_bfe_u32 v10, v0, 4, 1\nv_lshl_add_u32 v11, v10, 17, v11\nv_add_u32 v10, 1024, v11")
    a(f"s_lshl_b32 s14, s{sR}, 2\ns_add_u32 s80, s14, s{sI}")
    for i in range(3):
        o1, o2, sc = [81, 83, 92][i], [82, 84, 93][i], [90, 94, 100][i]
        a(f"s_mul_i32 s14, s{sC}, 3\ns_add_u32 s14, s14, {i}\ns_lshr_b32 s15, s14, 4\ns_and_b32 s14, s14, 15\ns_lshl_b32 s14, s14, 7\ns_add_u32 s14, s14, s80")
        a(f"s_lshl_b32 s{o1}, s14, 11\ns_add_u32 s{o1}, s{o1}, {WKV}\ns_lshl_b32 s14, s14, 10")
        a(f"s_movk_i32 s{o2}, 512\ns_cmp_eq_u32 s15, 1\ns_cselect_b32 s{o2}, 131072, s{o2}\ns_cselect_b64 vcc, -1, 0\nv_cndmask_b32 v{vST+i}, v10, v9, vcc")
        a(f"s_cmp_eq_u32 s15, 0\ns_cselect_b32 s{o2}, 65536, s{o2}\ns_cselect_b32 s{o1}, s14, s{o1}\ns_cselect_b32 s{sc}, 0x3eb8aa3b, 1.0\ns_cselect_b64 vcc, -1, 0\nv_cndmask_b32 v{vST+i}, v{vST+i}, v{vQS}, vcc")
        a(f"s_add_u32 s{o2}, s{o2}, s{o1}\ns_mov_b32 s{sc+1}, s{sc}")
    for k in range(16): a(f"v_mov_b32 v{BI+k}, 0")
    a(f"v_mov_b32 v9, 0x3f80\nv_cmp_gt_u32 vcc, 32, v0\ns_mul_i32 s14, s{sC}, 192\nv_lshl_add_u32 v10, v{vL31}, 1, s14\nv_cndmask_b32 v{BI+12}, 0, v9, vcc")
    a("s_waitcnt lgkmcnt(0)")
    mk_srd([SWS, SB1]); dbg_srd(76)
    if UNR:
        for b, lim in ((SX, 15), (SWQ, 14)):
            a(f"s_mov_b32 s{b}, s38\ns_mov_b32 s{b+1}, s39\ns_cmp_lt_u32 s{sC}, {lim}\ns_cselect_b32 s{b+2}, s{SWS+2}, 0")
    a(f"s_mov_b32 s15, {EPOCH}\nbuffer_load_dword v11, off, {srd(SWS)}, s15 sc1")
    for i in range(3): a(f"buffer_load_ushort v{BI+4*i}, v10, {srd(SB1)}, 0 offen offset:{64*i}")
    a(f"s_mul_i32 s85, s80, 86\ns_mul_i32 s14, s{sC}, 6\ns_add_u32 s85, s85, s14\ns_lshl_b32 s85, s85, 10\ns_add_u32 s85, s85, {WH}\ns_add_u32 s86, s85, 4096")
    a(f"s_lshl_b32 s14, s{sC}, 2\ns_add_u32 s14, s14, s{sI}\ns_lshl_b32 s14, s14, 5\ns_add_u32 s14, s14, s{sR}\ns_lshl_b32 s14, s14, 2\ns_add_u32 s87, s14, {FQ}")
    a(f"s_lshl_b32 s14, s80, 5\ns_add_u32 s14, s14, s{sC}\ns_lshl_b32 s14, s14, 2\ns_add_u32 s88, s14, {FH}")
    a("s_waitcnt vmcnt(0)")
    nonce(11)
    stamp(0)

    lg = LG(a)
    slots = [1, 2, 3, 4, 0, 1, 2, 3]
    segs = [0, 57344, 57344, 114688, 0, 0, 57344, 57344]
    bbase = [143360, 114688, 126976, 0, 12288, 28672, 40960, 57344]
    halves = [("A", s, hf) for s in range(8) for hf in range(2)] + [("B", t, hf) for t in range(8) for hf in range(2)]
    seg = [0]
    PB = {("A", 1): 0, ("A", 3): 2, ("A", 4): 4, ("A", 7): 6, ("B", 2): 8, ("B", 6): 10}
    def prep(h):
        k, s, hf = halves[h]
        if hf: return
        if k == "A":
            if segs[s] != seg[0]:
                for q in range(4): a(f"v_add_u32 v{vXA+q}, {(segs[s]-seg[0]) & 0xffffffff:#x}, v{vXA+q}")
                seg[0] = segs[s]
            a(f"v_add_u32 v{vWA}, {slots[s]*SLOT+16384}, v{vWL}")
        else:
            a(f"v_add_u32 v{vWA}, {bbase[s]}, v{vWL}")
        if k == "A" or s in (0, 2, 4):
            if PROF == 2 and (k, s) in PB: a(f"s_memtime s[{16+2*PB[(k,s)]}:{17+2*PB[(k,s)]}]")
            a("s_barrier")
            if PROF == 2 and (k, s) in PB: a(f"s_memtime s[{18+2*PB[(k,s)]}:{19+2*PB[(k,s)]}]")
    def reads(h):
        k, s, hf = halves[h]
        L = []
        for ksl in range(2):
            ks = 2 * hf + ksl
            if k == "A": L.append((f"ds_read_b128 {vr(XF+16*s+4*ks,4)}, v{vXA+ks} offset:{slots[s]*SLOT-segs[s]}", (h, ksl, "x")))
            for t in range(3):
                d = WF + 24 * hf + 12 * ksl + 4 * t
                for u in range(2):
                    L.append((f"ds_read_b64_tr_b16 {vr(d+2*u,2)}, v{vWA} offset:{t*64+ks*3072+u*768}", (h, ksl, t)))
        return L
    def emit_reads(L, n):
        for _ in range(min(n, len(L))):
            ins, tag = L.pop(0); a(ins); lg.add(tag)
    def half(h, pat='TTT'):
        k, s, hf = halves[h]
        L = []
        if h + 1 < len(halves) and not (DEF and h == 15):
            prep(h + 1); L = reads(h + 1)
        for j in range(6):
            ksl, t = j // 3, j % 3
            ks = 2 * hf + ksl
            lg.wait((h, ksl, "x"), (h, ksl, t))
            x = vr(XF + 16 * s + 4 * ks, 4); w = vr(WF + 24 * hf + 12 * ksl + 4 * t, 4); d = vr(ACC + 16 * t, 16)
            c = "0" if (h == 0 and ksl == 0) else d
            a(f"{MF} {d}, {x}, {w}, {c}" if (k == "A" and pat[t] == "N") else f"{MF} {d}, {w}, {x}, {c}")
            emit_reads(L, 3)
        assert not L
    prep(0)
    stamp(1)
    emit_reads(reads(0), 99)
    a(f"s_cmp_eq_u32 s{sC}, 10\ns_cbranch_scc1 LA_TTN\ns_cmp_gt_u32 s{sC}, 10\ns_cbranch_scc1 LA_NNN")
    q0, seg0 = list(lg.q), seg[0]
    for pat in ("TTT", "TTN", "NNN"):
        lg.q = list(q0); seg[0] = seg0
        a(f"LA_{pat}:")
        for h in range(16): half(h, pat)
        stamp(2); st3(0)
        a("s_nop 7")
        if pat[0] == "N": a("s_nop 1")
        for i in range(3):
            b = ACC + 16 * i
            o1, o2, sc = [81, 83, 92][i], [82, 84, 93][i], [90, 94, 100][i]
            if pat[i] == "T":
                for k in range(8): a(f"v_pk_mul_f32 {vr(b+2*k,2)}, {vr(b+2*k,2)}, s[{sc}:{sc+1}]")
            for k in range(8): a(f"v_cvt_pk_bf16_f32 v{b+k}, v{b+2*k}, v{b+2*k+1}")
            a(f"buffer_store_dwordx4 {vr(b,4)}, v{vST+i}, {srd(SWS)}, s{o1} offen sc1\nbuffer_store_dwordx4 {vr(b+4,4)}, v{vST+i}, {srd(SWS)}, s{o2} offen sc1")
            st3(1 + i)
        if pat != "NNN": a("s_branch LB")
    a(f"s_cmp_eq_u32 s{sC}, 15\ns_cbranch_scc1 Lgate")
    a("LB:")
    if DEF: prep(16); emit_reads(reads(16), 99)
    for i in range(3): a(f"{MF} {vr(ACC+16*i,16)}, {vr(BI+4*i,4)}, {vr(BI+12,4)}, 0")
    for h in range(16, 32):
        if FQPOS == h - 16:
            st3(7); a("s_waitcnt vmcnt(0)"); st3(8); flag_store(87, 9); stamp(11)
        half(h)
        if h - 16 < 3: st3(4 + h - 16)
    stamp(3); st3(9)
    def hstore1(i, m, sr=SWS):
        o = (2 * i + m) * 1024
        return f"buffer_store_dwordx4 {vr(ACC+16*i+4*m,4)}, v{vQS}, {srd(sr)}, s{85 if o < 4096 else 86} offen offset:{o % 4096} sc1"
    def hstore(i):
        for m in range(2): a(hstore1(i, m))
    a("s_nop 7")
    for i in range(3):
        b = ACC + 16 * i
        if i == 1: a(f"s_cmp_eq_u32 s{sC}, 14\ns_cbranch_scc1 Latt")
        for k in range(16): a(f"v_max_f32 v{b+k}, 0, v{b+k}")
        for k in range(8): a(f"v_pk_mul_f32 {vr(b+2*k,2)}, {vr(b+2*k,2)}, {vr(b+2*k,2)}")
        for k in range(8): a(f"v_cvt_pk_bf16_f32 v{b+k}, v{b+2*k}, v{b+2*k+1}")
        if not HDEF: hstore(i)
    a("s_branch Latt")
    a("Lgate:\ns_waitcnt lgkmcnt(0)")
    if DEF: a("s_barrier")
    a(f"v_lshlrev_b32 v11, 4, v{vH}\nv_add_u32 v11, {GLDS}, v11")
    def gread(s_):
        a(f"s_add_u32 s14, s{sROT}, {s_}\ns_and_b32 s14, s14, 7\ns_lshl_b32 s14, s14, 7\nv_add_u32 v9, s14, v11")
        for ks in range(4): a(f"ds_read_b128 {vr(WF+16*(s_&3)+4*ks,4)}, v9 offset:{ks*32}")
    for s_ in range(3): gread(s_)
    a("s_waitcnt vmcnt(0)")
    flag_store(87, 10); stamp(11)
    if not GL: a("s_barrier\ns_barrier")
    for s_ in range(8):
        if s_ + 3 < 8: gread(s_ + 3)
        a(f"s_waitcnt lgkmcnt({4*min(3, 7-s_)})")
        for ks in range(4):
            d = vr(ACC + 16 * (ks & 1), 16)
            a(f"{MF} {d}, {vr(WF+16*(s_&3)+4*ks,4)}, {vr(XF+16*s_+4*ks,4)}, {'0' if s_ == 0 and ks < 2 else d}")
    a(f"s_nop 7\ns_nop 7\nv_add_f32 v{ACC}, v{ACC}, v{ACC+16}")
    a(f"v_mul_f32 v9, 0xbfb8aa3b, v{ACC}\nv_exp_f32 v9, v9\ns_lshl_b32 s14, s80, 7\ns_add_u32 s14, s14, {WG}\nv_add_f32 v9, 1.0, v9\nv_rcp_f32 v9, v9\nv_lshlrev_b32 v10, 2, v{vL31}\ns_nop 0")
    a(f"buffer_store_dword v9, v10, {srd(SWS)}, s14 offen sc1")
    if GL: a("s_waitcnt vmcnt(0)\ns_barrier\ns_barrier")

    X, Y, OA, OB, QA, QB, KB, VB, IDX, vK, vV, vGF, vGA, vFL, GA, GBv = 16, 32, 48, 64, 80, 84, 88, 96, 112, 113, 114, 115, 116, 117, 118, 119
    a("Latt:")
    st3(10)
    for k in range(32): a(f"v_mov_b32 v{OA+k}, 0")
    a(f"v_and_b32 v9, 27, v0\nv_cmp_eq_u32 vcc, 16, v9\nv_mov_b32 v10, 0x3f803f80\nv_mov_b32 v{IDX}, 0xdddddddd\nv_add_u32 v{vK}, {(32 if UNR else 58)*2048}, v{vQS}")
    a(f"v_cndmask_b32 v{VB}, 0, v10, vcc")
    for k in range(1, 16): a(f"v_mov_b32 v{VB+k}, v{VB}")
    a(f"v_and_b32 v9, 15, v0\nv_lshl_add_u32 v9, v{vH}, 4, v9\nv_lshlrev_b32 v9, 4, v9\nv_add_u32 v{vV}, {(32 if UNR else 58)*2048+1024}, v9")
    T0 = 31 if UNR else 5
    a(f"s_lshl_b32 s14, s{sI}, 13\ns_add_u32 s14, s14, {RING+6144}\nv_add_u32 v9, s14, v{vQS}")
    a(f"s_lshl_b32 s14, s{sQB}, 2\ns_add_u32 s80, s14, s{sI}\ns_lshl_b32 s14, s80, 8\ns_add_u32 s15, s14, {FH+60}\ns_add_u32 s14, s14, {WG}\nv_lshl_add_u32 v{vGA}, v{vL31}, 2, s14")
    a(f"v_and_b32 v10, 1, v0\nv_lshl_add_u32 v{vGF}, v10, 7, s15")
    a(f"s_lshl_b32 s14, s80, 2\ns_lshr_b32 s15, s{sHEAD}, 3\ns_add_u32 s14, s14, s15\ns_lshl_b32 s14, s14, 5\ns_and_b32 s15, s{sHEAD}, 7\ns_add_u32 s14, s14, s15\ns_lshl_b32 s14, s14, 2\ns_add_u32 s89, s14, {FO}")
    a(f"s_lshl_b32 s14, s80, 5\ns_add_u32 s14, s14, s{sHEAD}\ns_lshl_b32 s81, s14, 11\ns_add_u32 s81, s81, {WO_}")
    if FOS: a(f"s_lshl_b32 s14, s14, {FOS}\ns_add_u32 s89, s14, {FO}")
    a(f"s_mov_b32 s{sCNT}, 0")
    a("s_barrier")
    stamp(4); cstamp(7); st3(11)
    if PRIO: a(f"s_setprio {PRIO}")
    if not CHN:
        a(f"ds_read_b128 {vr(QA,4)}, v9\nds_read_b128 {vr(KB,4)}, v{vK} offset:{T0*2048}\nds_read_b128 {vr(QB,4)}, v9 offset:1024\nds_read_b128 {vr(KB+4,4)}, v{vK} offset:{(T0-1)*2048}")
        a(f"s_mov_b64 exec, s[{sMASK}:{sMASK+1}]\nds_read_b128 {vr(VB,4)}, v{vV} offset:{T0*2048}\nds_read_b128 {vr(VB+4,4)}, v{vV} offset:{T0*2048+512}\ns_mov_b64 exec, -1")
        a(f"s_waitcnt lgkmcnt(4)\n{MF} {vr(X,16)}, {vr(KB,4)}, {vr(QA,4)}, 0\ns_waitcnt lgkmcnt(2)\ns_nop 7\ns_nop 3")
    def ex(b, lo, hi):
        for k in range(lo, hi + 1): a(f"v_exp_f32 v{b+k}, v{b+k}")
    if not CHN: ex(X, 0, 1)
    def tile(u, koff, voff, last, ev={}):
        kc, kn = KB + 4 * (u & 1), KB + 4 * ((u + 1) & 1)
        vc, vn = VB + 8 * (u & 1), VB + 8 * ((u + 1) & 1)
        ex(X, 2, 4)
        a(f"{MF} {vr(Y,16)}, {vr(kc,4)}, {vr(QB,4)}, 0")
        kread = lambda: koff is not None and a(f"ds_read_b128 {vr(kc,4)}, v{vK} offset:{koff}")
        def vread(hs):
            if voff is None: return
            a(f"s_mov_b64 exec, s[{sMASK}:{sMASK+1}]")
            for h_ in hs: a(f"ds_read_b128 {vr(vn+4*h_,4)}, v{vV} offset:{voff+512*h_}")
            a("s_mov_b64 exec, -1")
        a("s_waitcnt lgkmcnt(0)")
        if not SPR & 6: kread()
        ex(X, 5, 9)
        a(f"{SM} {vr(OA,16)}, {vr(vc,4)}, {vr(X,8)}, v{IDX}")
        vread([0] if SPR & 1 else [0, 1])
        ex(X, 10, 15); ex(Y, 0, 1)
        a(f"{SM} {vr(OA,16)}, {vr(vc+4,4)}, {vr(X+8,8)}, v{IDX}")
        if SPR & 1: vread([1])
        elif SPR & 4: kread()
        if "p2" in ev: ev["p2"]()
        ex(Y, 2, 4)
        if not last: a(f"{MF} {vr(X,16)}, {vr(kn,4)}, {vr(QA,4)}, 0")
        if SPR & 2: kread()
        if "q2" in ev: ev["q2"]()
        ex(Y, 5, 9)
        a(f"{SM} {vr(OB,16)}, {vr(vc,4)}, {vr(Y,8)}, v{IDX}")
        if "p3" in ev: ev["p3"]()
        ex(Y, 10, 15)
        if not last: ex(X, 0, 1)
        else: a("s_nop 1")
        a(f"{SM} {vr(OB,16)}, {vr(vc+4,4)}, {vr(Y+8,8)}, v{IDX}")
        if "p4" in ev: ev["p4"]()
    if CHN:
        XS, YS, K1 = (X, 192), (Y, 208), 120
        gp = [int(ch) for ch in str(GP)]
        M_ = f"s_mov_b64 exec, s[{sMASK}:{sMASK+1}]"
        a(f"ds_read_b128 {vr(QA,4)}, v9\nds_read_b128 {vr(KB+4,4)}, v{vK} offset:{31*2048}\nds_read_b128 {vr(QB,4)}, v9 offset:1024\nds_read_b128 {vr(K1,4)}, v{vK} offset:{30*2048}\nds_read_b128 {vr(KB,4)}, v{vK} offset:{29*2048}")
        a(f"{M_}\nds_read_b128 {vr(VB,4)}, v{vV} offset:{31*2048}\nds_read_b128 {vr(VB+4,4)}, v{vV} offset:{31*2048+512}\ns_mov_b64 exec, -1")
        a(f"s_waitcnt lgkmcnt(5)\n{MF} {vr(X,16)}, {vr(KB+4,4)}, {vr(QA,4)}, 0\ns_waitcnt lgkmcnt(4)\n{MF} {vr(Y,16)}, {vr(KB+4,4)}, {vr(QB,4)}, 0\ns_waitcnt lgkmcnt(3)\ns_nop 7\ns_nop 1")
        ex(X, 0, 2)
        a(f"{MF} {vr(XS[1],16)}, {vr(K1,4)}, {vr(QA,4)}, 0")
        ex(X, 3, 5)
        a(f"{MF} {vr(YS[1],16)}, {vr(K1,4)}, {vr(QB,4)}, 0\ns_waitcnt lgkmcnt(0)")
        ex(X, 6, 15); ex(Y, 0, 15)
        for n in range(63):
            xc, yc, xn, yn = XS[n & 1], YS[n & 1], XS[(n + 1) & 1], YS[(n + 1) & 1]
            vc, vn = VB + 8 * (n & 1), VB + 8 * ((n + 1) & 1)
            E_ = [xn + k for k in range(16)] + [yn + k for k in range(16)]
            def e(k):
                for _ in range(k): r = E_.pop(0); a(f"v_exp_f32 v{r}, v{r}")
            def upto(k): e(max(0, k - (32 - len(E_))))
            kt, vt = 60 - n, 62 - n
            a(f"{SM} {vr(OA,16)}, {vr(vc,4)}, {vr(xc,8)}, v{IDX}")
            vrd = f"{M_}\nds_read_b128 {vr(vn,4)}, v{vV} offset:{(vt&31)*2048}\nds_read_b128 {vr(vn+4,4)}, v{vV} offset:{(vt&31)*2048+512}\ns_mov_b64 exec, -1"
            if VP == 0 or n == 62: a(vrd)
            e(gp[0])
            a(f"{SM} {vr(OB,16)}, {vr(vc,4)}, {vr(yc,8)}, v{IDX}")
            if VP == 2 and n < 62: a(vrd)
            e(gp[1])
            a(f"{SM} {vr(OA,16)}, {vr(vc+4,4)}, {vr(xc+8,8)}, v{IDX}")
            if VP == 3 and n < 62: a(vrd)
            e(gp[2])
            a(f"{SM} {vr(OB,16)}, {vr(vc+4,4)}, {vr(yc+8,8)}, v{IDX}")
            if n == 62:
                upto(10)
                a(f"s_waitcnt lgkmcnt(0)\n{SM} {vr(OA,16)}, {vr(vn,4)}, {vr(xn,8)}, v{IDX}")
                upto(18)
                a(f"{SM} {vr(OA,16)}, {vr(vn+4,4)}, {vr(xn+8,8)}, v{IDX}")
                e(8)
                a(f"{SM} {vr(OB,16)}, {vr(vn,4)}, {vr(yn,8)}, v{IDX}")
                e(6)
                a(f"s_nop 1\n{SM} {vr(OB,16)}, {vr(vn+4,4)}, {vr(yn+8,8)}, v{IDX}")
                break
            a("s_waitcnt lgkmcnt(0)" if VP == 1 else "s_waitcnt lgkmcnt(2)")
            e(gp[3])
            a(f"{MF} {vr(xc,16)}, {vr(KB,4)}, {vr(QA,4)}, 0")
            e(gp[4])
            a(f"{MF} {vr(yc,16)}, {vr(KB,4)}, {vr(QB,4)}, 0")
            if n in (B1, B2): a("s_barrier")
            a(vrd if VP == 1 else "s_waitcnt lgkmcnt(0)")
            if kt >= 0: a(f"ds_read_b128 {vr(KB,4)}, v{vK} offset:{(kt&31)*2048}")
            upto(19)
            if n == 53: a(f"buffer_load_dword v{GA}, v{vGA}, {srd(SWS)}, 0 offen sc1")
            upto(22)
            if HT0 <= n < HT0 + 6: a(hstore1((n - HT0) >> 1, (n - HT0) & 1, SX if n - HT0 < 2 else SWQ))
            if n == HTF: a("s_waitcnt vmcnt(0)"); flag_store(88, 9)
            if n == 46: a(f"buffer_load_dword v{vFL}, v{vGF}, {srd(SWS)}, 0 offen sc1")
            if n == 52: a(f"s_waitcnt vmcnt(0)\nv_cmp_ne_u32 vcc, s{sN}, v{vFL}")
            if n == 53: a(f"buffer_load_dword v{GBv}, v{vGA}, {srd(SWS)}, 0 offen offset:128 sc1")
            upto(28)
            if n == 28: a(f"v_add_u32 v{vK}, 0xffff0000, v{vK}")
            if n == 30: a(f"v_add_u32 v{vV}, 0xffff0000, v{vV}")
            if n == 52: a(f"s_cmp_lg_u64 vcc, 0\ns_cbranch_scc1 Lgp\nLgpx:")
            upto(32)
            if VP == 1: a(f"s_waitcnt lgkmcnt({1 if kt >= 0 else 0})")
            assert not E_
        assert B1 <= 5 and B2 <= 13 and sum(gp) <= 22 and sum(gp[:3]) <= 15
    if UNR and not CHN:
        for n in range(64):
            ev = {}
            if n in (B1, B2): ev["p4"] = lambda: a("s_barrier")
            if HT0 <= n < HT0 + 6 and not (EXP & 4): ev["p3"] = lambda k=n-HT0: a(hstore1(k >> 1, k & 1, SX if k < 2 else SWQ))
            if n == HTF: ev["p3"] = lambda: (a("s_waitcnt vmcnt(0)"), flag_store(88, 9))
            if n == 29: ev["p4" if SPR else "q2"] = lambda: a(f"v_add_u32 v{vK}, 0xffff0000, v{vK}")
            if n == 30: ev["p4" if SPR else "q2"] = lambda: a(f"v_add_u32 v{vV}, 0xffff0000, v{vV}")
            if n == 46: ev["p3"] = lambda: a(f"buffer_load_dword v{vFL}, v{vGF}, {srd(SWS)}, 0 offen sc1")
            if n == 52: ev["p3"] = lambda: a(f"s_waitcnt vmcnt(0)\nv_cmp_ne_u32 vcc, s{sN}, v{vFL}")
            if n == 52: ev["p4"] = lambda: a(f"s_cmp_lg_u64 vcc, 0\ns_cbranch_scc1 Lgp\nLgpx:")
            if n == 53: ev["p2"] = lambda: a(f"buffer_load_dword v{GA}, v{vGA}, {srd(SWS)}, 0 offen sc1")
            if n == 53: ev["p3"] = lambda: a(f"buffer_load_dword v{GBv}, v{vGA}, {srd(SWS)}, 0 offen offset:128 sc1")
            kt, vt = 61 - n, 62 - n
            tile(n, (kt & 31) * 2048 if kt >= 0 else None, (vt & 31) * 2048 if vt >= 0 else None, n == 63, ev)
    UNR or a("Lloop:")
    if not UNR:
        for u in range(4): tile(u, (3 - u) * 2048, (4 - u) * 2048, False)
        a(f"s_add_u32 s{sCNT}, s{sCNT}, 1\nv_add_u32 v{vK}, 0xffffe000, v{vK}\nv_add_u32 v{vV}, 0xffffe000, v{vV}")
        a(f"s_bitcmp1_b32 {(1<<1)|(1<<3)|(1<<12)|(1<<13)|(1<<15)}, s{sCNT}\ns_cbranch_scc0 Lloop")
        a(f"s_cmp_eq_u32 s{sCNT}, 15\ns_cbranch_scc1 Llast\ns_cmp_eq_u32 s{sCNT}, 12\ns_cbranch_scc1 Lev2\ns_cmp_eq_u32 s{sCNT}, 13\ns_cbranch_scc1 Lev3\ns_cmp_eq_u32 s{sCNT}, 3\ns_cbranch_scc1 Lev1")
        if HDEF:
            a(f"s_barrier\ns_cmp_eq_u32 s{sC}, 15\ns_cbranch_scc1 Lloop")
            if EXP & 4: a("s_branch Lloop")
            hstore(0)
            a(f"s_cmp_eq_u32 s{sC}, 14\ns_cbranch_scc1 Lloop")
            hstore(1); hstore(2)
            a("s_branch Lloop\nLev1:\ns_waitcnt vmcnt(0)")
            flag_store(88, 9)
            a("s_barrier\ns_branch Lloop")
        else:
            a("s_waitcnt vmcnt(0)")
            flag_store(88, 9)
            a("Lev1:\ns_barrier\ns_branch Lloop")
        a(f"Lev2:\nbuffer_load_dword v{vFL}, v{vGF}, {srd(SWS)}, 0 offen sc1\ns_branch Lloop")
        a(f"Lev3:\ns_waitcnt vmcnt(0)\nv_cmp_ne_u32 vcc, s{sN}, v{vFL}\ns_nop 4\ns_cmp_eq_u64 vcc, 0\ns_cbranch_scc1 Lev3b")
        poll(vGF, vFL, "Lpg")
        a(f"Lev3b:\nbuffer_load_dword v{GA}, v{vGA}, {srd(SWS)}, 0 offen sc1\nbuffer_load_dword v{GBv}, v{vGA}, {srd(SWS)}, 0 offen offset:128 sc1\ns_branch Lloop")
        a(f"Llast:\nv_add_u32 v{vK}, 4096, v{vK}\nv_add_u32 v{vV}, 4096, v{vV}")
        for u in range(4): tile(u, (1 - u) * 2048 if u < 2 else None, (2 - u) * 2048 if u < 3 else None, u == 3)
    stamp(5); cstamp(8)
    def fin(chk):
        for n, O in enumerate((OA, OB)):
            if n == 1 and chk: a("s_nop 4")
            a(f"v_rcp_f32 v{9+n}, v{O+8}\ns_nop 0")
            a(f"v_mul_f32 v{9+n}, v{9+n}, v{GA+n}")
            for k in range(8): a(f"v_mul_f32 v{O+k}, v{9+n}, v{O+k}")
            for k in range(4): a(f"v_cvt_pk_bf16_f32 v{O+k}, v{O+2*k}, v{O+2*k+1}")
            a(f"buffer_store_dwordx4 {vr(O,4)}, v{vQS}, {srd(SWS)}, s81 offen offset:{1024*n} sc1")
    a("s_waitcnt vmcnt(0)")
    fin(True)
    a("s_mov_b32 s14, 0x7fff7fff\ns_mov_b32 s15, 0x30800000\ns_mov_b32 s92, 0x5f800000")
    for k in range(8): a(f"v_and_b32 v{X+k}, s14, v{(OA if k < 4 else OB)+(k&3)}")
    for st in (4, 2, 1):
        for k in range(st): a(f"v_pk_max_u16 v{X+k}, v{X+k}, v{X+k+st}")
    a(f"v_lshrrev_b32 v{X+1}, 16, v{X}\nv_and_b32 v{X}, 0xffff, v{X}\nv_max_u32 v{X}, v{X}, v{X+1}")
    a(f"v_min_f32 v9, v{OA+8}, v{OB+8}\nv_max_f32 v10, v{OA+8}, v{OB+8}\nv_cmp_u_f32 s[82:83], v{OA+8}, v{OB+8}")
    a(f"v_cmp_gt_u32 vcc, 0x7f80, v{X}\nv_cmp_lt_f32 s[84:85], s15, v9\nv_cmp_gt_f32 s[86:87], s92, v10\ns_nop 4")
    a("s_and_b64 vcc, vcc, s[84:85]\ns_and_b64 vcc, vcc, s[86:87]\ns_andn2_b64 vcc, vcc, s[82:83]\ns_cmp_lg_u64 vcc, -1\ns_cbranch_scc1 Lslow")
    if FORCE_SLOW: a("s_branch Lslow")
    a("Lfin:")
    if BAR1: a("s_barrier")
    a("s_waitcnt vmcnt(0)")
    flag_store(89, 9)
    stamp(6)
    prof_out()
    a("s_endpgm")
    if UNR:
        a("Lgp:")
        poll(vGF, vFL, "Lpg")
        a("s_branch Lgpx")
    NA, NB = 120, 136
    a("Lslow:")
    a(f"v_mov_b32 v{vK}, v{vQS}\nv_mov_b32 v9, 0xff800000\nv_mov_b32 v10, 0xff800000\ns_mov_b32 s{sCNT}, 0")
    a(f"Ls1:\nds_read_b128 {vr(KB,4)}, v{vK}\nv_add_u32 v{vK}, 2048, v{vK}\ns_add_u32 s{sCNT}, s{sCNT}, 1\ns_waitcnt lgkmcnt(0)")
    a(f"{MF} {vr(X,16)}, {vr(KB,4)}, {vr(QA,4)}, 0\n{MF} {vr(Y,16)}, {vr(KB,4)}, {vr(QB,4)}, 0\ns_nop 7\ns_nop 3")
    for n, S in enumerate((X, Y)):
        for k in range(8): a(f"v_max3_f32 v{9+n}, v{9+n}, v{S+2*k}, v{S+2*k+1}")
    a(f"s_cmp_lt_u32 s{sCNT}, 64\ns_cbranch_scc1 Ls1")
    for n, N in enumerate((NA, NB)):
        a(f"v_mov_b32 v11, v{9+n}\ns_nop 1\nv_permlane32_swap_b32 v{9+n}, v11\ns_nop 1\nv_max_f32 v11, v11, v{9+n}\nv_xor_b32 v11, 0x80000000, v11")
        for k in range(16): a(f"v_mov_b32 v{N+k}, v11")
    for k in range(32): a(f"v_mov_b32 v{OA+k}, 0")
    a(f"v_mov_b32 v{vK}, v{vQS}\ns_mov_b32 s{sCNT}, 0")
    a(f"Ls2:\nds_read_b128 {vr(KB,4)}, v{vK}\ns_mov_b64 exec, s[{sMASK}:{sMASK+1}]\nds_read_b128 {vr(VB,4)}, v{vV}\nds_read_b128 {vr(VB+4,4)}, v{vV} offset:512\ns_mov_b64 exec, -1")
    a(f"v_add_u32 v{vK}, 2048, v{vK}\nv_add_u32 v{vV}, 2048, v{vV}\ns_add_u32 s{sCNT}, s{sCNT}, 1\ns_waitcnt lgkmcnt(0)")
    a(f"{MF} {vr(X,16)}, {vr(KB,4)}, {vr(QA,4)}, {vr(NA,16)}\n{MF} {vr(Y,16)}, {vr(KB,4)}, {vr(QB,4)}, {vr(NB,16)}\ns_nop 7\ns_nop 3")
    ex(X, 0, 15); ex(Y, 0, 15)
    a("s_nop 1")
    a(f"{SM} {vr(OA,16)}, {vr(VB,4)}, {vr(X,8)}, v{IDX}\n{SM} {vr(OB,16)}, {vr(VB,4)}, {vr(Y,8)}, v{IDX}")
    a(f"{SM} {vr(OA,16)}, {vr(VB+4,4)}, {vr(X+8,8)}, v{IDX}\n{SM} {vr(OB,16)}, {vr(VB+4,4)}, {vr(Y+8,8)}, v{IDX}")
    a(f"s_cmp_lt_u32 s{sCNT}, 64\ns_cbranch_scc1 Ls2\ns_nop 7\ns_nop 7\ns_waitcnt vmcnt(0)")
    fin(False)
    a("s_branch Lfin")

    a("Llast_:\ns_endpgm")
    a(";@@LOAD")
    vm = VM(a)
    a(f"v_lshrrev_b32 v12, 3, v0\nv_and_b32 v13, 7, v0\nv_lshrrev_b32 v14, 4, v0\nv_xor_b32 v13, v13, v14\nv_lshlrev_b32 v12, 10, v12")
    a(f"s_lshl_b32 s14, s{sR}, 2\ns_add_u32 s14, s14, s{sI}\ns_lshl_b32 s14, s14, 15\nv_add_u32 v12, s14, v12")
    a(f"v_lshl_add_u32 v1, v13, 4, v12\nv_xor_b32 v2, 64, v1\nv_add_u32 v2, 8192, v2\nv_add_u32 v3, 16384, v1\nv_add_u32 v4, 16384, v2")
    a(f"s_mul_i32 s14, s{sC}, 192\ns_lshl_b32 s15, s{sI}, 4\ns_movk_i32 s82, 3072\ns_movk_i32 s83, 2752")
    for u in range(3):
        a(f"v_add_u32 v12, {64*u}, v0\nv_mul_u32_u24 v13, 5462, v12\nv_lshrrev_b32 v13, 16, v13\nv_mul_u32_u24 v14, 12, v13\nv_sub_u32 v12, v12, v14\nv_lshl_add_u32 v12, v12, 4, s14\nv_add_u32 v13, s15, v13")
        a(f"v_mad_u32_u24 v{5+u}, v13, s82, v12\nv_mad_u32_u24 v{8+u}, v13, s83, v12")
    a(f"s_lshl_b32 s80, s{sI}, 12\ns_mul_i32 s81, s{sI}, 3072")
    srd_size([SX, SWQ])
    def dma(mreg, mimm, v, sr, so, tag, off=0, sc=""):
        if mreg is not None: a(f"s_add_u32 m0, s{mreg}, {mimm}\ns_nop 0")
        a(f"buffer_load_dwordx4 v{v}, {srd(sr)}, s{so} offen {f'offset:{off}' if off else ''} {sc} lds")
        vm.add(tag)
    def stA(s):
        a(f"s_add_u32 s14, s{sROT}, {s}\ns_and_b32 s14, s14, 7\ns_lshl_b32 s82, s14, 7\ns_mul_i32 s83, s14, 196608")
        if s == 0:
            a("s_waitcnt lgkmcnt(0)")
            mk_srd([SX, SWQ])
            if EXP & 16: a("s_memrealtime s[96:97]")
        b = slots[s] * SLOT
        for u in range(4): dma(80, b + u * 1024, 1 + u, SX, 82, f"A{s}")
        for t in range(3): dma(81, b + 16384 + t * 1024, 5 + t, SWQ, 83, f"A{s}")
    def stB(t):
        a(f"s_add_u32 s14, s{sROT}, {t}\ns_and_b32 s14, s14, 7\ns_mul_i32 s83, s14, 176128")
        for i in range(3): dma(81, bbase[t] + i * 1024, 8 + i, SW1, 83, f"B{t}")
    stA(0)
    srd_size([SWS]); mk_srd([SWS])
    a(f"s_mov_b32 s15, {EPOCH}\nbuffer_load_dword v15, off, {srd(SWS)}, s15 sc1")
    vm.add("A0")
    for s in range(1, LOOK): stA(s)
    srd_size([SW1, SWO, SW2, SOUT, SB2, SG])
    mk_srd([SW1, SWO, SW2, SOUT, SB2, SG]); dbg_srd(68)
    a(f"s_cmp_eq_u32 s{sC}, 15\ns_cselect_b32 s{SW1+2}, 0, s{SW1+2}\nv_lshlrev_b32 v11, 4, v0")
    common2()
    FA, WOF, OF, HB, W2F, BS = 16, 80, 144, 144, 240, 132
    pFQ, pW0, pW1, pTR, pFH, pG0, pG1, pB2, pFO, pH0, pH1, pOUT, pO0, pO1, pALL, pWA, pWB, pR = range(208, 226)
    def ag0():
        a(f"s_lshr_b32 s84, s{sHEAD}, 1\ns_lshl_b32 s85, s{sI}, 7\ns_add_u32 s85, s85, {FQ}\nv_and_b32 v12, 15, v0\nv_lshlrev_b32 v12, 2, v12")
        a(f"s_add_u32 s14, s84, 16\ns_mul_i32 s14, s14, 21846\ns_lshr_b32 s14, s14, 16\ns_lshl_b32 s14, s14, 9\ns_add_u32 s14, s14, s85\nv_add_u32 v{pFQ}, s14, v12")
        a(f"s_add_u32 s14, s84, 32\ns_mul_i32 s14, s14, 21846\ns_lshr_b32 s14, s14, 16\ns_lshl_b32 s14, s14, 9\ns_add_u32 s14, s14, s85\nv_add_u32 v13, s14, v12\nv_cmp_gt_u32 vcc, 16, v0")
        a(f"s_mul_i32 s14, s84, 21846\ns_lshr_b32 s14, s14, 16\ns_lshl_b32 s14, s14, 9\nv_cndmask_b32 v{pFQ}, v13, v{pFQ}, vcc\ns_and_b32 s15, s{sI}, 1\ns_lshl_b32 s15, s15, 8\ns_add_u32 s14, s14, s15")
        a(f"s_lshl_b32 s15, s{sQB}, 1\ns_lshr_b32 s86, s{sI}, 1\ns_add_u32 s15, s15, s86\ns_lshl_b32 s15, s15, 2\ns_add_u32 s14, s14, s15\ns_add_u32 s14, s14, {FQ}")
        a(f"v_and_b32 v12, 1, v0\nv_lshl_add_u32 v13, v12, 7, s14\nv_cmp_gt_u32 vcc, 32, v0\nv_lshrrev_b32 v12, 2, v0\ns_nop 0\nv_cndmask_b32 v{pFQ}, v13, v{pFQ}, vcc\nv_and_b32 v13, 3, v0")
    def ag1():
        a(f"v_lshlrev_b32 v{pW0}, 10, v12\nv_lshl_add_u32 v{pW0}, v13, 4, v{pW0}\ns_lshl_b32 s14, s{sCB}, 7\ns_and_b32 s15, s{sI}, 1\ns_lshl_b32 s15, s15, 6\ns_add_u32 s14, s14, s15\nv_add_u32 v{pW0}, s14, v{pW0}\nv_xor_b32 v{pW1}, 64, v{pW0}")
        a(f"s_lshl_b32 s85, s{sI}, 11\ns_lshl_b32 s84, s{sHEAD}, 17\ns_add_u32 s84, s84, {WKV}\ns_add_u32 s84, s84, s85")
        a(f"s_lshl_b32 s14, s{sHEAD}, 6\ns_lshl_b32 s15, s{sQB}, 3\ns_add_u32 s14, s14, s15\ns_lshl_b32 s15, s{sI}, 1\ns_add_u32 s14, s14, s15\ns_lshl_b32 s88, s14, 10")
        a(f"s_lshl_b32 s89, s{sI}, 13\ns_add_u32 s89, s89, {RING}")
        a(f"s_lshl_b32 s90, s{sI}, 14\ns_lshl_b32 s91, s{sI}, 17")
    def ag2():
        a(f"v_lshrrev_b32 v14, 5, v0\nv_bfe_u32 v12, v0, 2, 2\nv_lshl_add_u32 v12, v14, 2, v12\nv_lshlrev_b32 v12, 6, v12\nv_bfe_u32 v13, v0, 4, 1\nv_lshl_add_u32 v12, v13, 5, v12")
        a(f"v_and_b32 v13, 3, v0\nv_lshl_add_u32 v12, v13, 3, v12\nv_add_u32 v{pTR}, s89, v12")
        a(f"s_lshl_b32 s14, s{sQB}, 2\ns_add_u32 s92, s14, s{sSUB}")
        a(f"s_lshl_b32 s14, s92, 8\ns_add_u32 s14, s14, {FH}\nv_bfe_u32 v12, v0, 4, 1\nv_and_b32 v13, 15, v0\nv_lshlrev_b32 v12, 7, v12\nv_lshl_add_u32 v12, v13, 2, v12\nv_add_u32 v{pFH}, s14, v12")
    def ag3():
        a(f"v_and_b32 v13, 31, v0\ns_lshl_b32 s14, s92, 8\ns_add_u32 s14, s14, {WG}\ns_lshr_b32 s15, s{sI}, 1\ns_lshl_b32 s15, s15, 7\ns_add_u32 s14, s14, s15\nv_lshl_add_u32 v{pG0}, v13, 2, s14\nv_xor_b32 v{pG1}, 128, v{pG0}")
        a(f"s_lshl_b32 s14, s{sCB}, 7\nv_lshl_add_u32 v{pB2}, v13, 1, s14")
        a(f"s_lshl_b32 s14, s92, 2\ns_add_u32 s14, s14, s{sI}\ns_lshl_b32 s94, s14, 14\ns_add_u32 s94, s94, {WO_}\ns_lshl_b32 s14, s14, {FOS + 3 if FOS else 7}\ns_add_u32 s14, s14, {FO}\nv_and_b32 v12, 7, v0\nv_lshl_add_u32 v{pFO}, v12, {FOS or 2}, s14")
        a(f"s_mul_i32 s93, s92, {2*86*1024}\ns_lshl_b32 s14, s{sI}, 10\ns_add_u32 s93, s93, s14\ns_add_u32 s93, s93, {WH}")
    def ag4():
        a(f"s_lshr_b32 s14, s{sI}, 1\ns_lshl_b32 s14, s14, 5\ns_lshl_b32 s15, s92, 6\ns_add_u32 s14, s14, s15\nv_add_u32 v12, s14, v13\nv_lshlrev_b32 v12, 10, v12\nv_lshl_add_u32 v12, v14, 4, v12")
        a(f"s_lshl_b32 s14, s{sCB}, 7\ns_and_b32 s15, s{sI}, 1\ns_lshl_b32 s15, s15, 6\ns_add_u32 s14, s14, s15\nv_add_u32 v{pOUT}, s14, v12")
        for k in range(12): a(f"v_mov_b32 v{BS+k}, 0")
        a(f"v_mov_b32 v12, 0x3f80\nv_cmp_gt_u32 vcc, 32, v0\ns_lshr_b32 s14, s{sI}, 1\ns_mul_i32 s15, s14, {86*1024}\nv_cndmask_b32 v{BS+8}, 0, v12, vcc")
        a(f"v_add_u32 v{pH0}, s15, v11\ns_sub_u32 s15, {86*1024}, s15\nv_add_u32 v{pH1}, s15, v11")
    def ag5():
        a(f"s_lshr_b32 s14, s{sI}, 1\ns_lshl_b32 s14, s14, 10\nv_add_u32 v{pO0}, s14, v11\nv_xor_b32 v{pO1}, 1024, v{pO0}")
        for j in range(1, 4): a(f"s_xor_b32 s14, s{sI}, {j}\ns_mul_i32 s14, s14, 12288\ns_add_u32 s14, s14, {(j-1)*4096}\nv_add_u32 v{pR+j}, s14, v11")
        a(f"s_mul_i32 s14, s{sI}, 12288\nv_add_u32 v{pR}, s14, v11")
        a(f"v_lshrrev_b32 v14, 4, v0\ns_lshl_b32 s14, s{sI}, 11\ns_add_u32 s14, s14, {FQ}\nv_lshl_add_u32 v14, v14, 9, s14\nv_and_b32 v13, 15, v0\nv_lshl_add_u32 v{pALL}, v13, 2, v14")
        if WARM & 2: a(f"v_bfe_u32 v12, v0, 1, 4\nv_and_b32 v13, 1, v0\nv_lshlrev_b32 v13, 6, v13\nv_lshl_add_u32 v12, v12, 10, v13\ns_lshl_b32 s14, s{sCB}, 7\nv_add_u32 v{pWB}, s14, v12\nv_lshrrev_b32 v13, 5, v0\nv_lshl_add_u32 v{pWA}, v13, 19, v{pWB}")
    agroups = [ag0, ag1, ag2, ag3, ag4, ag5]
    stamp(0)
    nxt = {0: [("A", 3)], 1: [("A", 4)], 2: [("A", 5)], 3: [("A", 6)], 4: [("A", 7), ("B", 0)], 5: [("B", 1), ("B", 2)], 6: [("B", 3), ("B", 4)], 7: [("B", 5), ("B", 6)]}
    if LOOK == 4: nxt[0] = [("A", 4)]; nxt[1] = [("B", 0)]; nxt[4] = [("A", 7)]
    if LOOK == 2: nxt[0] = [("A", 2), ("A", 3)]
    for s in range(8):
        vm.wait(f"A{s}")
        if s == 0: nonce(15)
        a("s_barrier")
        if s == 1:
            a(f"s_mov_b32 m0, {GLDS}\ns_mov_b32 s14, 0")
            dma(None, 0, 11, SG, 14, "G")
        for k, n in nxt[s]: (stA if k == "A" else stB)(n)
        if AG <= s < AG + 6: agroups[s - AG]()
    stamp(1)
    vm.wait("B1")
    a("s_barrier")
    stB(7)
    vm.wait("B3")
    a("s_barrier")
    vm.all()
    a("s_barrier")
    stamp(2)
    def kvdma(g0, g1, tag):
        for g in range(g0, g1 - 1, -1):
            a(f"s_add_u32 m0, s85, {g*8192}\ns_add_u32 s86, s84, {g*8192}")
            dma(None, 0, 11, SWS, 86, tag, sc=SCK); dma(None, 0, 11, SWS, 86, tag, off=1024, sc=SCK)
    PL = f"buffer_load_dword v12, v{pFQ}, {srd(SWS)}, 0 offen sc1"
    def chk(lo, hi, tgt):
        a(f"v_cmp_ne_u32 vcc, s{sN}, v12\ns_mov_b32 s82, {lo:#x}\ns_mov_b32 s83, {hi:#x}\ns_nop 2\ns_and_b64 vcc, vcc, s[82:83]\ns_cbranch_scc0 {tgt}")
    def pollm(lo, hi, name):
        a(f"s_mov_b32 s15, {SPIN}\n{name}:")
        chk(lo, hi, name + "_x")
        a(f"{PL}\ns_sub_u32 s15, s15, 1\ns_cmp_lg_u32 s15, 0\ns_waitcnt vmcnt(0)\ns_cbranch_scc1 {name}\n{name}_x:")
    M1, M2, M3 = ((0xc000c000, 0xffffffff), (0x30003000, 0), (0xffffffff, 0)) if STG else ((0xffffffff, 0xffffffff), (0, 0), (0, 0))
    a(f"{PL}\ns_waitcnt vmcnt(0)")
    pollm(*M1, "Lpq1")
    stamp(3)
    dma(89, 6144, 11, SWS, 88, "Q", sc="sc1")
    dma(None, 0, 11, SWS, 88, "Q", off=1024, sc="sc1")
    kvdma(15, 14, "KV1")
    chk(*M2, "LsA")
    a(f"{PL}\ns_waitcnt vmcnt(0)\ns_barrier")
    stamp(4)
    pollm(*M2, "Lpq2")
    q0 = list(vm.q)
    kvdma(13, 12, "KV2")
    a("s_branch LsC\nLsA:")
    vm.q = q0
    kvdma(13, 12, "KV2")
    vm.wait("KV1")
    a("s_barrier")
    stamp(4)
    a("LsC:")
    chk(*M3, "LsD")
    a(f"{PL}\ns_waitcnt vmcnt(0)\ns_barrier")
    pollm(*M3, "Lpq3")
    q0 = list(vm.q)
    kvdma(11, 7, "KV2b")
    a("s_branch LsF\nLsD:")
    vm.q = q0
    kvdma(11, 7, "KV2b")
    vm.wait("KV2")
    a("s_barrier\nLsF:")
    kvdma(6, 0, "KV3")
    def w2dma(n):
        sl = (n & 3) * 2048
        if n < 22:
            a(f"s_add_u32 s14, s90, {n*65536}")
            dma(89, sl, pW0, SW2, 14, f"W{n}"); dma(89, sl + 1024, pW1, SW2, 14, f"W{n}")
        else:
            a(f"s_add_u32 s14, s91, {(n-22)*16384}")
            dma(89, sl, pW0, SWO, 14, f"W{n}"); dma(89, sl + 1024, pW1, SWO, 14, f"W{n}")
    for n in range(3): w2dma(n)
    if WARM & 2:
        a(f"s_lshl_b32 s14, s{sQB}, 16\ns_add_u32 s14, s14, s90\nbuffer_load_dword v1, v{pWA}, {srd(SW2)}, s14 offen\ns_add_u32 s14, s14, {16*65536}\nbuffer_load_dword v2, v{pWB}, {srd(SW2)}, s14 offen")
        a(f"s_lshl_b32 s14, s{sQB}, 14\ns_add_u32 s14, s14, s91\nbuffer_load_dword v3, v{pWB}, {srd(SWO)}, s14 offen")
        vm.add("WM", 3)
    vm.wait("KV3")
    a("s_barrier")
    stamp(5)
    if FPRIO: a(f"s_setprio {FPRIO}")
    poll(pFH, 12, "Lph"); vm.q = []
    stamp(6)
    a(f"s_cmp_lg_u32 s2, 0\ns_cbranch_scc1 Lnall")
    poll(pALL, 12, "Lpa")
    a("Lnall:")
    a(f"buffer_load_dword v14, v{pG0}, {srd(SWS)}, 0 offen sc1\nbuffer_load_dword v15, v{pG1}, {srd(SWS)}, 0 offen sc1")
    a(f"buffer_load_ushort v{BS}, v{pB2}, {srd(SB2)}, 0 offen\nbuffer_load_ushort v{BS+4}, v{pB2}, {srd(SB2)}, 0 offen offset:64")
    vm.add("G", 4)
    NH = 8
    assert 0 < HD < NH
    def hload(n):
        b = HB + 8 * (n % NH)
        a(f"s_add_u32 s14, s93, {n*4096}\nbuffer_load_dwordx4 {vr(b,4)}, v{pH0}, {srd(SWS)}, s14 offen {SCH}\nbuffer_load_dwordx4 {vr(b+4,4)}, v{pH1}, {srd(SWS)}, s14 offen {SCH}")
        vm.add(f"H{n}", 2)
    for n in range(HD or NH): hload(n)
    hb = {HB1: range(NH, NH + HB1), HB2: range(NH + HB1, 22)}
    if HD: hb = {n: [n + HD] for n in range(22 - HD)}
    if EXP & 2: a("s_branch Lskip")
    def trreads(n, dst):
        sl = (n & 3) * 2048
        for ct in range(2):
            for u in range(2):
                a(f"ds_read_b64_tr_b16 {vr(dst+4*ct+2*u,2)}, v{pTR} offset:{sl+ct*1024+u*512}")
    def mf4(wb, h0, h1, first):
        for ct in range(2):
            for rt in range(2):
                d = vr(FA + 16 * (2 * rt + ct), 16)
                a(f"{MF} {d}, {vr(wb+4*ct,4)}, {vr(h1 if rt else h0,4)}, {'0' if first else d}")
    for n in range(30):
        if n + 3 < 30: w2dma(n + 3)
        for m in hb.get(n, []): hload(m)
        vm.wait(f"H{n}"); vm.wait(f"W{n}")
        if n < 22:
            wb = W2F + 8 * (n & 1)
            if n == 21: a(f"s_cmp_ge_u32 s{sI}, 2\ns_cbranch_scc1 Lb2")
            trreads(n, wb)
            a("s_waitcnt lgkmcnt(0)")
            if not (EXP & 1): mf4(wb, HB + 8 * (n % NH), HB + 8 * (n % NH) + 4, n == 0)
            if n == 21:
                a(f"s_branch Lb2x\nLb2:\ns_cmp_eq_u32 s{sI}, 3\ns_cbranch_scc1 Lb2x")
                mf4(BS, BS + 8, BS + 8, False)
                a("Lb2x:")
        else:
            trreads(n, WOF + 8 * (n - 22))
            a("s_waitcnt lgkmcnt(0)")
        if EXP & 8 and n in (10, 21, 29): stamp({10: 3, 21: 4, 29: 6}[n])
    if VPRIO: a(f"s_setprio {VPRIO}")
    if not BAR1: a(f"buffer_load_dword v12, v{pFO}, {srd(SWS)}, 0 offen sc1")
    a("Lskip:")
    stamp(7)
    sNL, sNM, sE, sT = 80, 81, 82, 83
    if FPRIO or VPRIO: a("s_setprio 0")
    if BAR1:
        a("s_barrier")
        stamp(8)
        a(f"buffer_load_dword v12, v{pFO}, {srd(SWS)}, 0 offen sc1")
    a("v_sub_f32 v14, 1.0, v14\nv_sub_f32 v15, 1.0, v15")
    for k in range(32): a(f"v_pk_mul_f32 {vr(FA+2*k,2)}, {vr(FA+2*k,2)}, v[14:15] op_sel:[0,{k >> 4}] op_sel_hi:[1,{k >> 4}]")
    a(f"s_mov_b32 s{sNL}, 0\ns_mov_b32 s{sNM}, 0\ns_mov_b32 s15, {SPIN}")
    a(f"Lw:\ns_waitcnt vmcnt(0)\nv_cmp_ne_u32 vcc, s{sN}, v12\ns_sub_u32 s15, s15, 1\ns_cmp_eq_u32 s15, 0\ns_cbranch_scc1 Lwx\ns_mov_b32 s{sT}, s{sNL}\ns_nop 1")
    a(f"s_and_b32 s14, vcc_lo, 0xff\ns_bitset1_b32 s14, 8\ns_ff1_i32_b32 s{sE}, s14\ns_max_u32 s{sE}, s{sE}, s{sNL}\ns_cmp_eq_u32 s{sE}, s{sNM}\ns_cbranch_scc0 Lw2")
    a(f"buffer_load_dword v12, v{pFO}, {srd(SWS)}, 0 offen sc1\ns_branch Lw\nLw2:")
    if PROF == 1: a(f"s_cmp_lg_u32 s{sNL}, 0\ns_cbranch_scc1 Lpf1\ns_memrealtime s[34:35]\ns_sub_u32 s16, {SPIN}, s15\nLpf1:")
    a(f"s_sub_u32 s14, s{sE}, s{sNL}\ns_bfm_b32 s84, s14, s{sNL}")
    for hh in range(8):
        b = OF + 8 * hh
        a(f"s_bitcmp1_b32 s84, {hh}\ns_cbranch_scc0 Lwi{hh}\ns_add_u32 s14, s94, {hh*2048}")
        a(f"buffer_load_dwordx4 {vr(b,4)}, v{pO0}, {srd(SWS)}, s14 offen sc1\nbuffer_load_dwordx4 {vr(b+4,4)}, v{pO1}, {srd(SWS)}, s14 offen sc1\nLwi{hh}:")
    if PROF == 1: a(f"s_memrealtime s[20:21]")
    a(f"s_mov_b32 s{sNL}, s{sE}\ns_cmp_eq_u32 s{sE}, 8\ns_cselect_b32 s{sT}, 8, s{sT}\ns_cbranch_scc1 Lw4\nbuffer_load_dword v12, v{pFO}, {srd(SWS)}, 0 offen sc1\nLw4:")
    a(f"s_sub_u32 s14, s{sT}, s{sNM}\ns_bfm_b32 s84, s14, s{sNM}\ns_mov_b32 s{sNM}, s{sT}")
    for hh in range(8):
        b = OF + 8 * hh
        a(f"s_bitcmp1_b32 s84, {hh}\ns_cbranch_scc0 Lwv{hh}\ns_waitcnt vmcnt({2*(7-hh)})")
        mf4(WOF + 8 * hh, b, b + 4, False)
        a(f"Lwv{hh}:")
    a(f"s_cmp_lg_u32 s{sNM}, 8\ns_cbranch_scc1 Lw\nLwx:")
    if PROF == 1: a(f"s_sub_u32 s18, {SPIN}, s15\ns_memrealtime s[26:27]")
    if not BAR1:
        a("s_barrier")
        stamp(8)
    stamp(10)
    a("s_nop 7")
    for j in (2, 1, 3):
        for q in range(4):
            a(f"ds_write_b128 v{pR+j}, {vr(FA+16*j+4*q,4)} offset:{q*1024}")
    a("s_waitcnt lgkmcnt(0)\ns_barrier")
    for j in range(1, 4):
        for q in range(4):
            a(f"ds_read_b128 {vr(FA+16*j+4*q,4)}, v{pR} offset:{(j-1)*4096+q*1024}")
    a(f"s_cmp_lg_u32 s2, 0\ns_cbranch_scc1 Lnoep\ns_cmp_lg_u32 s{sI}, 0\ns_cbranch_scc1 Lnoep\ns_mov_b32 s14, {EPOCH}")
    flag_store(14, 12)
    a("Lnoep:")
    for j in range(1, 4):
        a(f"s_waitcnt lgkmcnt({12-4*j})")
        for k in range(8): a(f"v_pk_add_f32 {vr(FA+2*k,2)}, {vr(FA+2*k,2)}, {vr(FA+16*j+2*k,2)}")
    for k in range(8): a(f"v_cvt_pk_bf16_f32 v{FA+k}, v{FA+2*k}, v{FA+2*k+1}")
    a("s_nop 1")
    for k in (0, 1, 4, 5): a(f"v_permlane32_swap_b32 v{FA+k}, v{FA+k+2}")
    a("s_nop 0")
    a(f"buffer_store_dwordx4 {vr(FA,4)}, v{pOUT}, {srd(SOUT)}, 0 offen {['', 'sc1', 'nt', 'sc0 sc1'][OSC]}\nbuffer_store_dwordx4 {vr(FA+4,4)}, v{pOUT}, {srd(SOUT)}, 0 offen offset:32 {['', 'sc1', 'nt', 'sc0 sc1'][OSC]}")
    stamp(11)
    if EXP & 16: a("s_mov_b32 s16, s100\ns_mov_b32 s18, s96")
    prof_out(1)
    a("Lend:\ns_endpgm")
    a(";@@END")
    a(f""".section .rodata,"a"
.p2align 6
.amdhsa_kernel {KN}
.amdhsa_next_free_vgpr 256
.amdhsa_next_free_sgpr 102
.amdhsa_accum_offset 256
.amdhsa_group_segment_fixed_size 0
.amdhsa_kernarg_size 96
.amdhsa_user_sgpr_count 2
.amdhsa_user_sgpr_kernarg_segment_ptr 1
.amdhsa_system_sgpr_workgroup_id_x 1
.end_amdhsa_kernel""")
    L = a.L
    ic, il, ie = L.index(";@@COMP"), L.index(";@@LOAD"), L.index(";@@END")
    a.L = L[:ic] + L[il+1:ie] + L[ic+1:il] + L[ie+1:]
    open(path, "w").write(a.text())


if __name__ == "__main__":
    kw = {}
    for x in sys.argv[2:]:
        k, v = x.split("=")
        kw[k] = int(v)
    gen(sys.argv[1], **kw)
```

```python
import sys, os
sys.path.insert(0, os.path.dirname(os.path.abspath(__file__)))
from asmlib import Asm
KN = "gated_mix__softmax_full_mha__dense_activation_squared_relu__prompt_kernel"

WQ, WKV, WH, WO_, WG = 0, 0x200000, 0x600000, 0xC00000, 0xE00000
FQ, FH, FO, EPOCH, WPROF = 0xE10000, 0xE20000, 0xE30000, 0xE50000, 0xF00000
SLOT = 28672
RING = 131072
GLDS = 155648
SPIN = 400000
sW, sX, sJ, sR, sC, sROT, sHEAD, sQB, sSUB, sCB, sN = 3, 4, 5, 6, 7, 8, 9, 10, 11, 12, 13
SX, SWQ, SW1, SWS, SWO, SW2, SOUT, SB1, SB2, SG = 40, 44, 48, 52, 56, 60, 64, 68, 72, 76
sMASK, sCNT, sI = 96, 98, 99


def srd(b): return f"s[{b}:{b+3}]"
def vr(b, n): return f"v[{b}:{b+n-1}]" if n > 1 else f"v{b}"
MF = "v_mfma_f32_32x32x16_bf16"
SM = "v_smfmac_f32_32x32x32_bf16"


class VM:
    def __init__(s, a): s.a = a; s.q = []
    def add(s, tag, n=1): s.q += [tag] * n
    def wait(s, tag):
        idx = [i for i, t in enumerate(s.q) if t == tag]
        if not idx: return
        n = len(s.q) - 1 - idx[-1]
        assert n < 64
        s.a(f"s_waitcnt vmcnt({n})")
        s.q = s.q[idx[-1] + 1:]
    def all(s): s.a("s_waitcnt vmcnt(0)"); s.q = []


class LG:
    def __init__(s, a): s.a = a; s.q = []
    def add(s, tag): s.q.append(tag)
    def wait(s, *tags):
        idx = [i for i, t in enumerate(s.q) if t in tags]
        if not idx: return
        n = min(len(s.q) - 1 - idx[-1], 15)
        s.a(f"s_waitcnt lgkmcnt({n})")
        s.q = s.q[len(s.q) - n:] if n else []
    def all(s): s.a("s_waitcnt lgkmcnt(0)"); s.q = []


def gen(path, PROF=0, FQPOS=4, PRIO=0, FORCE_SLOW=0, SPIN=SPIN, LOOK=3, DBG=0, HDEF=1, NSC=0, BAR1=0, FPRIO=0, HB1=6, HB2=12, EXP=0, HD=5, UNR=1, STG=1, WARM=0, HT0=4, HTF=12, B1=3, B2=11, GL=1, FOS=0, VPRIO=0, AG=0, OSC=0, EARLY=1, SPR=0, CHN=0, GP=33333, VP=0, DEF=0):
    SCK = '' if NSC & 1 else 'sc1'
    SCH = '' if NSC & 2 else 'sc1'
    SCO = '' if NSC & 4 else 'sc1'
    a = Asm()
    lab = [0]
    def stamp(i):
        if PROF == 1: a(f"s_memrealtime s[{16+2*i}:{17+2*i}]")
    def cstamp(i):
        if PROF == 1: a(f"s_memtime s[{16+2*i}:{17+2*i}]")
    def st3(i):
        if PROF == 3: a(f"s_memtime s[{16+2*i}:{17+2*i}]")
    def dbg_srd(b):
        if DBG: a(f"s_mov_b32 s{b}, s36\ns_mov_b32 s{b+1}, s37\ns_mov_b32 s{b+2}, 256\ns_mov_b32 s{b+3}, 0x20000")
    def dbg_out(b, idxs, o, last):
        lab[0] += 1
        a(f"s_waitcnt lgkmcnt(0)\ns_mov_b64 exec, 1\nv_mov_b32 v1, s{16+2*last}\nbuffer_atomic_umax v1, off, {srd(b)}, 0 offset:56\ns_not_b32 s14, s16\nv_mov_b32 v2, s14\nbuffer_atomic_umax v2, off, {srd(b)}, 0 offset:60")
        a(f"s_cmp_lg_u32 s2, {DBG}\ns_cbranch_scc1 Ldb{lab[0]}\ns_cmp_lg_u32 s{sI}, 0\ns_cbranch_scc1 Ldb{lab[0]}")
        for n, k in enumerate(idxs): a(f"v_mov_b32 v{3+n}, s{16+2*k}\nbuffer_store_dword v{3+n}, off, {srd(b)}, 0 offset:{4*(o+n)}")
        a(f"Ldb{lab[0]}:\ns_mov_b64 exec, -1")
    def prof_out(who=0):
        if DBG:
            if who == 0: dbg_out(76, [0, 1, 2, 3, 4, 5, 6], 0, 6)
            else: dbg_out(68, [2, 3, 6, 7, 9, 10, 11], 7, 11)
            return
        if not PROF: return
        a("s_waitcnt lgkmcnt(0)")
        a(f"s_lshl_b32 s14, s2, 3\ns_add_u32 s14, s14, s{sW}\ns_lshl_b32 s14, s14, 6\ns_add_u32 s14, s14, {WPROF}")
        a("s_mov_b64 exec, 1")
        for i in range(12):
            a(f"v_mov_b32 v1, s{16+2*i}\nbuffer_store_dword v1, off, {srd(SWS)}, s14 offset:{4*i}")
        a("s_mov_b64 exec, -1")
    def poll(vaddr, vtmp, name):
        va = vaddr if isinstance(vaddr, list) else [vaddr]
        a(f"s_mov_b32 s15, {SPIN}")
        a(f"{name}:")
        for k, v in enumerate(va): a(f"buffer_load_dword v{vtmp+k}, v{v}, {srd(SWS)}, 0 offen sc1")
        a("s_sub_u32 s15, s15, 1\ns_cmp_eq_u32 s15, 0")
        a(f"s_cbranch_scc1 {name}_x")
        a("s_waitcnt vmcnt(0)")
        for k in range(1, len(va)): a(f"v_xor_b32 v{vtmp+k}, s{sN}, v{vtmp+k}")
        if len(va) > 1:
            a(f"v_xor_b32 v{vtmp}, s{sN}, v{vtmp}\nv_or3_b32 v{vtmp}, v{vtmp}, v{vtmp+1}, v{vtmp+len(va)-1}\nv_cmp_ne_u32 vcc, 0, v{vtmp}")
        else: a(f"v_cmp_ne_u32 vcc, s{sN}, v{vtmp}")
        a(f"s_nop 4\ns_cmp_lg_u64 vcc, 0\ns_cbranch_scc1 {name}")
        a(f"{name}_x:\ns_waitcnt vmcnt(0)")
    def flag_store(soff, vtmp):
        a(f"v_mov_b32 v{vtmp}, s{sN}\ns_mov_b64 exec, 1\nbuffer_store_dword v{vtmp}, off, {srd(SWS)}, s{soff} sc1\ns_mov_b64 exec, -1")

    a("; @launch grid=(256,1,1) block=(512,1,1) lds=163840")
    a('.amdgcn_target "amdgcn-amd-amdhsa--gfx950"')
    a(f".text\n.globl {KN}\n.p2align 8\n.type {KN},@function\n{KN}:")
    a("s_cmp_ge_u32 s2, 256\ns_cbranch_scc1 Lend")
    if EXP & 16: a("s_memrealtime s[100:101]")
    a("s_load_dwordx16 s[16:31], s[0:1], 0\ns_load_dwordx8 s[32:39], s[0:1], 64")
    a(f"v_lshrrev_b32 v1, 6, v0\nv_and_b32 v0, 63, v0\ns_and_b32 s{sX}, s2, 7\nv_readfirstlane_b32 s{sW}, v1\ns_lshr_b32 s{sJ}, s2, 3")
    a(f"s_and_b32 s14, s{sX}, 1\ns_lshl_b32 s14, s14, 3\ns_and_b32 s15, s{sJ}, 7\ns_add_u32 s{sR}, s14, s15")
    a(f"s_lshr_b32 s14, s{sX}, 1\ns_lshl_b32 s14, s14, 2\ns_lshr_b32 s80, s{sJ}, 3\ns_add_u32 s{sC}, s14, s80")
    a(f"s_lshl_b32 s80, s80, 1\ns_add_u32 s{sROT}, s15, s80")
    a(f"s_and_b32 s{sI}, s{sW}, 3")
    sizes = {SX: (16, 2097152), SWQ: (18, 1572864), SWO: (20, 524288), SW1: (24, 1409024), SB1: (26, 2752),
             SW2: (28, 1409024), SB2: (30, 1024), SG: (32, 1024), SOUT: (34, 2097152), SWS: (38, 268435456)}
    def srd_size(lst):
        for b in lst: a(f"s_mov_b32 s{b+2}, {sizes[b][1]}\ns_mov_b32 s{b+3}, 0x20000")
    def common2():
        a(f"s_and_b32 s14, s{sJ}, 3\ns_lshl_b32 s15, s{sX}, 2\ns_add_u32 s{sHEAD}, s15, s14\ns_lshr_b32 s{sQB}, s{sJ}, 2")
        a(f"s_and_b32 s{sSUB}, s{sX}, 3\ns_and_b32 s15, s{sX}, 4\ns_add_u32 s{sCB}, s15, s14")
    a(f"s_cmp_lt_u32 s{sW}, 4\ns_cbranch_scc1 Lcomp")
    a(";@@COMP")
    a("Lcomp:")

    def mk_srd(lst):
        for b in lst:
            p = sizes[b][0]
            a(f"s_mov_b32 s{b}, s{p}\ns_mov_b32 s{b+1}, s{p+1}")
    def nonce(v):
        a(f"v_readfirstlane_b32 s14, v{v}\ns_mul_i32 s{sN}, s14, 0x9E3779B1\ns_add_u32 s{sN}, s{sN}, 0x7F4A7C15\ns_or_b32 s{sN}, s{sN}, 0x80000000")
        a(f"s_xor_b32 s15, s{sN}, 1\ns_cmp_eq_u32 s{sN}, s14\ns_cselect_b32 s{sN}, s15, s{sN}")

    XF, ACC, WF, BI = 16, 144, 192, 240
    vL31, vH, vXA, vWL, vWA, vT, vQS, vST = 1, 2, 3, 7, 8, 9, 12, 13
    if WARM & 1:
        a(f"s_getpc_b64 s[92:93]\nLpc:\ns_sub_u32 s92, s92, Lpc-{KN}\ns_subb_u32 s93, s93, 0\ns_and_b32 s14, s{sJ}, 3\ns_lshl_b32 s14, s14, 2\ns_add_u32 s14, s14, s{sI}\ns_lshl_b32 s14, s14, 12\nv_lshl_add_u32 v9, v0, 6, s14\nv_min_u32 v9, Llast_-{KN}, v9")
        a("global_load_dword v16, v9, s[92:93]")
    common2(); srd_size([SWS, SB1, SX, SWQ])
    a(f"s_mov_b32 s{sMASK}, 0xffff\ns_mov_b32 s{sMASK+1}, 0xffff")
    a(f"v_and_b32 v{vL31}, 31, v0\nv_lshrrev_b32 v{vH}, 5, v0")
    a(f"v_bfe_u32 v9, v0, 1, 3\nv_xor_b32 v9, v9, v{vH}\nv_lshlrev_b32 v9, 4, v9\nv_lshl_add_u32 v9, v{vL31}, 7, v9")
    a(f"s_lshl_b32 s14, s{sI}, 12\nv_add_u32 v{vXA}, s14, v9")
    for k in range(1, 4): a(f"v_xor_b32 v{vXA+k}, {32*k}, v{vXA}")
    a(f"v_bfe_u32 v9, v0, 2, 2\nv_lshl_add_u32 v9, v{vH}, 3, v9\nv_mul_u32_u24 v9, 192, v9\nv_bfe_u32 v10, v0, 4, 1\nv_lshl_add_u32 v9, v10, 5, v9")
    a(f"v_and_b32 v10, 3, v0\nv_lshl_add_u32 v{vWL}, v10, 3, v9")
    a(f"v_lshlrev_b32 v{vQS}, 4, v0")
    a(f"v_and_b32 v9, 0x33, v0\nv_and_b32 v10, 4, v0\nv_lshl_add_u32 v9, v10, 1, v9\nv_bfe_u32 v10, v0, 3, 1\nv_lshl_add_u32 v9, v10, 2, v9\nv_lshlrev_b32 v9, 4, v9")
    a(f"v_and_b32 v11, 15, v0\nv_lshl_add_u32 v11, v{vH}, 4, v11\nv_lshlrev_b32 v11, 4, v11\nv_bfe_u32 v10, v0, 4, 1\nv_lshl_add_u32 v11, v10, 17, v11\nv_add_u32 v10, 1024, v11")
    a(f"s_lshl_b32 s14, s{sR}, 2\ns_add_u32 s80, s14, s{sI}")
    for i in range(3):
        o1, o2, sc = [81, 83, 92][i], [82, 84, 93][i], [90, 94, 100][i]
        a(f"s_mul_i32 s14, s{sC}, 3\ns_add_u32 s14, s14, {i}\ns_lshr_b32 s15, s14, 4\ns_and_b32 s14, s14, 15\ns_lshl_b32 s14, s14, 7\ns_add_u32 s14, s14, s80")
        a(f"s_lshl_b32 s{o1}, s14, 11\ns_add_u32 s{o1}, s{o1}, {WKV}\ns_lshl_b32 s14, s14, 10")
        a(f"s_movk_i32 s{o2}, 512\ns_cmp_eq_u32 s15, 1\ns_cselect_b32 s{o2}, 131072, s{o2}\ns_cselect_b64 vcc, -1, 0\nv_cndmask_b32 v{vST+i}, v10, v9, vcc")
        a(f"s_cmp_eq_u32 s15, 0\ns_cselect_b32 s{o2}, 65536, s{o2}\ns_cselect_b32 s{o1}, s14, s{o1}\ns_cselect_b32 s{sc}, 0x3eb8aa3b, 1.0\ns_cselect_b64 vcc, -1, 0\nv_cndmask_b32 v{vST+i}, v{vST+i}, v{vQS}, vcc")
        a(f"s_add_u32 s{o2}, s{o2}, s{o1}\ns_mov_b32 s{sc+1}, s{sc}")
    for k in range(16): a(f"v_mov_b32 v{BI+k}, 0")
    a(f"v_mov_b32 v9, 0x3f80\nv_cmp_gt_u32 vcc, 32, v0\ns_mul_i32 s14, s{sC}, 192\nv_lshl_add_u32 v10, v{vL31}, 1, s14\nv_cndmask_b32 v{BI+12}, 0, v9, vcc")
    a("s_waitcnt lgkmcnt(0)")
    mk_srd([SWS, SB1]); dbg_srd(76)
    if UNR:
        for b, lim in ((SX, 15), (SWQ, 14)):
            a(f"s_mov_b32 s{b}, s38\ns_mov_b32 s{b+1}, s39\ns_cmp_lt_u32 s{sC}, {lim}\ns_cselect_b32 s{b+2}, s{SWS+2}, 0")
    a(f"s_mov_b32 s15, {EPOCH}\nbuffer_load_dword v11, off, {srd(SWS)}, s15 sc1")
    for i in range(3): a(f"buffer_load_ushort v{BI+4*i}, v10, {srd(SB1)}, 0 offen offset:{64*i}")
    a(f"s_mul_i32 s85, s80, 86\ns_mul_i32 s14, s{sC}, 6\ns_add_u32 s85, s85, s14\ns_lshl_b32 s85, s85, 10\ns_add_u32 s85, s85, {WH}\ns_add_u32 s86, s85, 4096")
    a(f"s_lshl_b32 s14, s{sC}, 2\ns_add_u32 s14, s14, s{sI}\ns_lshl_b32 s14, s14, 5\ns_add_u32 s14, s14, s{sR}\ns_lshl_b32 s14, s14, 2\ns_add_u32 s87, s14, {FQ}")
    a(f"s_lshl_b32 s14, s80, 5\ns_add_u32 s14, s14, s{sC}\ns_lshl_b32 s14, s14, 2\ns_add_u32 s88, s14, {FH}")
    a("s_waitcnt vmcnt(0)")
    nonce(11)
    stamp(0)

    lg = LG(a)
    slots = [1, 2, 3, 4, 0, 1, 2, 3]
    segs = [0, 57344, 57344, 114688, 0, 0, 57344, 57344]
    bbase = [143360, 114688, 126976, 0, 12288, 28672, 40960, 57344]
    halves = [("A", s, hf) for s in range(8) for hf in range(2)] + [("B", t, hf) for t in range(8) for hf in range(2)]
    seg = [0]
    PB = {("A", 1): 0, ("A", 3): 2, ("A", 4): 4, ("A", 7): 6, ("B", 2): 8, ("B", 6): 10}
    def prep(h):
        k, s, hf = halves[h]
        if hf: return
        if k == "A":
            if segs[s] != seg[0]:
                for q in range(4): a(f"v_add_u32 v{vXA+q}, {(segs[s]-seg[0]) & 0xffffffff:#x}, v{vXA+q}")
                seg[0] = segs[s]
            a(f"v_add_u32 v{vWA}, {slots[s]*SLOT+16384}, v{vWL}")
        else:
            a(f"v_add_u32 v{vWA}, {bbase[s]}, v{vWL}")
        if k == "A" or s in (0, 2, 4):
            if PROF == 2 and (k, s) in PB: a(f"s_memtime s[{16+2*PB[(k,s)]}:{17+2*PB[(k,s)]}]")
            a("s_barrier")
            if PROF == 2 and (k, s) in PB: a(f"s_memtime s[{18+2*PB[(k,s)]}:{19+2*PB[(k,s)]}]")
    def reads(h):
        k, s, hf = halves[h]
        L = []
        for ksl in range(2):
            ks = 2 * hf + ksl
            if k == "A": L.append((f"ds_read_b128 {vr(XF+16*s+4*ks,4)}, v{vXA+ks} offset:{slots[s]*SLOT-segs[s]}", (h, ksl, "x")))
            for t in range(3):
                d = WF + 24 * hf + 12 * ksl + 4 * t
                for u in range(2):
                    L.append((f"ds_read_b64_tr_b16 {vr(d+2*u,2)}, v{vWA} offset:{t*64+ks*3072+u*768}", (h, ksl, t)))
        return L
    def emit_reads(L, n):
        for _ in range(min(n, len(L))):
            ins, tag = L.pop(0); a(ins); lg.add(tag)
    def half(h, pat='TTT'):
        k, s, hf = halves[h]
        L = []
        if h + 1 < len(halves) and not (DEF and h == 15):
            prep(h + 1); L = reads(h + 1)
        for j in range(6):
            ksl, t = j // 3, j % 3
            ks = 2 * hf + ksl
            lg.wait((h, ksl, "x"), (h, ksl, t))
            x = vr(XF + 16 * s + 4 * ks, 4); w = vr(WF + 24 * hf + 12 * ksl + 4 * t, 4); d = vr(ACC + 16 * t, 16)
            c = "0" if (h == 0 and ksl == 0) else d
            a(f"{MF} {d}, {x}, {w}, {c}" if (k == "A" and pat[t] == "N") else f"{MF} {d}, {w}, {x}, {c}")
            emit_reads(L, 3)
        assert not L
    prep(0)
    stamp(1)
    emit_reads(reads(0), 99)
    a(f"s_cmp_eq_u32 s{sC}, 10\ns_cbranch_scc1 LA_TTN\ns_cmp_gt_u32 s{sC}, 10\ns_cbranch_scc1 LA_NNN")
    q0, seg0 = list(lg.q), seg[0]
    for pat in ("TTT", "TTN", "NNN"):
        lg.q = list(q0); seg[0] = seg0
        a(f"LA_{pat}:")
        for h in range(16): half(h, pat)
        stamp(2); st3(0)
        a("s_nop 7")
        if pat[0] == "N": a("s_nop 1")
        for i in range(3):
            b = ACC + 16 * i
            o1, o2, sc = [81, 83, 92][i], [82, 84, 93][i], [90, 94, 100][i]
            if pat[i] == "T":
                for k in range(8): a(f"v_pk_mul_f32 {vr(b+2*k,2)}, {vr(b+2*k,2)}, s[{sc}:{sc+1}]")
            for k in range(8): a(f"v_cvt_pk_bf16_f32 v{b+k}, v{b+2*k}, v{b+2*k+1}")
            a(f"buffer_store_dwordx4 {vr(b,4)}, v{vST+i}, {srd(SWS)}, s{o1} offen sc1\nbuffer_store_dwordx4 {vr(b+4,4)}, v{vST+i}, {srd(SWS)}, s{o2} offen sc1")
            st3(1 + i)
        if pat != "NNN": a("s_branch LB")
    a(f"s_cmp_eq_u32 s{sC}, 15\ns_cbranch_scc1 Lgate")
    a("LB:")
    if DEF: prep(16); emit_reads(reads(16), 99)
    for i in range(3): a(f"{MF} {vr(ACC+16*i,16)}, {vr(BI+4*i,4)}, {vr(BI+12,4)}, 0")
    for h in range(16, 32):
        if FQPOS == h - 16:
            st3(7); a("s_waitcnt vmcnt(0)"); st3(8); flag_store(87, 9); stamp(11)
        half(h)
        if h - 16 < 3: st3(4 + h - 16)
    stamp(3); st3(9)
    def hstore1(i, m, sr=SWS):
        o = (2 * i + m) * 1024
        return f"buffer_store_dwordx4 {vr(ACC+16*i+4*m,4)}, v{vQS}, {srd(sr)}, s{85 if o < 4096 else 86} offen offset:{o % 4096} sc1"
    def hstore(i):
        for m in range(2): a(hstore1(i, m))
    a("s_nop 7")
    for i in range(3):
        b = ACC + 16 * i
        if i == 1: a(f"s_cmp_eq_u32 s{sC}, 14\ns_cbranch_scc1 Latt")
        for k in range(16): a(f"v_max_f32 v{b+k}, 0, v{b+k}")
        for k in range(8): a(f"v_pk_mul_f32 {vr(b+2*k,2)}, {vr(b+2*k,2)}, {vr(b+2*k,2)}")
        for k in range(8): a(f"v_cvt_pk_bf16_f32 v{b+k}, v{b+2*k}, v{b+2*k+1}")
        if not HDEF: hstore(i)
    a("s_branch Latt")
    a("Lgate:\ns_waitcnt lgkmcnt(0)")
    if DEF: a("s_barrier")
    a(f"v_lshlrev_b32 v11, 4, v{vH}\nv_add_u32 v11, {GLDS}, v11")
    def gread(s_):
        a(f"s_add_u32 s14, s{sROT}, {s_}\ns_and_b32 s14, s14, 7\ns_lshl_b32 s14, s14, 7\nv_add_u32 v9, s14, v11")
        for ks in range(4): a(f"ds_read_b128 {vr(WF+16*(s_&3)+4*ks,4)}, v9 offset:{ks*32}")
    for s_ in range(3): gread(s_)
    a("s_waitcnt vmcnt(0)")
    flag_store(87, 10); stamp(11)
    if not GL: a("s_barrier\ns_barrier")
    for s_ in range(8):
        if s_ + 3 < 8: gread(s_ + 3)
        a(f"s_waitcnt lgkmcnt({4*min(3, 7-s_)})")
        for ks in range(4):
            d = vr(ACC + 16 * (ks & 1), 16)
            a(f"{MF} {d}, {vr(WF+16*(s_&3)+4*ks,4)}, {vr(XF+16*s_+4*ks,4)}, {'0' if s_ == 0 and ks < 2 else d}")
    a(f"s_nop 7\ns_nop 7\nv_add_f32 v{ACC}, v{ACC}, v{ACC+16}")
    a(f"v_mul_f32 v9, 0xbfb8aa3b, v{ACC}\nv_exp_f32 v9, v9\ns_lshl_b32 s14, s80, 7\ns_add_u32 s14, s14, {WG}\nv_add_f32 v9, 1.0, v9\nv_rcp_f32 v9, v9\nv_lshlrev_b32 v10, 2, v{vL31}\ns_nop 0")
    a(f"buffer_store_dword v9, v10, {srd(SWS)}, s14 offen sc1")
    if GL: a("s_waitcnt vmcnt(0)\ns_barrier\ns_barrier")

    X, Y, OA, OB, QA, QB, KB, VB, IDX, vK, vV, vGF, vGA, vFL, GA, GBv = 16, 32, 48, 64, 80, 84, 88, 96, 112, 113, 114, 115, 116, 117, 118, 119
    a("Latt:")
    st3(10)
    for k in range(32): a(f"v_mov_b32 v{OA+k}, 0")
    a(f"v_and_b32 v9, 27, v0\nv_cmp_eq_u32 vcc, 16, v9\nv_mov_b32 v10, 0x3f803f80\nv_mov_b32 v{IDX}, 0xdddddddd\nv_add_u32 v{vK}, {(32 if UNR else 58)*2048}, v{vQS}")
    a(f"v_cndmask_b32 v{VB}, 0, v10, vcc")
    for k in range(1, 16): a(f"v_mov_b32 v{VB+k}, v{VB}")
    a(f"v_and_b32 v9, 15, v0\nv_lshl_add_u32 v9, v{vH}, 4, v9\nv_lshlrev_b32 v9, 4, v9\nv_add_u32 v{vV}, {(32 if UNR else 58)*2048+1024}, v9")
    T0 = 31 if UNR else 5
    a(f"s_lshl_b32 s14, s{sI}, 13\ns_add_u32 s14, s14, {RING+6144}\nv_add_u32 v9, s14, v{vQS}")
    a(f"s_lshl_b32 s14, s{sQB}, 2\ns_add_u32 s80, s14, s{sI}\ns_lshl_b32 s14, s80, 8\ns_add_u32 s15, s14, {FH+60}\ns_add_u32 s14, s14, {WG}\nv_lshl_add_u32 v{vGA}, v{vL31}, 2, s14")
    a(f"v_and_b32 v10, 1, v0\nv_lshl_add_u32 v{vGF}, v10, 7, s15")
    a(f"s_lshl_b32 s14, s80, 2\ns_lshr_b32 s15, s{sHEAD}, 3\ns_add_u32 s14, s14, s15\ns_lshl_b32 s14, s14, 5\ns_and_b32 s15, s{sHEAD}, 7\ns_add_u32 s14, s14, s15\ns_lshl_b32 s14, s14, 2\ns_add_u32 s89, s14, {FO}")
    a(f"s_lshl_b32 s14, s80, 5\ns_add_u32 s14, s14, s{sHEAD}\ns_lshl_b32 s81, s14, 11\ns_add_u32 s81, s81, {WO_}")
    if FOS: a(f"s_lshl_b32 s14, s14, {FOS}\ns_add_u32 s89, s14, {FO}")
    a(f"s_mov_b32 s{sCNT}, 0")
    a("s_barrier")
    stamp(4); cstamp(7); st3(11)
    if PRIO: a(f"s_setprio {PRIO}")
    if not CHN:
        a(f"ds_read_b128 {vr(QA,4)}, v9\nds_read_b128 {vr(KB,4)}, v{vK} offset:{T0*2048}\nds_read_b128 {vr(QB,4)}, v9 offset:1024\nds_read_b128 {vr(KB+4,4)}, v{vK} offset:{(T0-1)*2048}")
        a(f"s_mov_b64 exec, s[{sMASK}:{sMASK+1}]\nds_read_b128 {vr(VB,4)}, v{vV} offset:{T0*2048}\nds_read_b128 {vr(VB+4,4)}, v{vV} offset:{T0*2048+512}\ns_mov_b64 exec, -1")
        a(f"s_waitcnt lgkmcnt(4)\n{MF} {vr(X,16)}, {vr(KB,4)}, {vr(QA,4)}, 0\ns_waitcnt lgkmcnt(2)\ns_nop 7\ns_nop 3")
    def ex(b, lo, hi):
        for k in range(lo, hi + 1): a(f"v_exp_f32 v{b+k}, v{b+k}")
    if not CHN: ex(X, 0, 1)
    def tile(u, koff, voff, last, ev={}):
        kc, kn = KB + 4 * (u & 1), KB + 4 * ((u + 1) & 1)
        vc, vn = VB + 8 * (u & 1), VB + 8 * ((u + 1) & 1)
        ex(X, 2, 4)
        a(f"{MF} {vr(Y,16)}, {vr(kc,4)}, {vr(QB,4)}, 0")
        kread = lambda: koff is not None and a(f"ds_read_b128 {vr(kc,4)}, v{vK} offset:{koff}")
        def vread(hs):
            if voff is None: return
            a(f"s_mov_b64 exec, s[{sMASK}:{sMASK+1}]")
            for h_ in hs: a(f"ds_read_b128 {vr(vn+4*h_,4)}, v{vV} offset:{voff+512*h_}")
            a("s_mov_b64 exec, -1")
        a("s_waitcnt lgkmcnt(0)")
        if not SPR & 6: kread()
        ex(X, 5, 9)
        a(f"{SM} {vr(OA,16)}, {vr(vc,4)}, {vr(X,8)}, v{IDX}")
        vread([0] if SPR & 1 else [0, 1])
        ex(X, 10, 15); ex(Y, 0, 1)
        a(f"{SM} {vr(OA,16)}, {vr(vc+4,4)}, {vr(X+8,8)}, v{IDX}")
        if SPR & 1: vread([1])
        elif SPR & 4: kread()
        if "p2" in ev: ev["p2"]()
        ex(Y, 2, 4)
        if not last: a(f"{MF} {vr(X,16)}, {vr(kn,4)}, {vr(QA,4)}, 0")
        if SPR & 2: kread()
        if "q2" in ev: ev["q2"]()
        ex(Y, 5, 9)
        a(f"{SM} {vr(OB,16)}, {vr(vc,4)}, {vr(Y,8)}, v{IDX}")
        if "p3" in ev: ev["p3"]()
        ex(Y, 10, 15)
        if not last: ex(X, 0, 1)
        else: a("s_nop 1")
        a(f"{SM} {vr(OB,16)}, {vr(vc+4,4)}, {vr(Y+8,8)}, v{IDX}")
        if "p4" in ev: ev["p4"]()
    if CHN:
        XS, YS, K1 = (X, 192), (Y, 208), 120
        gp = [int(ch) for ch in str(GP)]
        M_ = f"s_mov_b64 exec, s[{sMASK}:{sMASK+1}]"
        if VP in (10, 14):
            K0 = 124
            a(f"ds_read_b128 {vr(QA,4)}, v9\nds_read_b128 {vr(K0,4)}, v{vK} offset:{31*2048}\nds_read_b128 {vr(QB,4)}, v9 offset:1024\nds_read_b128 {vr(K1,4)}, v{vK} offset:{30*2048}")
            a(f"ds_read_b128 {vr(KB,4)}, v{vK} offset:{29*2048}\nds_read_b128 {vr(KB+4,4)}, v{vK} offset:{28*2048}\n{M_}")
            for q in range(4): a(f"ds_read_b128 {vr(VB+4*q,4)}, v{vV} offset:{(31-(q>>1))*2048+512*(q&1)}")
            a(f"s_mov_b64 exec, -1\ns_waitcnt lgkmcnt(8)\n{MF} {vr(X,16)}, {vr(K0,4)}, {vr(QA,4)}, 0\ns_waitcnt lgkmcnt(7)\n{MF} {vr(Y,16)}, {vr(K0,4)}, {vr(QB,4)}, 0\ns_waitcnt lgkmcnt(6)\ns_nop 7\ns_nop 1")
        else:
            a(f"ds_read_b128 {vr(QA,4)}, v9\nds_read_b128 {vr(KB+4,4)}, v{vK} offset:{31*2048}\nds_read_b128 {vr(QB,4)}, v9 offset:1024\nds_read_b128 {vr(K1,4)}, v{vK} offset:{30*2048}\nds_read_b128 {vr(KB,4)}, v{vK} offset:{29*2048}")
            a(f"{M_}\nds_read_b128 {vr(VB,4)}, v{vV} offset:{31*2048}\nds_read_b128 {vr(VB+4,4)}, v{vV} offset:{31*2048+512}\ns_mov_b64 exec, -1")
            a(f"s_waitcnt lgkmcnt(5)\n{MF} {vr(X,16)}, {vr(KB+4,4)}, {vr(QA,4)}, 0\ns_waitcnt lgkmcnt(4)\n{MF} {vr(Y,16)}, {vr(KB+4,4)}, {vr(QB,4)}, 0\ns_waitcnt lgkmcnt(3)\ns_nop 7\ns_nop 1")
        ex(X, 0, 2)
        a(f"{MF} {vr(XS[1],16)}, {vr(K1,4)}, {vr(QA,4)}, 0")
        ex(X, 3, 5)
        a(f"{MF} {vr(YS[1],16)}, {vr(K1,4)}, {vr(QB,4)}, 0\ns_waitcnt lgkmcnt(0)")
        ex(X, 6, 15); ex(Y, 0, 15)
        for n in range(63):
            xc, yc, xn, yn = XS[n & 1], YS[n & 1], XS[(n + 1) & 1], YS[(n + 1) & 1]
            vc, vn = VB + 8 * (n & 1), VB + 8 * ((n + 1) & 1)
            E_ = [xn + k for k in range(16)] + [yn + k for k in range(16)]
            def e(k):
                for _ in range(k): r = E_.pop(0); a(f"v_exp_f32 v{r}, v{r}")
            def upto(k): e(max(0, k - (32 - len(E_))))
            kt, vt = (59 - n, 61 - n) if VP == 10 else (60 - n, 61 - n) if VP == 14 else (60 - n, 62 - n)
            a(f"{SM} {vr(OA,16)}, {vr(vc,4)}, {vr(xc,8)}, v{IDX}")
            vrd = f"{M_}\nds_read_b128 {vr(vn,4)}, v{vV} offset:{(vt&31)*2048}\nds_read_b128 {vr(vn+4,4)}, v{vV} offset:{(vt&31)*2048+512}\ns_mov_b64 exec, -1"
            if VP in (0, 8, 9) or (n == 62 and VP not in (10, 14)): a(vrd)
            krd = f"ds_read_b128 {vr(KB+4*((n+1)&1),4)}, v{vK} offset:{(kt&31)*2048}"
            if VP == 11 and kt >= 0: a(krd)
            e(gp[0])
            if VP in (4, 5) and n < 62: a(M_)
            a(f"{SM} {vr(OB,16)}, {vr(vc,4)}, {vr(yc,8)}, v{IDX}")
            if VP == 12 and kt >= 0: a(krd)
            if VP in (2, 6, 7, 11, 12, 13) and n < 62: a(vrd)
            if VP in (4, 5) and n < 62: a(vrd[len(M_)+1:])
            e(gp[1])
            a(f"{SM} {vr(OA,16)}, {vr(vc+4,4)}, {vr(xc+8,8)}, v{IDX}")
            if VP == 3 and n < 62: a(vrd)
            if VP == 13 and kt >= 0: a(krd)
            if 4 <= VP < 10 and n < 62: a("s_waitcnt lgkmcnt(2)")
            e(gp[2])
            a(f"{SM} {vr(OB,16)}, {vr(vc+4,4)}, {vr(yc+8,8)}, v{IDX}")
            if n == 62:
                upto(10)
                a(f"s_waitcnt lgkmcnt(0)\n{SM} {vr(OA,16)}, {vr(vn,4)}, {vr(xn,8)}, v{IDX}")
                upto(18)
                a(f"{SM} {vr(OA,16)}, {vr(vn+4,4)}, {vr(xn+8,8)}, v{IDX}")
                e(8)
                a(f"{SM} {vr(OB,16)}, {vr(vn,4)}, {vr(yn,8)}, v{IDX}")
                e(6)
                a(f"s_nop 1\n{SM} {vr(OB,16)}, {vr(vn+4,4)}, {vr(yn+8,8)}, v{IDX}")
                break
            if VP == 14:
                a("s_waitcnt lgkmcnt(0)")
                e(gp[3])
                a(f"{MF} {vr(xc,16)}, {vr(KB,4)}, {vr(QA,4)}, 0")
                a(f"{M_}\nds_read_b128 {vr(vc,4)}, v{vV} offset:{(vt&31)*2048}\nds_read_b128 {vr(vc+4,4)}, v{vV} offset:{(vt&31)*2048+512}\ns_mov_b64 exec, -1")
                e(gp[4])
                a(f"{MF} {vr(yc,16)}, {vr(KB,4)}, {vr(QB,4)}, 0")
                if n in (B1, B2): a("s_barrier")
                if kt >= 0: a(f"ds_read_b128 {vr(KB,4)}, v{vK} offset:{(kt&31)*2048}")
            elif VP >= 10:
                kc = KB + 4 * (n & 1)
                e(gp[3])
                a(f"{MF} {vr(xc,16)}, {vr(kc,4)}, {vr(QA,4)}, 0")
                e(gp[4])
                a(f"{MF} {vr(yc,16)}, {vr(kc,4)}, {vr(QB,4)}, 0")
                if n in (B1, B2): a("s_barrier")
                a("s_waitcnt lgkmcnt(0)")
                if kt >= 0 and VP == 10: a(f"ds_read_b128 {vr(kc,4)}, v{vK} offset:{(kt&31)*2048}")
                if VP == 10: a(f"{M_}\nds_read_b128 {vr(vc,4)}, v{vV} offset:{(vt&31)*2048}\nds_read_b128 {vr(vc+4,4)}, v{vV} offset:{(vt&31)*2048+512}\ns_mov_b64 exec, -1")
            elif VP >= 4:
                kc, kn = KB + 4 * (n & 1), KB + 4 * ((n + 1) & 1)
                if n in (B1, B2): a("s_barrier")
                if kt >= 0: a(f"ds_read_b128 {vr(kn,4)}, v{vK} offset:{(kt&31)*2048}")
                e(gp[3])
                a(f"{MF} {vr(xc,16)}, {vr(kc,4)}, {vr(QA,4)}, 0")
                if VP in (4, 6, 8): a(f"s_waitcnt lgkmcnt({1 if kt >= 0 else 0})")
                e(gp[4])
                a(f"{MF} {vr(yc,16)}, {vr(kc,4)}, {vr(QB,4)}, 0")
                if VP in (5, 7, 9): a(f"s_waitcnt lgkmcnt({1 if kt >= 0 else 0})")
            else:
                a("s_waitcnt lgkmcnt(0)" if VP == 1 else "s_waitcnt lgkmcnt(2)")
                e(gp[3])
                a(f"{MF} {vr(xc,16)}, {vr(KB,4)}, {vr(QA,4)}, 0")
                e(gp[4])
                a(f"{MF} {vr(yc,16)}, {vr(KB,4)}, {vr(QB,4)}, 0")
                if n in (B1, B2): a("s_barrier")
                a(vrd if VP == 1 else "s_waitcnt lgkmcnt(0)")
                if kt >= 0: a(f"ds_read_b128 {vr(KB,4)}, v{vK} offset:{(kt&31)*2048}")
            upto(19)
            if n == 53: a(f"buffer_load_dword v{GA}, v{vGA}, {srd(SWS)}, 0 offen sc1")
            upto(22)
            if HT0 <= n < HT0 + 6: a(hstore1((n - HT0) >> 1, (n - HT0) & 1, SX if n - HT0 < 2 else SWQ))
            if n == HTF: a("s_waitcnt vmcnt(0)"); flag_store(88, 9)
            if n == 46: a(f"buffer_load_dword v{vFL}, v{vGF}, {srd(SWS)}, 0 offen sc1")
            if n == 52: a(f"s_waitcnt vmcnt(0)\nv_cmp_ne_u32 vcc, s{sN}, v{vFL}")
            if n == 53: a(f"buffer_load_dword v{GBv}, v{vGA}, {srd(SWS)}, 0 offen offset:128 sc1")
            upto(28)
            if kt == 32: a(f"v_add_u32 v{vK}, 0xffff0000, v{vK}")
            if vt == 32: a(f"v_add_u32 v{vV}, 0xffff0000, v{vV}")
            if n == 52: a(f"s_cmp_lg_u64 vcc, 0\ns_cbranch_scc1 Lgp\nLgpx:")
            upto(32)
            if VP == 1: a(f"s_waitcnt lgkmcnt({1 if kt >= 0 else 0})")
            assert not E_
        assert B1 <= 5 - (10 <= VP < 14) and B2 <= 13 - (10 <= VP < 14) and sum(gp) <= 22 and sum(gp[:3]) <= 15
    if UNR and not CHN:
        for n in range(64):
            ev = {}
            if n in (B1, B2): ev["p4"] = lambda: a("s_barrier")
            if HT0 <= n < HT0 + 6 and not (EXP & 4): ev["p3"] = lambda k=n-HT0: a(hstore1(k >> 1, k & 1, SX if k < 2 else SWQ))
            if n == HTF: ev["p3"] = lambda: (a("s_waitcnt vmcnt(0)"), flag_store(88, 9))
            if n == 29: ev["p4" if SPR else "q2"] = lambda: a(f"v_add_u32 v{vK}, 0xffff0000, v{vK}")
            if n == 30: ev["p4" if SPR else "q2"] = lambda: a(f"v_add_u32 v{vV}, 0xffff0000, v{vV}")
            if n == 46: ev["p3"] = lambda: a(f"buffer_load_dword v{vFL}, v{vGF}, {srd(SWS)}, 0 offen sc1")
            if n == 52: ev["p3"] = lambda: a(f"s_waitcnt vmcnt(0)\nv_cmp_ne_u32 vcc, s{sN}, v{vFL}")
            if n == 52: ev["p4"] = lambda: a(f"s_cmp_lg_u64 vcc, 0\ns_cbranch_scc1 Lgp\nLgpx:")
            if n == 53: ev["p2"] = lambda: a(f"buffer_load_dword v{GA}, v{vGA}, {srd(SWS)}, 0 offen sc1")
            if n == 53: ev["p3"] = lambda: a(f"buffer_load_dword v{GBv}, v{vGA}, {srd(SWS)}, 0 offen offset:128 sc1")
            kt, vt = 61 - n, 62 - n
            tile(n, (kt & 31) * 2048 if kt >= 0 else None, (vt & 31) * 2048 if vt >= 0 else None, n == 63, ev)
    UNR or a("Lloop:")
    if not UNR:
        for u in range(4): tile(u, (3 - u) * 2048, (4 - u) * 2048, False)
        a(f"s_add_u32 s{sCNT}, s{sCNT}, 1\nv_add_u32 v{vK}, 0xffffe000, v{vK}\nv_add_u32 v{vV}, 0xffffe000, v{vV}")
        a(f"s_bitcmp1_b32 {(1<<1)|(1<<3)|(1<<12)|(1<<13)|(1<<15)}, s{sCNT}\ns_cbranch_scc0 Lloop")
        a(f"s_cmp_eq_u32 s{sCNT}, 15\ns_cbranch_scc1 Llast\ns_cmp_eq_u32 s{sCNT}, 12\ns_cbranch_scc1 Lev2\ns_cmp_eq_u32 s{sCNT}, 13\ns_cbranch_scc1 Lev3\ns_cmp_eq_u32 s{sCNT}, 3\ns_cbranch_scc1 Lev1")
        if HDEF:
            a(f"s_barrier\ns_cmp_eq_u32 s{sC}, 15\ns_cbranch_scc1 Lloop")
            if EXP & 4: a("s_branch Lloop")
            hstore(0)
            a(f"s_cmp_eq_u32 s{sC}, 14\ns_cbranch_scc1 Lloop")
            hstore(1); hstore(2)
            a("s_branch Lloop\nLev1:\ns_waitcnt vmcnt(0)")
            flag_store(88, 9)
            a("s_barrier\ns_branch Lloop")
        else:
            a("s_waitcnt vmcnt(0)")
            flag_store(88, 9)
            a("Lev1:\ns_barrier\ns_branch Lloop")
        a(f"Lev2:\nbuffer_load_dword v{vFL}, v{vGF}, {srd(SWS)}, 0 offen sc1\ns_branch Lloop")
        a(f"Lev3:\ns_waitcnt vmcnt(0)\nv_cmp_ne_u32 vcc, s{sN}, v{vFL}\ns_nop 4\ns_cmp_eq_u64 vcc, 0\ns_cbranch_scc1 Lev3b")
        poll(vGF, vFL, "Lpg")
        a(f"Lev3b:\nbuffer_load_dword v{GA}, v{vGA}, {srd(SWS)}, 0 offen sc1\nbuffer_load_dword v{GBv}, v{vGA}, {srd(SWS)}, 0 offen offset:128 sc1\ns_branch Lloop")
        a(f"Llast:\nv_add_u32 v{vK}, 4096, v{vK}\nv_add_u32 v{vV}, 4096, v{vV}")
        for u in range(4): tile(u, (1 - u) * 2048 if u < 2 else None, (2 - u) * 2048 if u < 3 else None, u == 3)
    stamp(5); cstamp(8)
    def fin(chk):
        for n, O in enumerate((OA, OB)):
            if n == 1 and chk: a("s_nop 4")
            a(f"v_rcp_f32 v{9+n}, v{O+8}\ns_nop 0")
            a(f"v_mul_f32 v{9+n}, v{9+n}, v{GA+n}")
            for k in range(8): a(f"v_mul_f32 v{O+k}, v{9+n}, v{O+k}")
            for k in range(4): a(f"v_cvt_pk_bf16_f32 v{O+k}, v{O+2*k}, v{O+2*k+1}")
            a(f"buffer_store_dwordx4 {vr(O,4)}, v{vQS}, {srd(SWS)}, s81 offen offset:{1024*n} sc1")
    a("s_waitcnt vmcnt(0)")
    fin(True)
    a("s_mov_b32 s14, 0x7fff7fff\ns_mov_b32 s15, 0x30800000\ns_mov_b32 s92, 0x5f800000")
    for k in range(8): a(f"v_and_b32 v{X+k}, s14, v{(OA if k < 4 else OB)+(k&3)}")
    for st in (4, 2, 1):
        for k in range(st): a(f"v_pk_max_u16 v{X+k}, v{X+k}, v{X+k+st}")
    a(f"v_lshrrev_b32 v{X+1}, 16, v{X}\nv_and_b32 v{X}, 0xffff, v{X}\nv_max_u32 v{X}, v{X}, v{X+1}")
    a(f"v_min_f32 v9, v{OA+8}, v{OB+8}\nv_max_f32 v10, v{OA+8}, v{OB+8}\nv_cmp_u_f32 s[82:83], v{OA+8}, v{OB+8}")
    a(f"v_cmp_gt_u32 vcc, 0x7f80, v{X}\nv_cmp_lt_f32 s[84:85], s15, v9\nv_cmp_gt_f32 s[86:87], s92, v10\ns_nop 4")
    a("s_and_b64 vcc, vcc, s[84:85]\ns_and_b64 vcc, vcc, s[86:87]\ns_andn2_b64 vcc, vcc, s[82:83]\ns_cmp_lg_u64 vcc, -1\ns_cbranch_scc1 Lslow")
    if FORCE_SLOW: a("s_branch Lslow")
    a("Lfin:")
    if BAR1: a("s_barrier")
    a("s_waitcnt vmcnt(0)")
    flag_store(89, 9)
    stamp(6)
    prof_out()
    a("s_endpgm")
    if UNR:
        a("Lgp:")
        poll(vGF, vFL, "Lpg")
        a("s_branch Lgpx")
    NA, NB = 120, 136
    a("Lslow:")
    a(f"v_mov_b32 v{vK}, v{vQS}\nv_mov_b32 v9, 0xff800000\nv_mov_b32 v10, 0xff800000\ns_mov_b32 s{sCNT}, 0")
    a(f"Ls1:\nds_read_b128 {vr(KB,4)}, v{vK}\nv_add_u32 v{vK}, 2048, v{vK}\ns_add_u32 s{sCNT}, s{sCNT}, 1\ns_waitcnt lgkmcnt(0)")
    a(f"{MF} {vr(X,16)}, {vr(KB,4)}, {vr(QA,4)}, 0\n{MF} {vr(Y,16)}, {vr(KB,4)}, {vr(QB,4)}, 0\ns_nop 7\ns_nop 3")
    for n, S in enumerate((X, Y)):
        for k in range(8): a(f"v_max3_f32 v{9+n}, v{9+n}, v{S+2*k}, v{S+2*k+1}")
    a(f"s_cmp_lt_u32 s{sCNT}, 64\ns_cbranch_scc1 Ls1")
    for n, N in enumerate((NA, NB)):
        a(f"v_mov_b32 v11, v{9+n}\ns_nop 1\nv_permlane32_swap_b32 v{9+n}, v11\ns_nop 1\nv_max_f32 v11, v11, v{9+n}\nv_xor_b32 v11, 0x80000000, v11")
        for k in range(16): a(f"v_mov_b32 v{N+k}, v11")
    for k in range(32): a(f"v_mov_b32 v{OA+k}, 0")
    a(f"v_mov_b32 v{vK}, v{vQS}\ns_mov_b32 s{sCNT}, 0")
    a(f"Ls2:\nds_read_b128 {vr(KB,4)}, v{vK}\ns_mov_b64 exec, s[{sMASK}:{sMASK+1}]\nds_read_b128 {vr(VB,4)}, v{vV}\nds_read_b128 {vr(VB+4,4)}, v{vV} offset:512\ns_mov_b64 exec, -1")
    a(f"v_add_u32 v{vK}, 2048, v{vK}\nv_add_u32 v{vV}, 2048, v{vV}\ns_add_u32 s{sCNT}, s{sCNT}, 1\ns_waitcnt lgkmcnt(0)")
    a(f"{MF} {vr(X,16)}, {vr(KB,4)}, {vr(QA,4)}, {vr(NA,16)}\n{MF} {vr(Y,16)}, {vr(KB,4)}, {vr(QB,4)}, {vr(NB,16)}\ns_nop 7\ns_nop 3")
    ex(X, 0, 15); ex(Y, 0, 15)
    a("s_nop 1")
    a(f"{SM} {vr(OA,16)}, {vr(VB,4)}, {vr(X,8)}, v{IDX}\n{SM} {vr(OB,16)}, {vr(VB,4)}, {vr(Y,8)}, v{IDX}")
    a(f"{SM} {vr(OA,16)}, {vr(VB+4,4)}, {vr(X+8,8)}, v{IDX}\n{SM} {vr(OB,16)}, {vr(VB+4,4)}, {vr(Y+8,8)}, v{IDX}")
    a(f"s_cmp_lt_u32 s{sCNT}, 64\ns_cbranch_scc1 Ls2\ns_nop 7\ns_nop 7\ns_waitcnt vmcnt(0)")
    fin(False)
    a("s_branch Lfin")

    a("Llast_:\ns_endpgm")
    a(";@@LOAD")
    vm = VM(a)
    a(f"v_lshrrev_b32 v12, 3, v0\nv_and_b32 v13, 7, v0\nv_lshrrev_b32 v14, 4, v0\nv_xor_b32 v13, v13, v14\nv_lshlrev_b32 v12, 10, v12")
    a(f"s_lshl_b32 s14, s{sR}, 2\ns_add_u32 s14, s14, s{sI}\ns_lshl_b32 s14, s14, 15\nv_add_u32 v12, s14, v12")
    a(f"v_lshl_add_u32 v1, v13, 4, v12\nv_xor_b32 v2, 64, v1\nv_add_u32 v2, 8192, v2\nv_add_u32 v3, 16384, v1\nv_add_u32 v4, 16384, v2")
    a(f"s_mul_i32 s14, s{sC}, 192\ns_lshl_b32 s15, s{sI}, 4\ns_movk_i32 s82, 3072\ns_movk_i32 s83, 2752")
    for u in range(3):
        a(f"v_add_u32 v12, {64*u}, v0\nv_mul_u32_u24 v13, 5462, v12\nv_lshrrev_b32 v13, 16, v13\nv_mul_u32_u24 v14, 12, v13\nv_sub_u32 v12, v12, v14\nv_lshl_add_u32 v12, v12, 4, s14\nv_add_u32 v13, s15, v13")
        a(f"v_mad_u32_u24 v{5+u}, v13, s82, v12\nv_mad_u32_u24 v{8+u}, v13, s83, v12")
    a(f"s_lshl_b32 s80, s{sI}, 12\ns_mul_i32 s81, s{sI}, 3072")
    srd_size([SX, SWQ])
    def dma(mreg, mimm, v, sr, so, tag, off=0, sc=""):
        if mreg is not None: a(f"s_add_u32 m0, s{mreg}, {mimm}\ns_nop 0")
        a(f"buffer_load_dwordx4 v{v}, {srd(sr)}, s{so} offen {f'offset:{off}' if off else ''} {sc} lds")
        vm.add(tag)
    def stA(s):
        a(f"s_add_u32 s14, s{sROT}, {s}\ns_and_b32 s14, s14, 7\ns_lshl_b32 s82, s14, 7\ns_mul_i32 s83, s14, 196608")
        if s == 0:
            a("s_waitcnt lgkmcnt(0)")
            mk_srd([SX, SWQ])
            if EXP & 16: a("s_memrealtime s[96:97]")
        b = slots[s] * SLOT
        for u in range(4): dma(80, b + u * 1024, 1 + u, SX, 82, f"A{s}")
        for t in range(3): dma(81, b + 16384 + t * 1024, 5 + t, SWQ, 83, f"A{s}")
    def stB(t):
        a(f"s_add_u32 s14, s{sROT}, {t}\ns_and_b32 s14, s14, 7\ns_mul_i32 s83, s14, 176128")
        for i in range(3): dma(81, bbase[t] + i * 1024, 8 + i, SW1, 83, f"B{t}")
    stA(0)
    srd_size([SWS]); mk_srd([SWS])
    a(f"s_mov_b32 s15, {EPOCH}\nbuffer_load_dword v15, off, {srd(SWS)}, s15 sc1")
    vm.add("A0")
    for s in range(1, LOOK): stA(s)
    srd_size([SW1, SWO, SW2, SOUT, SB2, SG])
    mk_srd([SW1, SWO, SW2, SOUT, SB2, SG]); dbg_srd(68)
    a(f"s_cmp_eq_u32 s{sC}, 15\ns_cselect_b32 s{SW1+2}, 0, s{SW1+2}\nv_lshlrev_b32 v11, 4, v0")
    common2()
    FA, WOF, OF, HB, W2F, BS = 16, 80, 144, 144, 240, 132
    pFQ, pW0, pW1, pTR, pFH, pG0, pG1, pB2, pFO, pH0, pH1, pOUT, pO0, pO1, pALL, pWA, pWB, pR = range(208, 226)
    def ag0():
        a(f"s_lshr_b32 s84, s{sHEAD}, 1\ns_lshl_b32 s85, s{sI}, 7\ns_add_u32 s85, s85, {FQ}\nv_and_b32 v12, 15, v0\nv_lshlrev_b32 v12, 2, v12")
        a(f"s_add_u32 s14, s84, 16\ns_mul_i32 s14, s14, 21846\ns_lshr_b32 s14, s14, 16\ns_lshl_b32 s14, s14, 9\ns_add_u32 s14, s14, s85\nv_add_u32 v{pFQ}, s14, v12")
        a(f"s_add_u32 s14, s84, 32\ns_mul_i32 s14, s14, 21846\ns_lshr_b32 s14, s14, 16\ns_lshl_b32 s14, s14, 9\ns_add_u32 s14, s14, s85\nv_add_u32 v13, s14, v12\nv_cmp_gt_u32 vcc, 16, v0")
        a(f"s_mul_i32 s14, s84, 21846\ns_lshr_b32 s14, s14, 16\ns_lshl_b32 s14, s14, 9\nv_cndmask_b32 v{pFQ}, v13, v{pFQ}, vcc\ns_and_b32 s15, s{sI}, 1\ns_lshl_b32 s15, s15, 8\ns_add_u32 s14, s14, s15")
        a(f"s_lshl_b32 s15, s{sQB}, 1\ns_lshr_b32 s86, s{sI}, 1\ns_add_u32 s15, s15, s86\ns_lshl_b32 s15, s15, 2\ns_add_u32 s14, s14, s15\ns_add_u32 s14, s14, {FQ}")
        a(f"v_and_b32 v12, 1, v0\nv_lshl_add_u32 v13, v12, 7, s14\nv_cmp_gt_u32 vcc, 32, v0\nv_lshrrev_b32 v12, 2, v0\ns_nop 0\nv_cndmask_b32 v{pFQ}, v13, v{pFQ}, vcc\nv_and_b32 v13, 3, v0")
    def ag1():
        a(f"v_lshlrev_b32 v{pW0}, 10, v12\nv_lshl_add_u32 v{pW0}, v13, 4, v{pW0}\ns_lshl_b32 s14, s{sCB}, 7\ns_and_b32 s15, s{sI}, 1\ns_lshl_b32 s15, s15, 6\ns_add_u32 s14, s14, s15\nv_add_u32 v{pW0}, s14, v{pW0}\nv_xor_b32 v{pW1}, 64, v{pW0}")
        a(f"s_lshl_b32 s85, s{sI}, 11\ns_lshl_b32 s84, s{sHEAD}, 17\ns_add_u32 s84, s84, {WKV}\ns_add_u32 s84, s84, s85")
        a(f"s_lshl_b32 s14, s{sHEAD}, 6\ns_lshl_b32 s15, s{sQB}, 3\ns_add_u32 s14, s14, s15\ns_lshl_b32 s15, s{sI}, 1\ns_add_u32 s14, s14, s15\ns_lshl_b32 s88, s14, 10")
        a(f"s_lshl_b32 s89, s{sI}, 13\ns_add_u32 s89, s89, {RING}")
        a(f"s_lshl_b32 s90, s{sI}, 14\ns_lshl_b32 s91, s{sI}, 17")
    def ag2():
        a(f"v_lshrrev_b32 v14, 5, v0\nv_bfe_u32 v12, v0, 2, 2\nv_lshl_add_u32 v12, v14, 2, v12\nv_lshlrev_b32 v12, 6, v12\nv_bfe_u32 v13, v0, 4, 1\nv_lshl_add_u32 v12, v13, 5, v12")
        a(f"v_and_b32 v13, 3, v0\nv_lshl_add_u32 v12, v13, 3, v12\nv_add_u32 v{pTR}, s89, v12")
        a(f"s_lshl_b32 s14, s{sQB}, 2\ns_add_u32 s92, s14, s{sSUB}")
        a(f"s_lshl_b32 s14, s92, 8\ns_add_u32 s14, s14, {FH}\nv_bfe_u32 v12, v0, 4, 1\nv_and_b32 v13, 15, v0\nv_lshlrev_b32 v12, 7, v12\nv_lshl_add_u32 v12, v13, 2, v12\nv_add_u32 v{pFH}, s14, v12")
    def ag3():
        a(f"v_and_b32 v13, 31, v0\ns_lshl_b32 s14, s92, 8\ns_add_u32 s14, s14, {WG}\ns_lshr_b32 s15, s{sI}, 1\ns_lshl_b32 s15, s15, 7\ns_add_u32 s14, s14, s15\nv_lshl_add_u32 v{pG0}, v13, 2, s14\nv_xor_b32 v{pG1}, 128, v{pG0}")
        a(f"s_lshl_b32 s14, s{sCB}, 7\nv_lshl_add_u32 v{pB2}, v13, 1, s14")
        a(f"s_lshl_b32 s14, s92, 2\ns_add_u32 s14, s14, s{sI}\ns_lshl_b32 s94, s14, 14\ns_add_u32 s94, s94, {WO_}\ns_lshl_b32 s14, s14, {FOS + 3 if FOS else 7}\ns_add_u32 s14, s14, {FO}\nv_and_b32 v12, 7, v0\nv_lshl_add_u32 v{pFO}, v12, {FOS or 2}, s14")
        a(f"s_mul_i32 s93, s92, {2*86*1024}\ns_lshl_b32 s14, s{sI}, 10\ns_add_u32 s93, s93, s14\ns_add_u32 s93, s93, {WH}")
    def ag4():
        a(f"s_lshr_b32 s14, s{sI}, 1\ns_lshl_b32 s14, s14, 5\ns_lshl_b32 s15, s92, 6\ns_add_u32 s14, s14, s15\nv_add_u32 v12, s14, v13\nv_lshlrev_b32 v12, 10, v12\nv_lshl_add_u32 v12, v14, 4, v12")
        a(f"s_lshl_b32 s14, s{sCB}, 7\ns_and_b32 s15, s{sI}, 1\ns_lshl_b32 s15, s15, 6\ns_add_u32 s14, s14, s15\nv_add_u32 v{pOUT}, s14, v12")
        for k in range(12): a(f"v_mov_b32 v{BS+k}, 0")
        a(f"v_mov_b32 v12, 0x3f80\nv_cmp_gt_u32 vcc, 32, v0\ns_lshr_b32 s14, s{sI}, 1\ns_mul_i32 s15, s14, {86*1024}\nv_cndmask_b32 v{BS+8}, 0, v12, vcc")
        a(f"v_add_u32 v{pH0}, s15, v11\ns_sub_u32 s15, {86*1024}, s15\nv_add_u32 v{pH1}, s15, v11")
    def ag5():
        a(f"s_lshr_b32 s14, s{sI}, 1\ns_lshl_b32 s14, s14, 10\nv_add_u32 v{pO0}, s14, v11\nv_xor_b32 v{pO1}, 1024, v{pO0}")
        for j in range(1, 4): a(f"s_xor_b32 s14, s{sI}, {j}\ns_mul_i32 s14, s14, 12288\ns_add_u32 s14, s14, {(j-1)*4096}\nv_add_u32 v{pR+j}, s14, v11")
        a(f"s_mul_i32 s14, s{sI}, 12288\nv_add_u32 v{pR}, s14, v11")
        a(f"v_lshrrev_b32 v14, 4, v0\ns_lshl_b32 s14, s{sI}, 11\ns_add_u32 s14, s14, {FQ}\nv_lshl_add_u32 v14, v14, 9, s14\nv_and_b32 v13, 15, v0\nv_lshl_add_u32 v{pALL}, v13, 2, v14")
        if WARM & 2: a(f"v_bfe_u32 v12, v0, 1, 4\nv_and_b32 v13, 1, v0\nv_lshlrev_b32 v13, 6, v13\nv_lshl_add_u32 v12, v12, 10, v13\ns_lshl_b32 s14, s{sCB}, 7\nv_add_u32 v{pWB}, s14, v12\nv_lshrrev_b32 v13, 5, v0\nv_lshl_add_u32 v{pWA}, v13, 19, v{pWB}")
    agroups = [ag0, ag1, ag2, ag3, ag4, ag5]
    stamp(0)
    nxt = {0: [("A", 3)], 1: [("A", 4)], 2: [("A", 5)], 3: [("A", 6)], 4: [("A", 7), ("B", 0)], 5: [("B", 1), ("B", 2)], 6: [("B", 3), ("B", 4)], 7: [("B", 5), ("B", 6)]}
    if LOOK == 4: nxt[0] = [("A", 4)]; nxt[1] = [("B", 0)]; nxt[4] = [("A", 7)]
    if LOOK == 2: nxt[0] = [("A", 2), ("A", 3)]
    for s in range(8):
        vm.wait(f"A{s}")
        if s == 0: nonce(15)
        a("s_barrier")
        if s == 1:
            a(f"s_mov_b32 m0, {GLDS}\ns_mov_b32 s14, 0")
            dma(None, 0, 11, SG, 14, "G")
        for k, n in nxt[s]: (stA if k == "A" else stB)(n)
        if AG <= s < AG + 6: agroups[s - AG]()
    stamp(1)
    vm.wait("B1")
    a("s_barrier")
    stB(7)
    vm.wait("B3")
    a("s_barrier")
    vm.all()
    a("s_barrier")
    stamp(2)
    def kvdma(g0, g1, tag):
        for g in range(g0, g1 - 1, -1):
            a(f"s_add_u32 m0, s85, {g*8192}\ns_add_u32 s86, s84, {g*8192}")
            dma(None, 0, 11, SWS, 86, tag, sc=SCK); dma(None, 0, 11, SWS, 86, tag, off=1024, sc=SCK)
    PL = f"buffer_load_dword v12, v{pFQ}, {srd(SWS)}, 0 offen sc1"
    def chk(lo, hi, tgt):
        a(f"v_cmp_ne_u32 vcc, s{sN}, v12\ns_mov_b32 s82, {lo:#x}\ns_mov_b32 s83, {hi:#x}\ns_nop 2\ns_and_b64 vcc, vcc, s[82:83]\ns_cbranch_scc0 {tgt}")
    def pollm(lo, hi, name):
        a(f"s_mov_b32 s15, {SPIN}\n{name}:")
        chk(lo, hi, name + "_x")
        a(f"{PL}\ns_sub_u32 s15, s15, 1\ns_cmp_lg_u32 s15, 0\ns_waitcnt vmcnt(0)\ns_cbranch_scc1 {name}\n{name}_x:")
    M1, M2, M3 = ((0xc000c000, 0xffffffff), (0x30003000, 0), (0xffffffff, 0)) if STG else ((0xffffffff, 0xffffffff), (0, 0), (0, 0))
    a(f"{PL}\ns_waitcnt vmcnt(0)")
    pollm(*M1, "Lpq1")
    stamp(3)
    dma(89, 6144, 11, SWS, 88, "Q", sc="sc1")
    dma(None, 0, 11, SWS, 88, "Q", off=1024, sc="sc1")
    kvdma(15, 14, "KV1")
    chk(*M2, "LsA")
    a(f"{PL}\ns_waitcnt vmcnt(0)\ns_barrier")
    stamp(4)
    pollm(*M2, "Lpq2")
    q0 = list(vm.q)
    kvdma(13, 12, "KV2")
    a("s_branch LsC\nLsA:")
    vm.q = q0
    kvdma(13, 12, "KV2")
    vm.wait("KV1")
    a("s_barrier")
    stamp(4)
    a("LsC:")
    chk(*M3, "LsD")
    a(f"{PL}\ns_waitcnt vmcnt(0)\ns_barrier")
    pollm(*M3, "Lpq3")
    q0 = list(vm.q)
    kvdma(11, 7, "KV2b")
    a("s_branch LsF\nLsD:")
    vm.q = q0
    kvdma(11, 7, "KV2b")
    vm.wait("KV2")
    a("s_barrier\nLsF:")
    kvdma(6, 0, "KV3")
    def w2dma(n):
        sl = (n & 3) * 2048
        if n < 22:
            a(f"s_add_u32 s14, s90, {n*65536}")
            dma(89, sl, pW0, SW2, 14, f"W{n}"); dma(89, sl + 1024, pW1, SW2, 14, f"W{n}")
        else:
            a(f"s_add_u32 s14, s91, {(n-22)*16384}")
            dma(89, sl, pW0, SWO, 14, f"W{n}"); dma(89, sl + 1024, pW1, SWO, 14, f"W{n}")
    for n in range(3): w2dma(n)
    if WARM & 2:
        a(f"s_lshl_b32 s14, s{sQB}, 16\ns_add_u32 s14, s14, s90\nbuffer_load_dword v1, v{pWA}, {srd(SW2)}, s14 offen\ns_add_u32 s14, s14, {16*65536}\nbuffer_load_dword v2, v{pWB}, {srd(SW2)}, s14 offen")
        a(f"s_lshl_b32 s14, s{sQB}, 14\ns_add_u32 s14, s14, s91\nbuffer_load_dword v3, v{pWB}, {srd(SWO)}, s14 offen")
        vm.add("WM", 3)
    vm.wait("KV3")
    a("s_barrier")
    stamp(5)
    if FPRIO: a(f"s_setprio {FPRIO}")
    poll(pFH, 12, "Lph"); vm.q = []
    stamp(6)
    a(f"s_cmp_lg_u32 s2, 0\ns_cbranch_scc1 Lnall")
    poll(pALL, 12, "Lpa")
    a("Lnall:")
    a(f"buffer_load_dword v14, v{pG0}, {srd(SWS)}, 0 offen sc1\nbuffer_load_dword v15, v{pG1}, {srd(SWS)}, 0 offen sc1")
    a(f"buffer_load_ushort v{BS}, v{pB2}, {srd(SB2)}, 0 offen\nbuffer_load_ushort v{BS+4}, v{pB2}, {srd(SB2)}, 0 offen offset:64")
    vm.add("G", 4)
    NH = 8
    assert 0 < HD < NH
    def hload(n):
        b = HB + 8 * (n % NH)
        a(f"s_add_u32 s14, s93, {n*4096}\nbuffer_load_dwordx4 {vr(b,4)}, v{pH0}, {srd(SWS)}, s14 offen {SCH}\nbuffer_load_dwordx4 {vr(b+4,4)}, v{pH1}, {srd(SWS)}, s14 offen {SCH}")
        vm.add(f"H{n}", 2)
    for n in range(HD or NH): hload(n)
    hb = {HB1: range(NH, NH + HB1), HB2: range(NH + HB1, 22)}
    if HD: hb = {n: [n + HD] for n in range(22 - HD)}
    if EXP & 2: a("s_branch Lskip")
    def trreads(n, dst):
        sl = (n & 3) * 2048
        for ct in range(2):
            for u in range(2):
                a(f"ds_read_b64_tr_b16 {vr(dst+4*ct+2*u,2)}, v{pTR} offset:{sl+ct*1024+u*512}")
    def mf4(wb, h0, h1, first):
        for ct in range(2):
            for rt in range(2):
                d = vr(FA + 16 * (2 * rt + ct), 16)
                a(f"{MF} {d}, {vr(wb+4*ct,4)}, {vr(h1 if rt else h0,4)}, {'0' if first else d}")
    for n in range(30):
        if n + 3 < 30: w2dma(n + 3)
        for m in hb.get(n, []): hload(m)
        vm.wait(f"H{n}"); vm.wait(f"W{n}")
        if n < 22:
            wb = W2F + 8 * (n & 1)
            if n == 21: a(f"s_cmp_ge_u32 s{sI}, 2\ns_cbranch_scc1 Lb2")
            trreads(n, wb)
            a("s_waitcnt lgkmcnt(0)")
            if not (EXP & 1): mf4(wb, HB + 8 * (n % NH), HB + 8 * (n % NH) + 4, n == 0)
            if n == 21:
                a(f"s_branch Lb2x\nLb2:\ns_cmp_eq_u32 s{sI}, 3\ns_cbranch_scc1 Lb2x")
                mf4(BS, BS + 8, BS + 8, False)
                a("Lb2x:")
        else:
            trreads(n, WOF + 8 * (n - 22))
            a("s_waitcnt lgkmcnt(0)")
        if EXP & 8 and n in (10, 21, 29): stamp({10: 3, 21: 4, 29: 6}[n])
    if VPRIO: a(f"s_setprio {VPRIO}")
    if not BAR1: a(f"buffer_load_dword v12, v{pFO}, {srd(SWS)}, 0 offen sc1")
    a("Lskip:")
    stamp(7)
    sNL, sNM, sE, sT = 80, 81, 82, 83
    if FPRIO or VPRIO: a("s_setprio 0")
    if BAR1:
        a("s_barrier")
        stamp(8)
        a(f"buffer_load_dword v12, v{pFO}, {srd(SWS)}, 0 offen sc1")
    a("v_sub_f32 v14, 1.0, v14\nv_sub_f32 v15, 1.0, v15")
    for k in range(32): a(f"v_pk_mul_f32 {vr(FA+2*k,2)}, {vr(FA+2*k,2)}, v[14:15] op_sel:[0,{k >> 4}] op_sel_hi:[1,{k >> 4}]")
    a(f"s_mov_b32 s{sNL}, 0\ns_mov_b32 s{sNM}, 0\ns_mov_b32 s15, {SPIN}")
    a(f"Lw:\ns_waitcnt vmcnt(0)\nv_cmp_ne_u32 vcc, s{sN}, v12\ns_sub_u32 s15, s15, 1\ns_cmp_eq_u32 s15, 0\ns_cbranch_scc1 Lwx\ns_mov_b32 s{sT}, s{sNL}\ns_nop 1")
    a(f"s_and_b32 s14, vcc_lo, 0xff\ns_bitset1_b32 s14, 8\ns_ff1_i32_b32 s{sE}, s14\ns_max_u32 s{sE}, s{sE}, s{sNL}\ns_cmp_eq_u32 s{sE}, s{sNM}\ns_cbranch_scc0 Lw2")
    a(f"buffer_load_dword v12, v{pFO}, {srd(SWS)}, 0 offen sc1\ns_branch Lw\nLw2:")
    if PROF == 1: a(f"s_cmp_lg_u32 s{sNL}, 0\ns_cbranch_scc1 Lpf1\ns_memrealtime s[34:35]\ns_sub_u32 s16, {SPIN}, s15\nLpf1:")
    a(f"s_sub_u32 s14, s{sE}, s{sNL}\ns_bfm_b32 s84, s14, s{sNL}")
    for hh in range(8):
        b = OF + 8 * hh
        a(f"s_bitcmp1_b32 s84, {hh}\ns_cbranch_scc0 Lwi{hh}\ns_add_u32 s14, s94, {hh*2048}")
        a(f"buffer_load_dwordx4 {vr(b,4)}, v{pO0}, {srd(SWS)}, s14 offen sc1\nbuffer_load_dwordx4 {vr(b+4,4)}, v{pO1}, {srd(SWS)}, s14 offen sc1\nLwi{hh}:")
    if PROF == 1: a(f"s_memrealtime s[20:21]")
    a(f"s_mov_b32 s{sNL}, s{sE}\ns_cmp_eq_u32 s{sE}, 8\ns_cselect_b32 s{sT}, 8, s{sT}\ns_cbranch_scc1 Lw4\nbuffer_load_dword v12, v{pFO}, {srd(SWS)}, 0 offen sc1\nLw4:")
    a(f"s_sub_u32 s14, s{sT}, s{sNM}\ns_bfm_b32 s84, s14, s{sNM}\ns_mov_b32 s{sNM}, s{sT}")
    for hh in range(8):
        b = OF + 8 * hh
        a(f"s_bitcmp1_b32 s84, {hh}\ns_cbranch_scc0 Lwv{hh}\ns_waitcnt vmcnt({2*(7-hh)})")
        mf4(WOF + 8 * hh, b, b + 4, False)
        a(f"Lwv{hh}:")
    a(f"s_cmp_lg_u32 s{sNM}, 8\ns_cbranch_scc1 Lw\nLwx:")
    if PROF == 1: a(f"s_sub_u32 s18, {SPIN}, s15\ns_memrealtime s[26:27]")
    if not BAR1:
        a("s_barrier")
        stamp(8)
    stamp(10)
    a("s_nop 7")
    for j in (2, 1, 3):
        for q in range(4):
            a(f"ds_write_b128 v{pR+j}, {vr(FA+16*j+4*q,4)} offset:{q*1024}")
    a("s_waitcnt lgkmcnt(0)\ns_barrier")
    for j in range(1, 4):
        for q in range(4):
            a(f"ds_read_b128 {vr(FA+16*j+4*q,4)}, v{pR} offset:{(j-1)*4096+q*1024}")
    a(f"s_cmp_lg_u32 s2, 0\ns_cbranch_scc1 Lnoep\ns_cmp_lg_u32 s{sI}, 0\ns_cbranch_scc1 Lnoep\ns_mov_b32 s14, {EPOCH}")
    flag_store(14, 12)
    a("Lnoep:")
    for j in range(1, 4):
        a(f"s_waitcnt lgkmcnt({12-4*j})")
        for k in range(8): a(f"v_pk_add_f32 {vr(FA+2*k,2)}, {vr(FA+2*k,2)}, {vr(FA+16*j+2*k,2)}")
    for k in range(8): a(f"v_cvt_pk_bf16_f32 v{FA+k}, v{FA+2*k}, v{FA+2*k+1}")
    a("s_nop 1")
    for k in (0, 1, 4, 5): a(f"v_permlane32_swap_b32 v{FA+k}, v{FA+k+2}")
    a("s_nop 0")
    a(f"buffer_store_dwordx4 {vr(FA,4)}, v{pOUT}, {srd(SOUT)}, 0 offen {['', 'sc1', 'nt', 'sc0 sc1'][OSC]}\nbuffer_store_dwordx4 {vr(FA+4,4)}, v{pOUT}, {srd(SOUT)}, 0 offen offset:32 {['', 'sc1', 'nt', 'sc0 sc1'][OSC]}")
    stamp(11)
    if EXP & 16: a("s_mov_b32 s16, s100\ns_mov_b32 s18, s96")
    prof_out(1)
    a("Lend:\ns_endpgm")
    a(";@@END")
    a(f""".section .rodata,"a"
.p2align 6
.amdhsa_kernel {KN}
.amdhsa_next_free_vgpr 256
.amdhsa_next_free_sgpr 102
.amdhsa_accum_offset 256
.amdhsa_group_segment_fixed_size 0
.amdhsa_kernarg_size 96
.amdhsa_user_sgpr_count 2
.amdhsa_user_sgpr_kernarg_segment_ptr 1
.amdhsa_system_sgpr_workgroup_id_x 1
.end_amdhsa_kernel""")
    L = a.L
    ic, il, ie = L.index(";@@COMP"), L.index(";@@LOAD"), L.index(";@@END")
    a.L = L[:ic] + L[il+1:ie] + L[ic+1:il] + L[ie+1:]
    open(path, "w").write(a.text())


if __name__ == "__main__":
    kw = {}
    for x in sys.argv[2:]:
        k, v = x.split("=")
        kw[k] = int(v)
    gen(sys.argv[1], **kw)
```

```python
import sys, os
sys.path.insert(0, os.path.dirname(os.path.abspath(__file__)))
from asmlib import Asm
KN = "gated_mix__softmax_full_mha__dense_activation_squared_relu__prompt_kernel"

WQ, WKV, WH, WO_, WG = 0, 0x200000, 0x600000, 0xC00000, 0xE00000
FQ, FH, FO, EPOCH, WPROF = 0xE10000, 0xE20000, 0xE30000, 0xE50000, 0xF00000
SLOT = 28672
RING = 131072
GLDS = 155648
SPIN = 400000
sW, sX, sJ, sR, sC, sROT, sHEAD, sQB, sSUB, sCB, sN = 3, 4, 5, 6, 7, 8, 9, 10, 11, 12, 13
SX, SWQ, SW1, SWS, SWO, SW2, SOUT, SB1, SB2, SG = 40, 44, 48, 52, 56, 60, 64, 68, 72, 76
sMASK, sCNT, sI = 96, 98, 99


def srd(b): return f"s[{b}:{b+3}]"
def vr(b, n): return f"v[{b}:{b+n-1}]" if n > 1 else f"v{b}"
MF = "v_mfma_f32_32x32x16_bf16"
SM = "v_smfmac_f32_32x32x32_bf16"


class VM:
    def __init__(s, a): s.a = a; s.q = []
    def add(s, tag, n=1): s.q += [tag] * n
    def wait(s, tag):
        idx = [i for i, t in enumerate(s.q) if t == tag]
        if not idx: return
        n = len(s.q) - 1 - idx[-1]
        assert n < 64
        s.a(f"s_waitcnt vmcnt({n})")
        s.q = s.q[idx[-1] + 1:]
    def all(s): s.a("s_waitcnt vmcnt(0)"); s.q = []


class LG:
    def __init__(s, a): s.a = a; s.q = []
    def add(s, tag): s.q.append(tag)
    def wait(s, *tags):
        idx = [i for i, t in enumerate(s.q) if t in tags]
        if not idx: return
        n = min(len(s.q) - 1 - idx[-1], 15)
        s.a(f"s_waitcnt lgkmcnt({n})")
        s.q = s.q[len(s.q) - n:] if n else []
    def all(s): s.a("s_waitcnt lgkmcnt(0)"); s.q = []


def gen(path, PROF=0, FQPOS=4, PRIO=0, FORCE_SLOW=0, SPIN=SPIN, LOOK=3, DBG=0, HDEF=1, NSC=0, BAR1=0, FPRIO=0, HB1=6, HB2=12, EXP=0, HD=5, UNR=1, STG=1, WARM=0, HT0=4, HTF=12, B1=3, B2=11, GL=1, FOS=0, VPRIO=0, AG=0, OSC=0, EARLY=1, SPR=0, CHN=0, GP=33333, VP=0, DEF=0, FQN=0, LATE=0, BSH=0):
    SCK = '' if NSC & 1 else 'sc1'
    SCH = '' if NSC & 2 else 'sc1'
    SCO = '' if NSC & 4 else 'sc1'
    a = Asm()
    lab = [0]
    def stamp(i):
        if PROF == 1: a(f"s_memrealtime s[{16+2*i}:{17+2*i}]")
    def cstamp(i):
        if PROF == 1: a(f"s_memtime s[{16+2*i}:{17+2*i}]")
    def st3(i):
        if PROF == 3: a(f"s_memtime s[{16+2*i}:{17+2*i}]")
    def dbg_srd(b):
        if DBG: a(f"s_mov_b32 s{b}, s36\ns_mov_b32 s{b+1}, s37\ns_mov_b32 s{b+2}, 256\ns_mov_b32 s{b+3}, 0x20000")
    def dbg_out(b, idxs, o, last):
        lab[0] += 1
        a(f"s_waitcnt lgkmcnt(0)\ns_mov_b64 exec, 1\nv_mov_b32 v1, s{16+2*last}\nbuffer_atomic_umax v1, off, {srd(b)}, 0 offset:56\ns_not_b32 s14, s16\nv_mov_b32 v2, s14\nbuffer_atomic_umax v2, off, {srd(b)}, 0 offset:60")
        a(f"s_cmp_lg_u32 s2, {DBG}\ns_cbranch_scc1 Ldb{lab[0]}\ns_cmp_lg_u32 s{sI}, 0\ns_cbranch_scc1 Ldb{lab[0]}")
        for n, k in enumerate(idxs): a(f"v_mov_b32 v{3+n}, s{16+2*k}\nbuffer_store_dword v{3+n}, off, {srd(b)}, 0 offset:{4*(o+n)}")
        a(f"Ldb{lab[0]}:\ns_mov_b64 exec, -1")
    def prof_out(who=0):
        if DBG:
            if who == 0: dbg_out(76, [0, 1, 2, 3, 4, 5, 6], 0, 6)
            else: dbg_out(68, [2, 3, 6, 7, 9, 10, 11], 7, 11)
            return
        if not PROF: return
        a("s_waitcnt lgkmcnt(0)")
        a(f"s_lshl_b32 s14, s2, 3\ns_add_u32 s14, s14, s{sW}\ns_lshl_b32 s14, s14, 6\ns_add_u32 s14, s14, {WPROF}")
        a("s_mov_b64 exec, 1")
        for i in range(12):
            a(f"v_mov_b32 v1, s{16+2*i}\nbuffer_store_dword v1, off, {srd(SWS)}, s14 offset:{4*i}")
        a("s_mov_b64 exec, -1")
    def poll(vaddr, vtmp, name):
        va = vaddr if isinstance(vaddr, list) else [vaddr]
        a(f"s_mov_b32 s15, {SPIN}")
        a(f"{name}:")
        for k, v in enumerate(va): a(f"buffer_load_dword v{vtmp+k}, v{v}, {srd(SWS)}, 0 offen sc1")
        a("s_sub_u32 s15, s15, 1\ns_cmp_eq_u32 s15, 0")
        a(f"s_cbranch_scc1 {name}_x")
        a("s_waitcnt vmcnt(0)")
        for k in range(1, len(va)): a(f"v_xor_b32 v{vtmp+k}, s{sN}, v{vtmp+k}")
        if len(va) > 1:
            a(f"v_xor_b32 v{vtmp}, s{sN}, v{vtmp}\nv_or3_b32 v{vtmp}, v{vtmp}, v{vtmp+1}, v{vtmp+len(va)-1}\nv_cmp_ne_u32 vcc, 0, v{vtmp}")
        else: a(f"v_cmp_ne_u32 vcc, s{sN}, v{vtmp}")
        a(f"s_nop 4\ns_cmp_lg_u64 vcc, 0\ns_cbranch_scc1 {name}")
        a(f"{name}_x:\ns_waitcnt vmcnt(0)")
    def flag_store(soff, vtmp):
        a(f"v_mov_b32 v{vtmp}, s{sN}\ns_mov_b64 exec, 1\nbuffer_store_dword v{vtmp}, off, {srd(SWS)}, s{soff} sc1\ns_mov_b64 exec, -1")

    a("; @launch grid=(256,1,1) block=(512,1,1) lds=163840")
    a('.amdgcn_target "amdgcn-amd-amdhsa--gfx950"')
    a(f".text\n.globl {KN}\n.p2align 8\n.type {KN},@function\n{KN}:")
    a("s_cmp_ge_u32 s2, 256\ns_cbranch_scc1 Lend")
    if EXP & 16: a("s_memrealtime s[100:101]")
    a("s_load_dwordx16 s[16:31], s[0:1], 0\ns_load_dwordx8 s[32:39], s[0:1], 64")
    a(f"v_lshrrev_b32 v1, 6, v0\nv_and_b32 v0, 63, v0\ns_and_b32 s{sX}, s2, 7\nv_readfirstlane_b32 s{sW}, v1\ns_lshr_b32 s{sJ}, s2, 3")
    a(f"s_and_b32 s14, s{sX}, 1\ns_lshl_b32 s14, s14, 3\ns_and_b32 s15, s{sJ}, 7\ns_add_u32 s{sR}, s14, s15")
    a(f"s_lshr_b32 s14, s{sX}, 1\ns_lshl_b32 s14, s14, 2\ns_lshr_b32 s80, s{sJ}, 3\ns_add_u32 s{sC}, s14, s80")
    a(f"s_lshl_b32 s80, s80, 1\ns_add_u32 s{sROT}, s15, s80")
    a(f"s_and_b32 s{sI}, s{sW}, 3")
    sizes = {SX: (16, 2097152), SWQ: (18, 1572864), SWO: (20, 524288), SW1: (24, 1409024), SB1: (26, 2752),
             SW2: (28, 1409024), SB2: (30, 1024), SG: (32, 1024), SOUT: (34, 2097152), SWS: (38, 268435456)}
    def srd_size(lst):
        for b in lst: a(f"s_mov_b32 s{b+2}, {sizes[b][1]}\ns_mov_b32 s{b+3}, 0x20000")
    def common2():
        a(f"s_and_b32 s14, s{sJ}, 3\ns_lshl_b32 s15, s{sX}, 2\ns_add_u32 s{sHEAD}, s15, s14\ns_lshr_b32 s{sQB}, s{sJ}, 2")
        a(f"s_and_b32 s{sSUB}, s{sX}, 3\ns_and_b32 s15, s{sX}, 4\ns_add_u32 s{sCB}, s15, s14")
    a(f"s_cmp_lt_u32 s{sW}, 4\ns_cbranch_scc1 Lcomp")
    a(";@@COMP")
    a("Lcomp:")

    def mk_srd(lst):
        for b in lst:
            p = sizes[b][0]
            a(f"s_mov_b32 s{b}, s{p}\ns_mov_b32 s{b+1}, s{p+1}")
    def nonce(v):
        a(f"v_readfirstlane_b32 s14, v{v}\ns_mul_i32 s{sN}, s14, 0x9E3779B1\ns_add_u32 s{sN}, s{sN}, 0x7F4A7C15\ns_or_b32 s{sN}, s{sN}, 0x80000000")
        a(f"s_xor_b32 s15, s{sN}, 1\ns_cmp_eq_u32 s{sN}, s14\ns_cselect_b32 s{sN}, s15, s{sN}")

    XF, ACC, WF, BI = 16, 144, 192, 240
    vL31, vH, vXA, vWL, vWA, vT, vQS, vST = 1, 2, 3, 7, 8, 9, 12, 13
    if WARM & 1:
        a(f"s_getpc_b64 s[92:93]\nLpc:\ns_sub_u32 s92, s92, Lpc-{KN}\ns_subb_u32 s93, s93, 0\ns_and_b32 s14, s{sJ}, 3\ns_lshl_b32 s14, s14, 2\ns_add_u32 s14, s14, s{sI}\ns_lshl_b32 s14, s14, 12\nv_lshl_add_u32 v9, v0, 6, s14\nv_min_u32 v9, Llast_-{KN}, v9")
        a("global_load_dword v16, v9, s[92:93]")
    common2(); srd_size([SWS, SB1, SX, SWQ])
    a(f"s_mov_b32 s{sMASK}, 0xffff\ns_mov_b32 s{sMASK+1}, 0xffff")
    a(f"v_and_b32 v{vL31}, 31, v0\nv_lshrrev_b32 v{vH}, 5, v0")
    a(f"v_bfe_u32 v9, v0, 1, 3\nv_xor_b32 v9, v9, v{vH}\nv_lshlrev_b32 v9, 4, v9\nv_lshl_add_u32 v9, v{vL31}, 7, v9")
    a(f"s_lshl_b32 s14, s{sI}, 12\nv_add_u32 v{vXA}, s14, v9")
    for k in range(1, 4): a(f"v_xor_b32 v{vXA+k}, {32*k}, v{vXA}")
    a(f"v_bfe_u32 v9, v0, 2, 2\nv_lshl_add_u32 v9, v{vH}, 3, v9\nv_mul_u32_u24 v9, 192, v9\nv_bfe_u32 v10, v0, 4, 1\nv_lshl_add_u32 v9, v10, 5, v9")
    a(f"v_and_b32 v10, 3, v0\nv_lshl_add_u32 v{vWL}, v10, 3, v9")
    a(f"v_lshlrev_b32 v{vQS}, 4, v0")
    a(f"v_and_b32 v9, 0x33, v0\nv_and_b32 v10, 4, v0\nv_lshl_add_u32 v9, v10, 1, v9\nv_bfe_u32 v10, v0, 3, 1\nv_lshl_add_u32 v9, v10, 2, v9\nv_lshlrev_b32 v9, 4, v9")
    a(f"v_and_b32 v11, 15, v0\nv_lshl_add_u32 v11, v{vH}, 4, v11\nv_lshlrev_b32 v11, 4, v11\nv_bfe_u32 v10, v0, 4, 1\nv_lshl_add_u32 v11, v10, 17, v11\nv_add_u32 v10, 1024, v11")
    a(f"s_lshl_b32 s14, s{sR}, 2\ns_add_u32 s80, s14, s{sI}")
    for i in range(3):
        o1, o2, sc = [81, 83, 92][i], [82, 84, 93][i], [90, 94, 100][i]
        a(f"s_mul_i32 s14, s{sC}, 3\ns_add_u32 s14, s14, {i}\ns_lshr_b32 s15, s14, 4\ns_and_b32 s14, s14, 15\ns_lshl_b32 s14, s14, 7\ns_add_u32 s14, s14, s80")
        a(f"s_lshl_b32 s{o1}, s14, 11\ns_add_u32 s{o1}, s{o1}, {WKV}\ns_lshl_b32 s14, s14, 10")
        a(f"s_movk_i32 s{o2}, 512\ns_cmp_eq_u32 s15, 1\ns_cselect_b32 s{o2}, 131072, s{o2}\ns_cselect_b64 vcc, -1, 0\nv_cndmask_b32 v{vST+i}, v10, v9, vcc")
        a(f"s_cmp_eq_u32 s15, 0\ns_cselect_b32 s{o2}, 65536, s{o2}\ns_cselect_b32 s{o1}, s14, s{o1}\ns_cselect_b32 s{sc}, 0x3eb8aa3b, 1.0\ns_cselect_b64 vcc, -1, 0\nv_cndmask_b32 v{vST+i}, v{vST+i}, v{vQS}, vcc")
        a(f"s_add_u32 s{o2}, s{o2}, s{o1}\ns_mov_b32 s{sc+1}, s{sc}")
    for k in range(16): a(f"v_mov_b32 v{BI+k}, 0")
    a(f"v_mov_b32 v9, 0x3f80\nv_cmp_gt_u32 vcc, 32, v0\ns_mul_i32 s14, s{sC}, 192\nv_lshl_add_u32 v10, v{vL31}, 1, s14\nv_cndmask_b32 v{BI+12}, 0, v9, vcc")
    a("s_waitcnt lgkmcnt(0)")
    mk_srd([SWS, SB1]); dbg_srd(76)
    if UNR:
        for b, lim in ((SX, 15), (SWQ, 14)):
            a(f"s_mov_b32 s{b}, s38\ns_mov_b32 s{b+1}, s39\ns_cmp_lt_u32 s{sC}, {lim}\ns_cselect_b32 s{b+2}, s{SWS+2}, 0")
    a(f"s_mov_b32 s15, {EPOCH}\nbuffer_load_dword v11, off, {srd(SWS)}, s15 sc1")
    for i in range(3): a(f"buffer_load_ushort v{BI+4*i}, v10, {srd(SB1)}, 0 offen offset:{64*i}")
    a(f"s_mul_i32 s85, s80, 86\ns_mul_i32 s14, s{sC}, 6\ns_add_u32 s85, s85, s14\ns_lshl_b32 s85, s85, 10\ns_add_u32 s85, s85, {WH}\ns_add_u32 s86, s85, 4096")
    a(f"s_lshl_b32 s14, s{sC}, 2\ns_add_u32 s14, s14, s{sI}\ns_lshl_b32 s14, s14, 5\ns_add_u32 s14, s14, s{sR}\ns_lshl_b32 s14, s14, 2\ns_add_u32 s87, s14, {FQ}")
    a(f"s_lshl_b32 s14, s80, 5\ns_add_u32 s14, s14, s{sC}\ns_lshl_b32 s14, s14, 2\ns_add_u32 s88, s14, {FH}")
    a("s_waitcnt vmcnt(0)")
    nonce(11)
    stamp(0)

    lg = LG(a)
    slots = [1, 2, 3, 4, 0, 1, 2, 3]
    segs = [0, 57344, 57344, 114688, 0, 0, 57344, 57344]
    bbase = [143360, 114688, 126976, 0, 12288, 28672, 40960, 57344]
    halves = [("A", s, hf) for s in range(8) for hf in range(2)] + [("B", t, hf) for t in range(8) for hf in range(2)]
    seg = [0]
    PB = {("A", 1): 0, ("A", 3): 2, ("A", 4): 4, ("A", 7): 6, ("B", 2): 8, ("B", 6): 10}
    def prep(h):
        k, s, hf = halves[h]
        if hf: return
        if k == "A":
            if segs[s] != seg[0]:
                for q in range(4): a(f"v_add_u32 v{vXA+q}, {(segs[s]-seg[0]) & 0xffffffff:#x}, v{vXA+q}")
                seg[0] = segs[s]
            a(f"v_add_u32 v{vWA}, {slots[s]*SLOT+16384}, v{vWL}")
        else:
            a(f"v_add_u32 v{vWA}, {bbase[s]}, v{vWL}")
        if k == "A" or s in (0, 2, 4 + BSH):
            if PROF == 2 and (k, s) in PB: a(f"s_memtime s[{16+2*PB[(k,s)]}:{17+2*PB[(k,s)]}]")
            a("s_barrier")
            if PROF == 2 and (k, s) in PB: a(f"s_memtime s[{18+2*PB[(k,s)]}:{19+2*PB[(k,s)]}]")
    def reads(h):
        k, s, hf = halves[h]
        L = []
        for ksl in range(2):
            ks = 2 * hf + ksl
            if k == "A": L.append((f"ds_read_b128 {vr(XF+16*s+4*ks,4)}, v{vXA+ks} offset:{slots[s]*SLOT-segs[s]}", (h, ksl, "x")))
            for t in range(3):
                d = WF + 24 * hf + 12 * ksl + 4 * t
                for u in range(2):
                    L.append((f"ds_read_b64_tr_b16 {vr(d+2*u,2)}, v{vWA} offset:{t*64+ks*3072+u*768}", (h, ksl, t)))
        return L
    def emit_reads(L, n):
        for _ in range(min(n, len(L))):
            ins, tag = L.pop(0); a(ins); lg.add(tag)
    def fqchk(last):
        lab[0] += 1
        if last: a(f"s_cmp_lg_u32 s81, 0\ns_cbranch_scc1 Lfq{lab[0]}")
        else: a(f"s_getreg_b32 s14, hwreg(HW_REG_IB_STS, 0, 4)\ns_or_b32 s14, s14, s81\ns_cbranch_scc1 Lfq{lab[0]}")
        a("s_waitcnt vmcnt(0)"); flag_store(87, 9); stamp(11)
        a(f"s_mov_b32 s81, 1\nLfq{lab[0]}:")
    def half(h, pat='TTT'):
        k, s, hf = halves[h]
        L = []
        if h + 1 < len(halves) and not (DEF and h == 15):
            prep(h + 1); L = reads(h + 1)
        for j in range(6):
            ksl, t = j // 3, j % 3
            ks = 2 * hf + ksl
            lg.wait((h, ksl, "x"), (h, ksl, t))
            x = vr(XF + 16 * s + 4 * ks, 4); w = vr(WF + 24 * hf + 12 * ksl + 4 * t, 4); d = vr(ACC + 16 * t, 16)
            c = "0" if (h == 0 and ksl == 0) else d
            a(f"{MF} {d}, {x}, {w}, {c}" if (k == "A" and pat[t] == "N") else f"{MF} {d}, {w}, {x}, {c}")
            emit_reads(L, 3)
            if FQN and 16 <= h < 16 + FQN and j in (1, 4): fqchk(False)
        assert not L
    prep(0)
    stamp(1)
    emit_reads(reads(0), 99)
    a(f"s_cmp_eq_u32 s{sC}, 10\ns_cbranch_scc1 LA_TTN\ns_cmp_gt_u32 s{sC}, 10\ns_cbranch_scc1 LA_NNN")
    q0, seg0 = list(lg.q), seg[0]
    for pat in ("TTT", "TTN", "NNN"):
        lg.q = list(q0); seg[0] = seg0
        a(f"LA_{pat}:")
        for h in range(16): half(h, pat)
        stamp(2); st3(0)
        a("s_nop 7")
        if pat[0] == "N": a("s_nop 1")
        for i in range(3):
            b = ACC + 16 * i
            o1, o2, sc = [81, 83, 92][i], [82, 84, 93][i], [90, 94, 100][i]
            if pat[i] == "T":
                for k in range(8): a(f"v_pk_mul_f32 {vr(b+2*k,2)}, {vr(b+2*k,2)}, s[{sc}:{sc+1}]")
            for k in range(8): a(f"v_cvt_pk_bf16_f32 v{b+k}, v{b+2*k}, v{b+2*k+1}")
            a(f"buffer_store_dwordx4 {vr(b,4)}, v{vST+i}, {srd(SWS)}, s{o1} offen sc1\nbuffer_store_dwordx4 {vr(b+4,4)}, v{vST+i}, {srd(SWS)}, s{o2} offen sc1")
            st3(1 + i)
        if pat != "NNN": a("s_branch LB")
    a(f"s_cmp_eq_u32 s{sC}, 15\ns_cbranch_scc1 Lgate")
    a("LB:")
    if DEF: prep(16); emit_reads(reads(16), 99)
    for i in range(3): a(f"{MF} {vr(ACC+16*i,16)}, {vr(BI+4*i,4)}, {vr(BI+12,4)}, 0")
    for h in range(16, 32):
        if FQN and h == 16: a("s_mov_b32 s81, 0")
        if FQN and h == 16 + FQN: fqchk(True)
        if FQPOS == h - 16 and not FQN:
            st3(7); a("s_waitcnt vmcnt(0)"); st3(8); flag_store(87, 9); stamp(11)
        half(h)
        if h - 16 < 3: st3(4 + h - 16)
    stamp(3); st3(9)
    def hstore1(i, m, sr=SWS):
        o = (2 * i + m) * 1024
        return f"buffer_store_dwordx4 {vr(ACC+16*i+4*m,4)}, v{vQS}, {srd(sr)}, s{85 if o < 4096 else 86} offen offset:{o % 4096} sc1"
    def hstore(i):
        for m in range(2): a(hstore1(i, m))
    a("s_nop 7")
    for i in range(3):
        b = ACC + 16 * i
        if i == 1: a(f"s_cmp_eq_u32 s{sC}, 14\ns_cbranch_scc1 Latt")
        for k in range(16): a(f"v_max_f32 v{b+k}, 0, v{b+k}")
        for k in range(8): a(f"v_pk_mul_f32 {vr(b+2*k,2)}, {vr(b+2*k,2)}, {vr(b+2*k,2)}")
        for k in range(8): a(f"v_cvt_pk_bf16_f32 v{b+k}, v{b+2*k}, v{b+2*k+1}")
        if not HDEF: hstore(i)
    a("s_branch Latt")
    a("Lgate:\ns_waitcnt lgkmcnt(0)")
    if DEF: a("s_barrier")
    a(f"v_lshlrev_b32 v11, 4, v{vH}\nv_add_u32 v11, {GLDS}, v11")
    def gread(s_):
        a(f"s_add_u32 s14, s{sROT}, {s_}\ns_and_b32 s14, s14, 7\ns_lshl_b32 s14, s14, 7\nv_add_u32 v9, s14, v11")
        for ks in range(4): a(f"ds_read_b128 {vr(WF+16*(s_&3)+4*ks,4)}, v9 offset:{ks*32}")
    for s_ in range(3): gread(s_)
    a("s_waitcnt vmcnt(0)")
    flag_store(87, 10); stamp(11)
    if not GL: a("s_barrier\ns_barrier")
    for s_ in range(8):
        if s_ + 3 < 8: gread(s_ + 3)
        a(f"s_waitcnt lgkmcnt({4*min(3, 7-s_)})")
        for ks in range(4):
            d = vr(ACC + 16 * (ks & 1), 16)
            a(f"{MF} {d}, {vr(WF+16*(s_&3)+4*ks,4)}, {vr(XF+16*s_+4*ks,4)}, {'0' if s_ == 0 and ks < 2 else d}")
    a(f"s_nop 7\ns_nop 7\nv_add_f32 v{ACC}, v{ACC}, v{ACC+16}")
    a(f"v_mul_f32 v9, 0xbfb8aa3b, v{ACC}\nv_exp_f32 v9, v9\ns_lshl_b32 s14, s80, 7\ns_add_u32 s14, s14, {WG}\nv_add_f32 v9, 1.0, v9\nv_rcp_f32 v9, v9\nv_lshlrev_b32 v10, 2, v{vL31}\ns_nop 0")
    a(f"buffer_store_dword v9, v10, {srd(SWS)}, s14 offen sc1")
    if GL: a("s_waitcnt vmcnt(0)\ns_barrier\ns_barrier")

    X, Y, OA, OB, QA, QB, KB, VB, IDX, vK, vV, vGF, vGA, vFL, GA, GBv = 16, 32, 48, 64, 80, 84, 88, 96, 112, 113, 114, 115, 116, 117, 118, 119
    a("Latt:")
    st3(10)
    for k in range(32): a(f"v_mov_b32 v{OA+k}, 0")
    a(f"v_and_b32 v9, 27, v0\nv_cmp_eq_u32 vcc, 16, v9\nv_mov_b32 v10, 0x3f803f80\nv_mov_b32 v{IDX}, 0xdddddddd\nv_add_u32 v{vK}, {(32 if UNR else 58)*2048}, v{vQS}")
    a(f"v_cndmask_b32 v{VB}, 0, v10, vcc")
    for k in range(1, 16): a(f"v_mov_b32 v{VB+k}, v{VB}")
    a(f"v_and_b32 v9, 15, v0\nv_lshl_add_u32 v9, v{vH}, 4, v9\nv_lshlrev_b32 v9, 4, v9\nv_add_u32 v{vV}, {(32 if UNR else 58)*2048+1024}, v9")
    T0 = 31 if UNR else 5
    a(f"s_lshl_b32 s14, s{sI}, 13\ns_add_u32 s14, s14, {RING+6144}\nv_add_u32 v9, s14, v{vQS}")
    a(f"s_lshl_b32 s14, s{sQB}, 2\ns_add_u32 s80, s14, s{sI}\ns_lshl_b32 s14, s80, 8\ns_add_u32 s15, s14, {FH+60}\ns_add_u32 s14, s14, {WG}\nv_lshl_add_u32 v{vGA}, v{vL31}, 2, s14")
    a(f"v_and_b32 v10, 1, v0\nv_lshl_add_u32 v{vGF}, v10, 7, s15")
    a(f"s_lshl_b32 s14, s80, 2\ns_lshr_b32 s15, s{sHEAD}, 3\ns_add_u32 s14, s14, s15\ns_lshl_b32 s14, s14, 5\ns_and_b32 s15, s{sHEAD}, 7\ns_add_u32 s14, s14, s15\ns_lshl_b32 s14, s14, 2\ns_add_u32 s89, s14, {FO}")
    a(f"s_lshl_b32 s14, s80, 5\ns_add_u32 s14, s14, s{sHEAD}\ns_lshl_b32 s81, s14, 11\ns_add_u32 s81, s81, {WO_}")
    if FOS: a(f"s_lshl_b32 s14, s14, {FOS}\ns_add_u32 s89, s14, {FO}")
    a(f"s_mov_b32 s{sCNT}, 0")
    a("s_barrier")
    stamp(4); cstamp(7); st3(11)
    if PRIO: a(f"s_setprio {PRIO}")
    if not CHN:
        a(f"ds_read_b128 {vr(QA,4)}, v9\nds_read_b128 {vr(KB,4)}, v{vK} offset:{T0*2048}\nds_read_b128 {vr(QB,4)}, v9 offset:1024\nds_read_b128 {vr(KB+4,4)}, v{vK} offset:{(T0-1)*2048}")
        a(f"s_mov_b64 exec, s[{sMASK}:{sMASK+1}]\nds_read_b128 {vr(VB,4)}, v{vV} offset:{T0*2048}\nds_read_b128 {vr(VB+4,4)}, v{vV} offset:{T0*2048+512}\ns_mov_b64 exec, -1")
        a(f"s_waitcnt lgkmcnt(4)\n{MF} {vr(X,16)}, {vr(KB,4)}, {vr(QA,4)}, 0\ns_waitcnt lgkmcnt(2)\ns_nop 7\ns_nop 3")
    def ex(b, lo, hi):
        for k in range(lo, hi + 1): a(f"v_exp_f32 v{b+k}, v{b+k}")
    if not CHN: ex(X, 0, 1)
    def tile(u, koff, voff, last, ev={}):
        kc, kn = KB + 4 * (u & 1), KB + 4 * ((u + 1) & 1)
        vc, vn = VB + 8 * (u & 1), VB + 8 * ((u + 1) & 1)
        ex(X, 2, 4)
        a(f"{MF} {vr(Y,16)}, {vr(kc,4)}, {vr(QB,4)}, 0")
        kread = lambda: koff is not None and a(f"ds_read_b128 {vr(kc,4)}, v{vK} offset:{koff}")
        def vread(hs):
            if voff is None: return
            a(f"s_mov_b64 exec, s[{sMASK}:{sMASK+1}]")
            for h_ in hs: a(f"ds_read_b128 {vr(vn+4*h_,4)}, v{vV} offset:{voff+512*h_}")
            a("s_mov_b64 exec, -1")
        a("s_waitcnt lgkmcnt(0)")
        if not SPR & 6: kread()
        ex(X, 5, 9)
        a(f"{SM} {vr(OA,16)}, {vr(vc,4)}, {vr(X,8)}, v{IDX}")
        vread([0] if SPR & 1 else [0, 1])
        ex(X, 10, 15); ex(Y, 0, 1)
        a(f"{SM} {vr(OA,16)}, {vr(vc+4,4)}, {vr(X+8,8)}, v{IDX}")
        if SPR & 1: vread([1])
        elif SPR & 4: kread()
        if "p2" in ev: ev["p2"]()
        ex(Y, 2, 4)
        if not last: a(f"{MF} {vr(X,16)}, {vr(kn,4)}, {vr(QA,4)}, 0")
        if SPR & 2: kread()
        if "q2" in ev: ev["q2"]()
        ex(Y, 5, 9)
        a(f"{SM} {vr(OB,16)}, {vr(vc,4)}, {vr(Y,8)}, v{IDX}")
        if "p3" in ev: ev["p3"]()
        ex(Y, 10, 15)
        if not last: ex(X, 0, 1)
        else: a("s_nop 1")
        a(f"{SM} {vr(OB,16)}, {vr(vc+4,4)}, {vr(Y+8,8)}, v{IDX}")
        if "p4" in ev: ev["p4"]()
    if CHN:
        XS, YS, K1 = (X, 192), (Y, 208), 120
        gp = [int(ch) for ch in str(GP)]
        M_ = f"s_mov_b64 exec, s[{sMASK}:{sMASK+1}]"
        if VP in (10, 14):
            K0 = 124
            a(f"ds_read_b128 {vr(QA,4)}, v9\nds_read_b128 {vr(K0,4)}, v{vK} offset:{31*2048}\nds_read_b128 {vr(QB,4)}, v9 offset:1024\nds_read_b128 {vr(K1,4)}, v{vK} offset:{30*2048}")
            a(f"ds_read_b128 {vr(KB,4)}, v{vK} offset:{29*2048}\nds_read_b128 {vr(KB+4,4)}, v{vK} offset:{28*2048}\n{M_}")
            for q in range(4): a(f"ds_read_b128 {vr(VB+4*q,4)}, v{vV} offset:{(31-(q>>1))*2048+512*(q&1)}")
            a(f"s_mov_b64 exec, -1\ns_waitcnt lgkmcnt(8)\n{MF} {vr(X,16)}, {vr(K0,4)}, {vr(QA,4)}, 0\ns_waitcnt lgkmcnt(7)\n{MF} {vr(Y,16)}, {vr(K0,4)}, {vr(QB,4)}, 0\ns_waitcnt lgkmcnt(6)\ns_nop 7\ns_nop 1")
        else:
            a(f"ds_read_b128 {vr(QA,4)}, v9\nds_read_b128 {vr(KB+4,4)}, v{vK} offset:{31*2048}\nds_read_b128 {vr(QB,4)}, v9 offset:1024\nds_read_b128 {vr(K1,4)}, v{vK} offset:{30*2048}\nds_read_b128 {vr(KB,4)}, v{vK} offset:{29*2048}")
            a(f"{M_}\nds_read_b128 {vr(VB,4)}, v{vV} offset:{31*2048}\nds_read_b128 {vr(VB+4,4)}, v{vV} offset:{31*2048+512}\ns_mov_b64 exec, -1")
            a(f"s_waitcnt lgkmcnt(5)\n{MF} {vr(X,16)}, {vr(KB+4,4)}, {vr(QA,4)}, 0\ns_waitcnt lgkmcnt(4)\n{MF} {vr(Y,16)}, {vr(KB+4,4)}, {vr(QB,4)}, 0\ns_waitcnt lgkmcnt(3)\ns_nop 7\ns_nop 1")
        ex(X, 0, 2)
        a(f"{MF} {vr(XS[1],16)}, {vr(K1,4)}, {vr(QA,4)}, 0")
        ex(X, 3, 5)
        a(f"{MF} {vr(YS[1],16)}, {vr(K1,4)}, {vr(QB,4)}, 0\ns_waitcnt lgkmcnt(0)")
        ex(X, 6, 15); ex(Y, 0, 15)
        for n in range(63):
            xc, yc, xn, yn = XS[n & 1], YS[n & 1], XS[(n + 1) & 1], YS[(n + 1) & 1]
            vc, vn = VB + 8 * (n & 1), VB + 8 * ((n + 1) & 1)
            E_ = [xn + k for k in range(16)] + [yn + k for k in range(16)]
            def e(k):
                for _ in range(k): r = E_.pop(0); a(f"v_exp_f32 v{r}, v{r}")
            def upto(k): e(max(0, k - (32 - len(E_))))
            kt, vt = (59 - n, 61 - n) if VP == 10 else (60 - n, 61 - n) if VP == 14 else (60 - n, 62 - n)
            a(f"{SM} {vr(OA,16)}, {vr(vc,4)}, {vr(xc,8)}, v{IDX}")
            vrd = f"{M_}\nds_read_b128 {vr(vn,4)}, v{vV} offset:{(vt&31)*2048}\nds_read_b128 {vr(vn+4,4)}, v{vV} offset:{(vt&31)*2048+512}\ns_mov_b64 exec, -1"
            if VP in (0, 8, 9) or (n == 62 and VP not in (10, 14)): a(vrd)
            krd = f"ds_read_b128 {vr(KB+4*((n+1)&1),4)}, v{vK} offset:{(kt&31)*2048}"
            if VP == 11 and kt >= 0: a(krd)
            e(gp[0])
            if VP in (4, 5) and n < 62: a(M_)
            a(f"{SM} {vr(OB,16)}, {vr(vc,4)}, {vr(yc,8)}, v{IDX}")
            if VP == 12 and kt >= 0: a(krd)
            if VP in (2, 6, 7, 11, 12, 13) and n < 62: a(vrd)
            if VP in (4, 5) and n < 62: a(vrd[len(M_)+1:])
            e(gp[1])
            a(f"{SM} {vr(OA,16)}, {vr(vc+4,4)}, {vr(xc+8,8)}, v{IDX}")
            if VP == 3 and n < 62: a(vrd)
            if VP == 13 and kt >= 0: a(krd)
            if 4 <= VP < 10 and n < 62: a("s_waitcnt lgkmcnt(2)")
            e(gp[2])
            a(f"{SM} {vr(OB,16)}, {vr(vc+4,4)}, {vr(yc+8,8)}, v{IDX}")
            if n == 62:
                upto(10)
                a(f"s_waitcnt lgkmcnt(0)\n{SM} {vr(OA,16)}, {vr(vn,4)}, {vr(xn,8)}, v{IDX}")
                upto(18)
                a(f"{SM} {vr(OA,16)}, {vr(vn+4,4)}, {vr(xn+8,8)}, v{IDX}")
                e(8)
                a(f"{SM} {vr(OB,16)}, {vr(vn,4)}, {vr(yn,8)}, v{IDX}")
                e(6)
                a(f"s_nop 1\n{SM} {vr(OB,16)}, {vr(vn+4,4)}, {vr(yn+8,8)}, v{IDX}")
                break
            if VP == 14:
                a("s_waitcnt lgkmcnt(0)")
                e(gp[3])
                a(f"{MF} {vr(xc,16)}, {vr(KB,4)}, {vr(QA,4)}, 0")
                a(f"{M_}\nds_read_b128 {vr(vc,4)}, v{vV} offset:{(vt&31)*2048}\nds_read_b128 {vr(vc+4,4)}, v{vV} offset:{(vt&31)*2048+512}\ns_mov_b64 exec, -1")
                e(gp[4])
                a(f"{MF} {vr(yc,16)}, {vr(KB,4)}, {vr(QB,4)}, 0")
                if n in (B1, B2): a("s_barrier")
                if kt >= 0: a(f"ds_read_b128 {vr(KB,4)}, v{vK} offset:{(kt&31)*2048}")
            elif VP >= 10:
                kc = KB + 4 * (n & 1)
                e(gp[3])
                a(f"{MF} {vr(xc,16)}, {vr(kc,4)}, {vr(QA,4)}, 0")
                e(gp[4])
                a(f"{MF} {vr(yc,16)}, {vr(kc,4)}, {vr(QB,4)}, 0")
                if n in (B1, B2): a("s_barrier")
                a("s_waitcnt lgkmcnt(0)")
                if kt >= 0 and VP == 10: a(f"ds_read_b128 {vr(kc,4)}, v{vK} offset:{(kt&31)*2048}")
                if VP == 10: a(f"{M_}\nds_read_b128 {vr(vc,4)}, v{vV} offset:{(vt&31)*2048}\nds_read_b128 {vr(vc+4,4)}, v{vV} offset:{(vt&31)*2048+512}\ns_mov_b64 exec, -1")
            elif VP >= 4:
                kc, kn = KB + 4 * (n & 1), KB + 4 * ((n + 1) & 1)
                if n in (B1, B2): a("s_barrier")
                if kt >= 0: a(f"ds_read_b128 {vr(kn,4)}, v{vK} offset:{(kt&31)*2048}")
                e(gp[3])
                a(f"{MF} {vr(xc,16)}, {vr(kc,4)}, {vr(QA,4)}, 0")
                if VP in (4, 6, 8): a(f"s_waitcnt lgkmcnt({1 if kt >= 0 else 0})")
                e(gp[4])
                a(f"{MF} {vr(yc,16)}, {vr(kc,4)}, {vr(QB,4)}, 0")
                if VP in (5, 7, 9): a(f"s_waitcnt lgkmcnt({1 if kt >= 0 else 0})")
            else:
                a("s_waitcnt lgkmcnt(0)" if VP == 1 else "s_waitcnt lgkmcnt(2)")
                e(gp[3])
                a(f"{MF} {vr(xc,16)}, {vr(KB,4)}, {vr(QA,4)}, 0")
                e(gp[4])
                a(f"{MF} {vr(yc,16)}, {vr(KB,4)}, {vr(QB,4)}, 0")
                if n in (B1, B2): a("s_barrier")
                a(vrd if VP == 1 else "s_waitcnt lgkmcnt(0)")
                if kt >= 0: a(f"ds_read_b128 {vr(KB,4)}, v{vK} offset:{(kt&31)*2048}")
            upto(19)
            if n == 53: a(f"buffer_load_dword v{GA}, v{vGA}, {srd(SWS)}, 0 offen sc1")
            upto(22)
            if HT0 <= n < HT0 + 6: a(hstore1((n - HT0) >> 1, (n - HT0) & 1, SX if n - HT0 < 2 else SWQ))
            if n == HTF: a("s_waitcnt vmcnt(0)"); flag_store(88, 9)
            if n == 46: a(f"buffer_load_dword v{vFL}, v{vGF}, {srd(SWS)}, 0 offen sc1")
            if n == 52: a(f"s_waitcnt vmcnt(0)\nv_cmp_ne_u32 vcc, s{sN}, v{vFL}")
            if n == 53: a(f"buffer_load_dword v{GBv}, v{vGA}, {srd(SWS)}, 0 offen offset:128 sc1")
            upto(28)
            if kt == 32: a(f"v_add_u32 v{vK}, 0xffff0000, v{vK}")
            if vt == 32: a(f"v_add_u32 v{vV}, 0xffff0000, v{vV}")
            if n == 52: a(f"s_cmp_lg_u64 vcc, 0\ns_cbranch_scc1 Lgp\nLgpx:")
            upto(32)
            if VP == 1: a(f"s_waitcnt lgkmcnt({1 if kt >= 0 else 0})")
            assert not E_
        assert B1 <= 5 - (10 <= VP < 14) and B2 <= 13 - (10 <= VP < 14) and sum(gp) <= 22 and sum(gp[:3]) <= 15
    if UNR and not CHN:
        for n in range(64):
            ev = {}
            if n in (B1, B2): ev["p4"] = lambda: a("s_barrier")
            if HT0 <= n < HT0 + 6 and not (EXP & 4): ev["p3"] = lambda k=n-HT0: a(hstore1(k >> 1, k & 1, SX if k < 2 else SWQ))
            if n == HTF: ev["p3"] = lambda: (a("s_waitcnt vmcnt(0)"), flag_store(88, 9))
            if n == 29: ev["p4" if SPR else "q2"] = lambda: a(f"v_add_u32 v{vK}, 0xffff0000, v{vK}")
            if n == 30: ev["p4" if SPR else "q2"] = lambda: a(f"v_add_u32 v{vV}, 0xffff0000, v{vV}")
            if n == 46: ev["p3"] = lambda: a(f"buffer_load_dword v{vFL}, v{vGF}, {srd(SWS)}, 0 offen sc1")
            if n == 52: ev["p3"] = lambda: a(f"s_waitcnt vmcnt(0)\nv_cmp_ne_u32 vcc, s{sN}, v{vFL}")
            if n == 52: ev["p4"] = lambda: a(f"s_cmp_lg_u64 vcc, 0\ns_cbranch_scc1 Lgp\nLgpx:")
            if n == 53: ev["p2"] = lambda: a(f"buffer_load_dword v{GA}, v{vGA}, {srd(SWS)}, 0 offen sc1")
            if n == 53: ev["p3"] = lambda: a(f"buffer_load_dword v{GBv}, v{vGA}, {srd(SWS)}, 0 offen offset:128 sc1")
            kt, vt = 61 - n, 62 - n
            tile(n, (kt & 31) * 2048 if kt >= 0 else None, (vt & 31) * 2048 if vt >= 0 else None, n == 63, ev)
    UNR or a("Lloop:")
    if not UNR:
        for u in range(4): tile(u, (3 - u) * 2048, (4 - u) * 2048, False)
        a(f"s_add_u32 s{sCNT}, s{sCNT}, 1\nv_add_u32 v{vK}, 0xffffe000, v{vK}\nv_add_u32 v{vV}, 0xffffe000, v{vV}")
        a(f"s_bitcmp1_b32 {(1<<1)|(1<<3)|(1<<12)|(1<<13)|(1<<15)}, s{sCNT}\ns_cbranch_scc0 Lloop")
        a(f"s_cmp_eq_u32 s{sCNT}, 15\ns_cbranch_scc1 Llast\ns_cmp_eq_u32 s{sCNT}, 12\ns_cbranch_scc1 Lev2\ns_cmp_eq_u32 s{sCNT}, 13\ns_cbranch_scc1 Lev3\ns_cmp_eq_u32 s{sCNT}, 3\ns_cbranch_scc1 Lev1")
        if HDEF:
            a(f"s_barrier\ns_cmp_eq_u32 s{sC}, 15\ns_cbranch_scc1 Lloop")
            if EXP & 4: a("s_branch Lloop")
            hstore(0)
            a(f"s_cmp_eq_u32 s{sC}, 14\ns_cbranch_scc1 Lloop")
            hstore(1); hstore(2)
            a("s_branch Lloop\nLev1:\ns_waitcnt vmcnt(0)")
            flag_store(88, 9)
            a("s_barrier\ns_branch Lloop")
        else:
            a("s_waitcnt vmcnt(0)")
            flag_store(88, 9)
            a("Lev1:\ns_barrier\ns_branch Lloop")
        a(f"Lev2:\nbuffer_load_dword v{vFL}, v{vGF}, {srd(SWS)}, 0 offen sc1\ns_branch Lloop")
        a(f"Lev3:\ns_waitcnt vmcnt(0)\nv_cmp_ne_u32 vcc, s{sN}, v{vFL}\ns_nop 4\ns_cmp_eq_u64 vcc, 0\ns_cbranch_scc1 Lev3b")
        poll(vGF, vFL, "Lpg")
        a(f"Lev3b:\nbuffer_load_dword v{GA}, v{vGA}, {srd(SWS)}, 0 offen sc1\nbuffer_load_dword v{GBv}, v{vGA}, {srd(SWS)}, 0 offen offset:128 sc1\ns_branch Lloop")
        a(f"Llast:\nv_add_u32 v{vK}, 4096, v{vK}\nv_add_u32 v{vV}, 4096, v{vV}")
        for u in range(4): tile(u, (1 - u) * 2048 if u < 2 else None, (2 - u) * 2048 if u < 3 else None, u == 3)
    stamp(5); cstamp(8)
    def fin(chk):
        for n, O in enumerate((OA, OB)):
            if n == 1 and chk: a("s_nop 4")
            a(f"v_rcp_f32 v{9+n}, v{O+8}\ns_nop 0")
            a(f"v_mul_f32 v{9+n}, v{9+n}, v{GA+n}")
            for k in range(8): a(f"v_mul_f32 v{O+k}, v{9+n}, v{O+k}")
            for k in range(4): a(f"v_cvt_pk_bf16_f32 v{O+k}, v{O+2*k}, v{O+2*k+1}")
            a(f"buffer_store_dwordx4 {vr(O,4)}, v{vQS}, {srd(SWS)}, s81 offen offset:{1024*n} sc1")
    a("s_waitcnt vmcnt(0)")
    fin(True)
    a("s_mov_b32 s14, 0x7fff7fff\ns_mov_b32 s15, 0x30800000\ns_mov_b32 s92, 0x5f800000")
    for k in range(8): a(f"v_and_b32 v{X+k}, s14, v{(OA if k < 4 else OB)+(k&3)}")
    for st in (4, 2, 1):
        for k in range(st): a(f"v_pk_max_u16 v{X+k}, v{X+k}, v{X+k+st}")
    a(f"v_lshrrev_b32 v{X+1}, 16, v{X}\nv_and_b32 v{X}, 0xffff, v{X}\nv_max_u32 v{X}, v{X}, v{X+1}")
    a(f"v_min_f32 v9, v{OA+8}, v{OB+8}\nv_max_f32 v10, v{OA+8}, v{OB+8}\nv_cmp_u_f32 s[82:83], v{OA+8}, v{OB+8}")
    a(f"v_cmp_gt_u32 vcc, 0x7f80, v{X}\nv_cmp_lt_f32 s[84:85], s15, v9\nv_cmp_gt_f32 s[86:87], s92, v10\ns_nop 4")
    a("s_and_b64 vcc, vcc, s[84:85]\ns_and_b64 vcc, vcc, s[86:87]\ns_andn2_b64 vcc, vcc, s[82:83]\ns_cmp_lg_u64 vcc, -1\ns_cbranch_scc1 Lslow")
    if FORCE_SLOW: a("s_branch Lslow")
    a("Lfin:")
    if BAR1: a("s_barrier")
    a("s_waitcnt vmcnt(0)")
    flag_store(89, 9)
    stamp(6)
    prof_out()
    a("s_endpgm")
    if UNR:
        a("Lgp:")
        poll(vGF, vFL, "Lpg")
        a("s_branch Lgpx")
    NA, NB = 120, 136
    a("Lslow:")
    a(f"v_mov_b32 v{vK}, v{vQS}\nv_mov_b32 v9, 0xff800000\nv_mov_b32 v10, 0xff800000\ns_mov_b32 s{sCNT}, 0")
    a(f"Ls1:\nds_read_b128 {vr(KB,4)}, v{vK}\nv_add_u32 v{vK}, 2048, v{vK}\ns_add_u32 s{sCNT}, s{sCNT}, 1\ns_waitcnt lgkmcnt(0)")
    a(f"{MF} {vr(X,16)}, {vr(KB,4)}, {vr(QA,4)}, 0\n{MF} {vr(Y,16)}, {vr(KB,4)}, {vr(QB,4)}, 0\ns_nop 7\ns_nop 3")
    for n, S in enumerate((X, Y)):
        for k in range(8): a(f"v_max3_f32 v{9+n}, v{9+n}, v{S+2*k}, v{S+2*k+1}")
    a(f"s_cmp_lt_u32 s{sCNT}, 64\ns_cbranch_scc1 Ls1")
    for n, N in enumerate((NA, NB)):
        a(f"v_mov_b32 v11, v{9+n}\ns_nop 1\nv_permlane32_swap_b32 v{9+n}, v11\ns_nop 1\nv_max_f32 v11, v11, v{9+n}\nv_xor_b32 v11, 0x80000000, v11")
        for k in range(16): a(f"v_mov_b32 v{N+k}, v11")
    for k in range(32): a(f"v_mov_b32 v{OA+k}, 0")
    a(f"v_mov_b32 v{vK}, v{vQS}\ns_mov_b32 s{sCNT}, 0")
    a(f"Ls2:\nds_read_b128 {vr(KB,4)}, v{vK}\ns_mov_b64 exec, s[{sMASK}:{sMASK+1}]\nds_read_b128 {vr(VB,4)}, v{vV}\nds_read_b128 {vr(VB+4,4)}, v{vV} offset:512\ns_mov_b64 exec, -1")
    a(f"v_add_u32 v{vK}, 2048, v{vK}\nv_add_u32 v{vV}, 2048, v{vV}\ns_add_u32 s{sCNT}, s{sCNT}, 1\ns_waitcnt lgkmcnt(0)")
    a(f"{MF} {vr(X,16)}, {vr(KB,4)}, {vr(QA,4)}, {vr(NA,16)}\n{MF} {vr(Y,16)}, {vr(KB,4)}, {vr(QB,4)}, {vr(NB,16)}\ns_nop 7\ns_nop 3")
    ex(X, 0, 15); ex(Y, 0, 15)
    a("s_nop 1")
    a(f"{SM} {vr(OA,16)}, {vr(VB,4)}, {vr(X,8)}, v{IDX}\n{SM} {vr(OB,16)}, {vr(VB,4)}, {vr(Y,8)}, v{IDX}")
    a(f"{SM} {vr(OA,16)}, {vr(VB+4,4)}, {vr(X+8,8)}, v{IDX}\n{SM} {vr(OB,16)}, {vr(VB+4,4)}, {vr(Y+8,8)}, v{IDX}")
    a(f"s_cmp_lt_u32 s{sCNT}, 64\ns_cbranch_scc1 Ls2\ns_nop 7\ns_nop 7\ns_waitcnt vmcnt(0)")
    fin(False)
    a("s_branch Lfin")

    a("Llast_:\ns_endpgm")
    a(";@@LOAD")
    vm = VM(a)
    a(f"v_lshrrev_b32 v12, 3, v0\nv_and_b32 v13, 7, v0\nv_lshrrev_b32 v14, 4, v0\nv_xor_b32 v13, v13, v14\nv_lshlrev_b32 v12, 10, v12")
    a(f"s_lshl_b32 s14, s{sR}, 2\ns_add_u32 s14, s14, s{sI}\ns_lshl_b32 s14, s14, 15\nv_add_u32 v12, s14, v12")
    a(f"v_lshl_add_u32 v1, v13, 4, v12\nv_xor_b32 v2, 64, v1\nv_add_u32 v2, 8192, v2\nv_add_u32 v3, 16384, v1\nv_add_u32 v4, 16384, v2")
    a(f"s_mul_i32 s14, s{sC}, 192\ns_lshl_b32 s15, s{sI}, 4\ns_movk_i32 s82, 3072\ns_movk_i32 s83, 2752")
    for u in range(3):
        a(f"v_add_u32 v12, {64*u}, v0\nv_mul_u32_u24 v13, 5462, v12\nv_lshrrev_b32 v13, 16, v13\nv_mul_u32_u24 v14, 12, v13\nv_sub_u32 v12, v12, v14\nv_lshl_add_u32 v12, v12, 4, s14\nv_add_u32 v13, s15, v13")
        a(f"v_mad_u32_u24 v{5+u}, v13, s82, v12\nv_mad_u32_u24 v{8+u}, v13, s83, v12")
    a(f"s_lshl_b32 s80, s{sI}, 12\ns_mul_i32 s81, s{sI}, 3072")
    srd_size([SX, SWQ])
    def dma(mreg, mimm, v, sr, so, tag, off=0, sc=""):
        if mreg is not None: a(f"s_add_u32 m0, s{mreg}, {mimm}\ns_nop 0")
        a(f"buffer_load_dwordx4 v{v}, {srd(sr)}, s{so} offen {f'offset:{off}' if off else ''} {sc} lds")
        vm.add(tag)
    def stA(s):
        a(f"s_add_u32 s14, s{sROT}, {s}\ns_and_b32 s14, s14, 7\ns_lshl_b32 s82, s14, 7\ns_mul_i32 s83, s14, 196608")
        if s == 0:
            a("s_waitcnt lgkmcnt(0)")
            mk_srd([SX, SWQ])
            if EXP & 16: a("s_memrealtime s[96:97]")
        b = slots[s] * SLOT
        for u in range(4): dma(80, b + u * 1024, 1 + u, SX, 82, f"A{s}")
        for t in range(3): dma(81, b + 16384 + t * 1024, 5 + t, SWQ, 83, f"A{s}")
    def stB(t):
        a(f"s_add_u32 s14, s{sROT}, {t}\ns_and_b32 s14, s14, 7\ns_mul_i32 s83, s14, 176128")
        for i in range(3): dma(81, bbase[t] + i * 1024, 8 + i, SW1, 83, f"B{t}")
    stA(0)
    srd_size([SWS]); mk_srd([SWS])
    a(f"s_mov_b32 s15, {EPOCH}\nbuffer_load_dword v15, off, {srd(SWS)}, s15 sc1")
    vm.add("A0")
    for s in range(1, LOOK): stA(s)
    srd_size([SW1, SWO, SW2, SOUT, SB2, SG])
    mk_srd([SW1, SWO, SW2, SOUT, SB2, SG]); dbg_srd(68)
    a(f"s_cmp_eq_u32 s{sC}, 15\ns_cselect_b32 s{SW1+2}, 0, s{SW1+2}\nv_lshlrev_b32 v11, 4, v0")
    common2()
    FA, WOF, OF, HB, W2F, BS = 16, 80, 144, 144, 240, 132
    pFQ, pW0, pW1, pTR, pFH, pG0, pG1, pB2, pFO, pH0, pH1, pOUT, pO0, pO1, pALL, pWA, pWB, pR = range(208, 226)
    def ag0():
        a(f"s_lshr_b32 s84, s{sHEAD}, 1\ns_lshl_b32 s85, s{sI}, 7\ns_add_u32 s85, s85, {FQ}\nv_and_b32 v12, 15, v0\nv_lshlrev_b32 v12, 2, v12")
        a(f"s_add_u32 s14, s84, 16\ns_mul_i32 s14, s14, 21846\ns_lshr_b32 s14, s14, 16\ns_lshl_b32 s14, s14, 9\ns_add_u32 s14, s14, s85\nv_add_u32 v{pFQ}, s14, v12")
        a(f"s_add_u32 s14, s84, 32\ns_mul_i32 s14, s14, 21846\ns_lshr_b32 s14, s14, 16\ns_lshl_b32 s14, s14, 9\ns_add_u32 s14, s14, s85\nv_add_u32 v13, s14, v12\nv_cmp_gt_u32 vcc, 16, v0")
        a(f"s_mul_i32 s14, s84, 21846\ns_lshr_b32 s14, s14, 16\ns_lshl_b32 s14, s14, 9\nv_cndmask_b32 v{pFQ}, v13, v{pFQ}, vcc\ns_and_b32 s15, s{sI}, 1\ns_lshl_b32 s15, s15, 8\ns_add_u32 s14, s14, s15")
        a(f"s_lshl_b32 s15, s{sQB}, 1\ns_lshr_b32 s86, s{sI}, 1\ns_add_u32 s15, s15, s86\ns_lshl_b32 s15, s15, 2\ns_add_u32 s14, s14, s15\ns_add_u32 s14, s14, {FQ}")
        a(f"v_and_b32 v12, 1, v0\nv_lshl_add_u32 v13, v12, 7, s14\nv_cmp_gt_u32 vcc, 32, v0\nv_lshrrev_b32 v12, 2, v0\ns_nop 0\nv_cndmask_b32 v{pFQ}, v13, v{pFQ}, vcc\nv_and_b32 v13, 3, v0")
    def ag1():
        a(f"v_lshlrev_b32 v{pW0}, 10, v12\nv_lshl_add_u32 v{pW0}, v13, 4, v{pW0}\ns_lshl_b32 s14, s{sCB}, 7\ns_and_b32 s15, s{sI}, 1\ns_lshl_b32 s15, s15, 6\ns_add_u32 s14, s14, s15\nv_add_u32 v{pW0}, s14, v{pW0}\nv_xor_b32 v{pW1}, 64, v{pW0}")
        a(f"s_lshl_b32 s85, s{sI}, 11\ns_lshl_b32 s84, s{sHEAD}, 17\ns_add_u32 s84, s84, {WKV}\ns_add_u32 s84, s84, s85")
        a(f"s_lshl_b32 s14, s{sHEAD}, 6\ns_lshl_b32 s15, s{sQB}, 3\ns_add_u32 s14, s14, s15\ns_lshl_b32 s15, s{sI}, 1\ns_add_u32 s14, s14, s15\ns_lshl_b32 s88, s14, 10")
        a(f"s_lshl_b32 s89, s{sI}, 13\ns_add_u32 s89, s89, {RING}")
        a(f"s_lshl_b32 s90, s{sI}, 14\ns_lshl_b32 s91, s{sI}, 17")
    def ag2():
        a(f"v_lshrrev_b32 v14, 5, v0\nv_bfe_u32 v12, v0, 2, 2\nv_lshl_add_u32 v12, v14, 2, v12\nv_lshlrev_b32 v12, 6, v12\nv_bfe_u32 v13, v0, 4, 1\nv_lshl_add_u32 v12, v13, 5, v12")
        a(f"v_and_b32 v13, 3, v0\nv_lshl_add_u32 v12, v13, 3, v12\nv_add_u32 v{pTR}, s89, v12")
        a(f"s_lshl_b32 s14, s{sQB}, 2\ns_add_u32 s92, s14, s{sSUB}")
        a(f"s_lshl_b32 s14, s92, 8\ns_add_u32 s14, s14, {FH}\nv_bfe_u32 v12, v0, 4, 1\nv_and_b32 v13, 15, v0\nv_lshlrev_b32 v12, 7, v12\nv_lshl_add_u32 v12, v13, 2, v12\nv_add_u32 v{pFH}, s14, v12")
    def ag3():
        a(f"v_and_b32 v13, 31, v0\ns_lshl_b32 s14, s92, 8\ns_add_u32 s14, s14, {WG}\ns_lshr_b32 s15, s{sI}, 1\ns_lshl_b32 s15, s15, 7\ns_add_u32 s14, s14, s15\nv_lshl_add_u32 v{pG0}, v13, 2, s14\nv_xor_b32 v{pG1}, 128, v{pG0}")
        a(f"s_lshl_b32 s14, s{sCB}, 7\nv_lshl_add_u32 v{pB2}, v13, 1, s14")
        a(f"s_lshl_b32 s14, s92, 2\ns_add_u32 s14, s14, s{sI}\ns_lshl_b32 s94, s14, 14\ns_add_u32 s94, s94, {WO_}\ns_lshl_b32 s14, s14, {FOS + 3 if FOS else 7}\ns_add_u32 s14, s14, {FO}\nv_and_b32 v12, 7, v0\nv_lshl_add_u32 v{pFO}, v12, {FOS or 2}, s14")
        a(f"s_mul_i32 s93, s92, {2*86*1024}\ns_lshl_b32 s14, s{sI}, 10\ns_add_u32 s93, s93, s14\ns_add_u32 s93, s93, {WH}")
    def ag4():
        a(f"s_lshr_b32 s14, s{sI}, 1\ns_lshl_b32 s14, s14, 5\ns_lshl_b32 s15, s92, 6\ns_add_u32 s14, s14, s15\nv_add_u32 v12, s14, v13\nv_lshlrev_b32 v12, 10, v12\nv_lshl_add_u32 v12, v14, 4, v12")
        a(f"s_lshl_b32 s14, s{sCB}, 7\ns_and_b32 s15, s{sI}, 1\ns_lshl_b32 s15, s15, 6\ns_add_u32 s14, s14, s15\nv_add_u32 v{pOUT}, s14, v12")
        for k in range(12): a(f"v_mov_b32 v{BS+k}, 0")
        a(f"v_mov_b32 v12, 0x3f80\nv_cmp_gt_u32 vcc, 32, v0\ns_lshr_b32 s14, s{sI}, 1\ns_mul_i32 s15, s14, {86*1024}\nv_cndmask_b32 v{BS+8}, 0, v12, vcc")
        a(f"v_add_u32 v{pH0}, s15, v11\ns_sub_u32 s15, {86*1024}, s15\nv_add_u32 v{pH1}, s15, v11")
    def ag5():
        a(f"s_lshr_b32 s14, s{sI}, 1\ns_lshl_b32 s14, s14, 10\nv_add_u32 v{pO0}, s14, v11\nv_xor_b32 v{pO1}, 1024, v{pO0}")
        for j in range(1, 4): a(f"s_xor_b32 s14, s{sI}, {j}\ns_mul_i32 s14, s14, 12288\ns_add_u32 s14, s14, {(j-1)*4096}\nv_add_u32 v{pR+j}, s14, v11")
        a(f"s_mul_i32 s14, s{sI}, 12288\nv_add_u32 v{pR}, s14, v11")
        a(f"v_lshrrev_b32 v14, 4, v0\ns_lshl_b32 s14, s{sI}, 11\ns_add_u32 s14, s14, {FQ}\nv_lshl_add_u32 v14, v14, 9, s14\nv_and_b32 v13, 15, v0\nv_lshl_add_u32 v{pALL}, v13, 2, v14")
        if WARM & 2: a(f"v_bfe_u32 v12, v0, 1, 4\nv_and_b32 v13, 1, v0\nv_lshlrev_b32 v13, 6, v13\nv_lshl_add_u32 v12, v12, 10, v13\ns_lshl_b32 s14, s{sCB}, 7\nv_add_u32 v{pWB}, s14, v12\nv_lshrrev_b32 v13, 5, v0\nv_lshl_add_u32 v{pWA}, v13, 19, v{pWB}")
    agroups = [ag0, ag1, ag2, ag3, ag4, ag5]
    stamp(0)
    nxt = {0: [("A", 3)], 1: [("A", 4)], 2: [("A", 5)], 3: [("A", 6)], 4: [("A", 7), ("B", 0)], 5: [("B", 1), ("B", 2)], 6: [("B", 3), ("B", 4)], 7: [("B", 5), ("B", 6)]}
    if LOOK == 4: nxt[0] = [("A", 4)]; nxt[1] = [("B", 0)]; nxt[4] = [("A", 7)]
    if LATE >= 2: nxt[7] = [("B", 5)][:3 - LATE]
    if LATE >= 4: nxt[6] = [("B", 3)]
    if LOOK == 2: nxt[0] = [("A", 2), ("A", 3)]
    for s in range(8):
        vm.wait(f"A{s}")
        if s == 0: nonce(15)
        a("s_barrier")
        if s == 1:
            a(f"s_mov_b32 m0, {GLDS}\ns_mov_b32 s14, 0")
            dma(None, 0, 11, SG, 14, "G")
        for k, n in nxt[s]: (stA if k == "A" else stB)(n)
        if AG <= s < AG + 6: agroups[s - AG]()
    stamp(1)
    vm.wait("B1")
    a("s_barrier")
    if not LATE: stB(7)
    assert BSH <= 1 and not (BSH and LATE > 3)
    vm.wait(f"B{3 + BSH}")
    a("s_barrier")
    for t in range(8 - LATE, 8): stB(t)
    vm.all()
    a("s_barrier")
    stamp(2)
    def kvdma(g0, g1, tag):
        for g in range(g0, g1 - 1, -1):
            a(f"s_add_u32 m0, s85, {g*8192}\ns_add_u32 s86, s84, {g*8192}")
            dma(None, 0, 11, SWS, 86, tag, sc=SCK); dma(None, 0, 11, SWS, 86, tag, off=1024, sc=SCK)
    PL = f"buffer_load_dword v12, v{pFQ}, {srd(SWS)}, 0 offen sc1"
    def chk(lo, hi, tgt):
        a(f"v_cmp_ne_u32 vcc, s{sN}, v12\ns_mov_b32 s82, {lo:#x}\ns_mov_b32 s83, {hi:#x}\ns_nop 2\ns_and_b64 vcc, vcc, s[82:83]\ns_cbranch_scc0 {tgt}")
    def pollm(lo, hi, name):
        a(f"s_mov_b32 s15, {SPIN}\n{name}:")
        chk(lo, hi, name + "_x")
        a(f"{PL}\ns_sub_u32 s15, s15, 1\ns_cmp_lg_u32 s15, 0\ns_waitcnt vmcnt(0)\ns_cbranch_scc1 {name}\n{name}_x:")
    M1, M2, M3 = ((0xc000c000, 0xffffffff), (0x30003000, 0), (0xffffffff, 0)) if STG else ((0xffffffff, 0xffffffff), (0, 0), (0, 0))
    a(f"{PL}\ns_waitcnt vmcnt(0)")
    pollm(*M1, "Lpq1")
    stamp(3)
    dma(89, 6144, 11, SWS, 88, "Q", sc="sc1")
    dma(None, 0, 11, SWS, 88, "Q", off=1024, sc="sc1")
    kvdma(15, 14, "KV1")
    chk(*M2, "LsA")
    a(f"{PL}\ns_waitcnt vmcnt(0)\ns_barrier")
    stamp(4)
    pollm(*M2, "Lpq2")
    q0 = list(vm.q)
    kvdma(13, 12, "KV2")
    a("s_branch LsC\nLsA:")
    vm.q = q0
    kvdma(13, 12, "KV2")
    vm.wait("KV1")
    a("s_barrier")
    stamp(4)
    a("LsC:")
    chk(*M3, "LsD")
    a(f"{PL}\ns_waitcnt vmcnt(0)\ns_barrier")
    pollm(*M3, "Lpq3")
    q0 = list(vm.q)
    kvdma(11, 7, "KV2b")
    a("s_branch LsF\nLsD:")
    vm.q = q0
    kvdma(11, 7, "KV2b")
    vm.wait("KV2")
    a("s_barrier\nLsF:")
    kvdma(6, 0, "KV3")
    def w2dma(n):
        sl = (n & 3) * 2048
        if n < 22:
            a(f"s_add_u32 s14, s90, {n*65536}")
            dma(89, sl, pW0, SW2, 14, f"W{n}"); dma(89, sl + 1024, pW1, SW2, 14, f"W{n}")
        else:
            a(f"s_add_u32 s14, s91, {(n-22)*16384}")
            dma(89, sl, pW0, SWO, 14, f"W{n}"); dma(89, sl + 1024, pW1, SWO, 14, f"W{n}")
    for n in range(3): w2dma(n)
    if WARM & 2:
        a(f"s_lshl_b32 s14, s{sQB}, 16\ns_add_u32 s14, s14, s90\nbuffer_load_dword v1, v{pWA}, {srd(SW2)}, s14 offen\ns_add_u32 s14, s14, {16*65536}\nbuffer_load_dword v2, v{pWB}, {srd(SW2)}, s14 offen")
        a(f"s_lshl_b32 s14, s{sQB}, 14\ns_add_u32 s14, s14, s91\nbuffer_load_dword v3, v{pWB}, {srd(SWO)}, s14 offen")
        vm.add("WM", 3)
    vm.wait("KV3")
    a("s_barrier")
    stamp(5)
    if FPRIO: a(f"s_setprio {FPRIO}")
    poll(pFH, 12, "Lph"); vm.q = []
    stamp(6)
    a(f"s_cmp_lg_u32 s2, 0\ns_cbranch_scc1 Lnall")
    poll(pALL, 12, "Lpa")
    a("Lnall:")
    a(f"buffer_load_dword v14, v{pG0}, {srd(SWS)}, 0 offen sc1\nbuffer_load_dword v15, v{pG1}, {srd(SWS)}, 0 offen sc1")
    a(f"buffer_load_ushort v{BS}, v{pB2}, {srd(SB2)}, 0 offen\nbuffer_load_ushort v{BS+4}, v{pB2}, {srd(SB2)}, 0 offen offset:64")
    vm.add("G", 4)
    NH = 8
    assert 0 < HD < NH
    def hload(n):
        b = HB + 8 * (n % NH)
        a(f"s_add_u32 s14, s93, {n*4096}\nbuffer_load_dwordx4 {vr(b,4)}, v{pH0}, {srd(SWS)}, s14 offen {SCH}\nbuffer_load_dwordx4 {vr(b+4,4)}, v{pH1}, {srd(SWS)}, s14 offen {SCH}")
        vm.add(f"H{n}", 2)
    for n in range(HD or NH): hload(n)
    hb = {HB1: range(NH, NH + HB1), HB2: range(NH + HB1, 22)}
    if HD: hb = {n: [n + HD] for n in range(22 - HD)}
    if EXP & 2: a("s_branch Lskip")
    def trreads(n, dst):
        sl = (n & 3) * 2048
        for ct in range(2):
            for u in range(2):
                a(f"ds_read_b64_tr_b16 {vr(dst+4*ct+2*u,2)}, v{pTR} offset:{sl+ct*1024+u*512}")
    def mf4(wb, h0, h1, first):
        for ct in range(2):
            for rt in range(2):
                d = vr(FA + 16 * (2 * rt + ct), 16)
                a(f"{MF} {d}, {vr(wb+4*ct,4)}, {vr(h1 if rt else h0,4)}, {'0' if first else d}")
    for n in range(30):
        if n + 3 < 30: w2dma(n + 3)
        for m in hb.get(n, []): hload(m)
        vm.wait(f"H{n}"); vm.wait(f"W{n}")
        if n < 22:
            wb = W2F + 8 * (n & 1)
            if n == 21: a(f"s_cmp_ge_u32 s{sI}, 2\ns_cbranch_scc1 Lb2")
            trreads(n, wb)
            a("s_waitcnt lgkmcnt(0)")
            if not (EXP & 1): mf4(wb, HB + 8 * (n % NH), HB + 8 * (n % NH) + 4, n == 0)
            if n == 21:
                a(f"s_branch Lb2x\nLb2:\ns_cmp_eq_u32 s{sI}, 3\ns_cbranch_scc1 Lb2x")
                mf4(BS, BS + 8, BS + 8, False)
                a("Lb2x:")
        else:
            trreads(n, WOF + 8 * (n - 22))
            a("s_waitcnt lgkmcnt(0)")
        if EXP & 8 and n in (10, 21, 29): stamp({10: 3, 21: 4, 29: 6}[n])
    if VPRIO: a(f"s_setprio {VPRIO}")
    if not BAR1: a(f"buffer_load_dword v12, v{pFO}, {srd(SWS)}, 0 offen sc1")
    a("Lskip:")
    stamp(7)
    sNL, sNM, sE, sT = 80, 81, 82, 83
    if FPRIO or VPRIO: a("s_setprio 0")
    if BAR1:
        a("s_barrier")
        stamp(8)
        a(f"buffer_load_dword v12, v{pFO}, {srd(SWS)}, 0 offen sc1")
    a("v_sub_f32 v14, 1.0, v14\nv_sub_f32 v15, 1.0, v15")
    for k in range(32): a(f"v_pk_mul_f32 {vr(FA+2*k,2)}, {vr(FA+2*k,2)}, v[14:15] op_sel:[0,{k >> 4}] op_sel_hi:[1,{k >> 4}]")
    a(f"s_mov_b32 s{sNL}, 0\ns_mov_b32 s{sNM}, 0\ns_mov_b32 s15, {SPIN}")
    a(f"Lw:\ns_waitcnt vmcnt(0)\nv_cmp_ne_u32 vcc, s{sN}, v12\ns_sub_u32 s15, s15, 1\ns_cmp_eq_u32 s15, 0\ns_cbranch_scc1 Lwx\ns_mov_b32 s{sT}, s{sNL}\ns_nop 1")
    a(f"s_and_b32 s14, vcc_lo, 0xff\ns_bitset1_b32 s14, 8\ns_ff1_i32_b32 s{sE}, s14\ns_max_u32 s{sE}, s{sE}, s{sNL}\ns_cmp_eq_u32 s{sE}, s{sNM}\ns_cbranch_scc0 Lw2")
    a(f"buffer_load_dword v12, v{pFO}, {srd(SWS)}, 0 offen sc1\ns_branch Lw\nLw2:")
    if PROF == 1: a(f"s_cmp_lg_u32 s{sNL}, 0\ns_cbranch_scc1 Lpf1\ns_memrealtime s[34:35]\ns_sub_u32 s16, {SPIN}, s15\nLpf1:")
    a(f"s_sub_u32 s14, s{sE}, s{sNL}\ns_bfm_b32 s84, s14, s{sNL}")
    for hh in range(8):
        b = OF + 8 * hh
        a(f"s_bitcmp1_b32 s84, {hh}\ns_cbranch_scc0 Lwi{hh}\ns_add_u32 s14, s94, {hh*2048}")
        a(f"buffer_load_dwordx4 {vr(b,4)}, v{pO0}, {srd(SWS)}, s14 offen sc1\nbuffer_load_dwordx4 {vr(b+4,4)}, v{pO1}, {srd(SWS)}, s14 offen sc1\nLwi{hh}:")
    if PROF == 1: a(f"s_memrealtime s[20:21]")
    a(f"s_mov_b32 s{sNL}, s{sE}\ns_cmp_eq_u32 s{sE}, 8\ns_cselect_b32 s{sT}, 8, s{sT}\ns_cbranch_scc1 Lw4\nbuffer_load_dword v12, v{pFO}, {srd(SWS)}, 0 offen sc1\nLw4:")
    a(f"s_sub_u32 s14, s{sT}, s{sNM}\ns_bfm_b32 s84, s14, s{sNM}\ns_mov_b32 s{sNM}, s{sT}")
    for hh in range(8):
        b = OF + 8 * hh
        a(f"s_bitcmp1_b32 s84, {hh}\ns_cbranch_scc0 Lwv{hh}\ns_waitcnt vmcnt({2*(7-hh)})")
        mf4(WOF + 8 * hh, b, b + 4, False)
        a(f"Lwv{hh}:")
    a(f"s_cmp_lg_u32 s{sNM}, 8\ns_cbranch_scc1 Lw\nLwx:")
    if PROF == 1: a(f"s_sub_u32 s18, {SPIN}, s15\ns_memrealtime s[26:27]")
    if not BAR1:
        a("s_barrier")
        stamp(8)
    stamp(10)
    a("s_nop 7")
    for j in (2, 1, 3):
        for q in range(4):
            a(f"ds_write_b128 v{pR+j}, {vr(FA+16*j+4*q,4)} offset:{q*1024}")
    a("s_waitcnt lgkmcnt(0)\ns_barrier")
    for j in range(1, 4):
        for q in range(4):
            a(f"ds_read_b128 {vr(FA+16*j+4*q,4)}, v{pR} offset:{(j-1)*4096+q*1024}")
    a(f"s_cmp_lg_u32 s2, 0\ns_cbranch_scc1 Lnoep\ns_cmp_lg_u32 s{sI}, 0\ns_cbranch_scc1 Lnoep\ns_mov_b32 s14, {EPOCH}")
    flag_store(14, 12)
    a("Lnoep:")
    for j in range(1, 4):
        a(f"s_waitcnt lgkmcnt({12-4*j})")
        for k in range(8): a(f"v_pk_add_f32 {vr(FA+2*k,2)}, {vr(FA+2*k,2)}, {vr(FA+16*j+2*k,2)}")
    for k in range(8): a(f"v_cvt_pk_bf16_f32 v{FA+k}, v{FA+2*k}, v{FA+2*k+1}")
    a("s_nop 1")
    for k in (0, 1, 4, 5): a(f"v_permlane32_swap_b32 v{FA+k}, v{FA+k+2}")
    a("s_nop 0")
    a(f"buffer_store_dwordx4 {vr(FA,4)}, v{pOUT}, {srd(SOUT)}, 0 offen {['', 'sc1', 'nt', 'sc0 sc1'][OSC]}\nbuffer_store_dwordx4 {vr(FA+4,4)}, v{pOUT}, {srd(SOUT)}, 0 offen offset:32 {['', 'sc1', 'nt', 'sc0 sc1'][OSC]}")
    stamp(11)
    if EXP & 16: a("s_mov_b32 s16, s100\ns_mov_b32 s18, s96")
    prof_out(1)
    a("Lend:\ns_endpgm")
    a(";@@END")
    a(f""".section .rodata,"a"
.p2align 6
.amdhsa_kernel {KN}
.amdhsa_next_free_vgpr 256
.amdhsa_next_free_sgpr 102
.amdhsa_accum_offset 256
.amdhsa_group_segment_fixed_size 0
.amdhsa_kernarg_size 96
.amdhsa_user_sgpr_count 2
.amdhsa_user_sgpr_kernarg_segment_ptr 1
.amdhsa_system_sgpr_workgroup_id_x 1
.end_amdhsa_kernel""")
    L = a.L
    ic, il, ie = L.index(";@@COMP"), L.index(";@@LOAD"), L.index(";@@END")
    a.L = L[:ic] + L[il+1:ie] + L[ic+1:il] + L[ie+1:]
    open(path, "w").write(a.text())


if __name__ == "__main__":
    kw = {}
    for x in sys.argv[2:]:
        k, v = x.split("=")
        kw[k] = int(v)
    gen(sys.argv[1], **kw)
```
